```python
import torch

def _softmax(x, axis=-1):
    return torch.softmax(x, dim=axis)
def _gelu(x):
    return torch.nn.functional.gelu(x, approximate="tanh")
def _silu(x):
    return torch.nn.functional.silu(x)
def _sigmoid(x):
    return torch.sigmoid(x)
def _layernorm(x, axis=-1, eps=1e-5):
    m = x.mean(dim=axis, keepdim=True)
    v = x.var(dim=axis, keepdim=True, unbiased=False)
    return (x - m) / torch.sqrt(v + eps)
def _scatter_add(tgt, idx, src, axis=0):
    return tgt.clone().index_add_(axis, idx, src)
def _segment_sum(src, seg, n):
    out = torch.zeros((n,) + src.shape[1:], dtype=src.dtype)
    return out.index_add_(0, seg, src)
def _pad(x, pw):
    flat = tuple(v for pair in reversed(pw) for v in pair)
    return torch.nn.functional.pad(x, flat)

kernel_name = 'interleave_layers__sliding_block_cached__mixer_channel_mlp__decode'

def setup_inputs():

    _w = (lambda a: (lambda t: t.to(torch.bfloat16) if t.is_floating_point() else t)(torch.as_tensor(a)))
    def _A_setup():
        B, Sq, D = 4, 1, 512
        Hq, Hkv, Sk, Dh = 32, 8, 8192, 128
        assert Hq % Hkv == 0, (Hq, Hkv)
        return {
            "x": _w((lambda *s: torch.randn(*s, dtype=torch.bfloat16) * 0.05)(B, Sq, D)),
            "k_cache": _w((lambda *s: torch.randn(*s, dtype=torch.bfloat16) * 1.6)(B, Hkv, Sk, Dh)),
            "v_cache": _w((lambda *s: torch.randn(*s, dtype=torch.bfloat16) * 1.6)(B, Hkv, Sk, Dh)),
            "wq": _w((lambda *s: torch.randn(*s, dtype=torch.bfloat16) * 1.6)(D, Hq * Dh) * (D ** -0.5)),
            "wo": _w((lambda *s: torch.randn(*s, dtype=torch.bfloat16) * 1.6)(Hq * Dh, D) * ((Hq * Dh) ** -0.5)),
        }
    _A_in = _A_setup()

    def _B_setup():
        B, S, D, F = 4, 1, 512, 1792
        return {
            "x": _w((lambda *s: torch.randn(*s, dtype=torch.bfloat16) * 0.05)(B, S, D)),
            "w1": _w((lambda *s: torch.randn(*s, dtype=torch.bfloat16) * 3.2)(D, F) * (D ** -0.5)),
            "b1": _w((lambda *s: torch.randn(*s, dtype=torch.bfloat16) * 1.6)(F)),
            "w2": _w((lambda *s: torch.randn(*s, dtype=torch.bfloat16) * 0.2)(F, D) * (F ** -0.5)),
            "b2": _w((lambda *s: torch.randn(*s, dtype=torch.bfloat16) * 0.2)(D)),
        }
    _B_in = _B_setup()

    return {
        "A_x": _A_in["x"],
        "A_k_cache": _A_in["k_cache"],
        "A_v_cache": _A_in["v_cache"],
        "A_wq": _A_in["wq"],
        "A_wo": _A_in["wo"],
        "B_x": _B_in["x"],
        "B_w1": _B_in["w1"],
        "B_b1": _B_in["b1"],
        "B_w2": _B_in["w2"],
        "B_b2": _B_in["b2"],
    }

def reference(A_x, A_k_cache, A_v_cache, A_wq, A_wo, B_x, B_w1, B_b1, B_w2, B_b2):
    def _A_ref(x, k_cache, v_cache, wq, wo):
        B, Sq, D = x.shape
        Hq, Dh = 32, 128
        Hkv, Sk = k_cache.shape[1], k_cache.shape[2]
        W = min(4096, max(256, Sk // 4))
        rep = Hq // Hkv
        q = (lambda x, *d: x.permute(*d))((x @ wq).reshape(B, Sq, Hq, Dh), 0, 2, 1, 3)
        k = (lambda x, n, axis: torch.repeat_interleave(x, n, dim=axis))(k_cache[:, :, Sk - W:, :], rep, axis=1)
        v = (lambda x, n, axis: torch.repeat_interleave(x, n, dim=axis))(v_cache[:, :, Sk - W:, :], rep, axis=1)
        scores = torch.einsum("bhqd,bhkd->bhqk", q, k) * (Dh ** -0.5)
        p = _softmax(scores, axis=-1)
        o = torch.einsum("bhqk,bhkd->bhqd", p, v)
        return (lambda x, *d: x.permute(*d))(o, 0, 2, 1, 3).reshape(B, Sq, Hq * Dh) @ wo

    def _B_ref(x, w1, b1, w2, b2):
        y = _layernorm(x, axis=-1)
        h = _gelu(torch.einsum("bsd,df->bsf", y, w1) + b1)
        return torch.einsum("bsf,fd->bsd", h, w2) + b2

    x = A_x
    x = x + _A_ref(_layernorm(x, axis=-1), A_k_cache, A_v_cache, A_wq, A_wo)
    x = x + _B_ref(_layernorm(x, axis=-1), B_w1, B_b1, B_w2, B_b2)
    x = x + _A_ref(_layernorm(x, axis=-1), A_k_cache, A_v_cache, A_wq, A_wo)
    x = x + _B_ref(_layernorm(x, axis=-1), B_w1, B_b1, B_w2, B_b2)
    return x
```

```python
import sys, struct, math

NAME = "interleave_layers__sliding_block_cached__mixer_channel_mlp__decode"
KNAME = NAME + "_kernel"

OPT = dict(stamps=False, D=4)
for a in sys.argv[2:]:
    k, v = a.split("=")
    OPT[k] = int(v)

def f32(x):
    return "0x%08x" % struct.unpack("<I", struct.pack("<f", x))[0]

QB_OFF = 0x0000
X1_OFF = 0x1000
ML_OFF = 0x2000
HB_OFF = 0x2800
X2_OFF = 0x3000
OB_OFF = 0x4000
X1P_OFF = 0xC000
X2P_OFF = 0x14000
LSZ = 0x16000
GSZ = 2 * LSZ
PF = GSZ // 32
TAG_BASE = 8 * GSZ
TSZ = 0x4000
STAMP_BASE = 0x400000

L_WQ = 0
L_WO = 16384
L_W1 = 32768
L_W2 = 40960 + 64
L_RED1 = 49152
L_RED5 = 57344
L_OB = 65536
OSTR = 2560
L_AF = 0
L_MX = L_OB + 8 * OSTR
L_LS = L_MX + 128
LDS_BYTES = L_LS + 128

SPIN_MAX = 0x20000

class Regs:
    def __init__(self, start, limit, p):
        self.n = start; self.limit = limit; self.p = p
    def alloc(self, cnt=1, align=1):
        self.n = (self.n + align - 1) // align * align
        r = self.n; self.n += cnt
        assert self.n <= self.limit, (self.p, self.n)
        return r

S = Regs(4, 100, "s")
V = Regs(1, 256, "v")

def s(r, n=1): return f"s{r}" if n == 1 else f"s[{r}:{r+n-1}]"
def v(r, n=1): return f"v{r}" if n == 1 else f"v[{r}:{r+n-1}]"

sX, sK, sV, sWQ, sWO, sW1, sB1, sW2, sB2, sOUT, sDBG, sWS = [S.alloc(4, 4) for _ in range(12)]
sW = S.alloc(); sG = S.alloc(); sI = S.alloc(); sB = S.alloc(); sS = S.alloc()
sLB = S.alloc()
sLO = S.alloc()
sLAYER = S.alloc()
sFAST = S.alloc()
sNONCE = S.alloc()
sCNT = S.alloc()
sT0 = S.alloc(); sT1 = S.alloc(); sT2 = S.alloc(); sT3 = S.alloc()
sC = S.alloc()
sPLO = S.alloc(); sPHI = S.alloc()
sXCC = S.alloc()
sTB = S.alloc()
sMA = [S.alloc(2, 2) for _ in range(4)]
sTM = S.alloc(2, 2)
sEX = S.alloc(2, 2)
sSTB = S.alloc()

vL = V.alloc()
vMW = V.alloc()
aL4 = V.alloc()
KF = V.alloc(32, 4)
VT = V.alloc(32, 4)
VR = V.alloc(32, 4)
WA = V.alloc(16, 4)
WB = V.alloc(28, 4)
WC = WB
XF = V.alloc(16, 4)
QF = V.alloc(16, 4)
PB = V.alloc(16, 4)
ONE = V.alloc(4, 4)
ACC = V.alloc(16, 4)
T = V.alloc(16, 4)
aQ0 = V.alloc(); aQ1 = V.alloc(); aX = V.alloc(); aOST = V.alloc(); aOG = V.alloc(); aMLG = V.alloc()
aR1 = V.alloc(); aR2 = V.alloc(); aXST = V.alloc(); aFST = V.alloc(); aHG = V.alloc(); aX2P = V.alloc()
aL16 = V.alloc()
aRED = V.alloc()
aFD = V.alloc(); aFC = V.alloc(); aFG = V.alloc(); aFS = V.alloc()
aOW = V.alloc(); aOR = V.alloc(); aMX = V.alloc(); aMXW = V.alloc()
RES = V.alloc(2, 2)
BIA = V.alloc(2, 2)
NVGPR = V.n

out = []
def e(x): out.append("    " + x)
def lab(x): out.append(x + ":")
def c(x): out.append("    ; " + x)
def nop(n):
    while n > 0:
        k = min(n, 16); e(f"s_nop {k-1}"); n -= k
_uid = [0]
def uid(p="L"):
    _uid[0] += 1
    return f"{p}_{_uid[0]}"

def srd(reg, karg_off, nbytes):
    pass

def stamp(idx):
    if not OPT["stamps"]: return
    e(f"s_memrealtime {s(sTM,2)}")
    e("s_waitcnt lgkmcnt(0)")
    e(f"v_mov_b32 {v(T+15)}, {s(sTM)}")
    e(f"v_mov_b32 {v(T+14)}, 0")
    e(f"s_mov_b64 {s(sEX,2)}, exec")
    e("s_mov_b64 exec, 1")
    e(f"buffer_store_dword {v(T+15)}, {v(T+14)}, {s(sWS,4)}, {s(sSTB)} offen offset:{idx*4}")
    e(f"s_mov_b64 exec, {s(sEX,2)}")

def mfma(d, a, b, cc):
    cs = "0" if cc is None else v(cc, 4)
    e(f"v_mfma_f32_16x16x32_bf16 {v(d,4)}, {v(a,4)}, {v(b,4)}, {cs}")

def check_sentinel(regs, tmp):
    regs = list(regs)
    e(f"v_max3_u32 {v(tmp)}, {v(regs[0])}, {v(regs[1])}, {v(regs[2])}")
    rest = regs[3:]
    while len(rest) >= 2:
        e(f"v_max3_u32 {v(tmp)}, {v(tmp)}, {v(rest[0])}, {v(rest[1])}")
        rest = rest[2:]
    if rest:
        e(f"v_max_u32 {v(tmp)}, {v(tmp)}, {v(rest[0])}")
    e(f"v_cmp_eq_u32 vcc, -1, {v(tmp)}")

def poll(issue, regs, tmp):
    top = uid("POLL"); done = uid("POLLD")
    e(f"s_mov_b32 {s(sCNT)}, 0")
    lab(top)
    issue()
    e("s_waitcnt vmcnt(0)")
    check_sentinel(regs, tmp)
    e(f"s_cbranch_vccz {done}")
    e(f"s_add_u32 {s(sCNT)}, {s(sCNT)}, 1")
    e(f"s_cmp_lt_u32 {s(sCNT)}, {SPIN_MAX}")
    e(f"s_cbranch_scc1 {top}")
    lab(done)

def store_intra(op, data, addr, soff, off):
    slow = uid("STS"); done = uid("STD")
    e(f"s_cmp_eq_u32 {s(sFAST)}, 0")
    e(f"s_cbranch_scc1 {slow}")
    e(f"{op} {data}, {v(addr)}, {s(sWS,4)}, {s(soff)} offen offset:{off}")
    e(f"s_branch {done}")
    lab(slow)
    e(f"{op} {data}, {v(addr)}, {s(sWS,4)}, {s(soff)} offen offset:{off} sc1")
    lab(done)

def ln_gemv_mma(red):
    for ks in range(4):
        mfma(ACC, WA + 4*ks, XF + 4*ks, None if ks == 0 else ACC)
        mfma(ACC+4, XF + 4*ks, XF + 4*ks, None if ks == 0 else ACC+4)
    nop(8)
    e(f"ds_write_b128 {v(aRED)}, {v(ACC,4)} offset:{red}")
    e(f"ds_write_b128 {v(aRED)}, {v(ACC+4,4)} offset:{red+4096}")
    e("s_waitcnt lgkmcnt(0)")

def ln_gemv_final(red, double_ln):
    o = red // 512
    e(f"ds_read2st64_b64 {v(VR,4)}, {v(aFD)} offset0:{o} offset1:{o+2}")
    e(f"ds_read2st64_b64 {v(VR+4,4)}, {v(aFD)} offset0:{o+4} offset1:{o+6}")
    e(f"ds_read2st64_b64 {v(VR+8,4)}, {v(aFC)} offset0:{o} offset1:{o+2}")
    e(f"ds_read2st64_b64 {v(VR+12,4)}, {v(aFC)} offset0:{o+4} offset1:{o+6}")
    g = red // 256
    assert g + 12 < 256
    e(f"ds_read2st64_b32 {v(VR+16,2)}, {v(aFG)} offset0:{g} offset1:{g+4}")
    e(f"ds_read2st64_b32 {v(VR+18,2)}, {v(aFG)} offset0:{g+8} offset1:{g+12}")
    e(f"ds_read2st64_b32 {v(VR+20,2)}, {v(aFS)} offset0:{g} offset1:{g+4}")
    e(f"ds_read2st64_b32 {v(VR+22,2)}, {v(aFS)} offset0:{g+8} offset1:{g+12}")
    e("s_waitcnt lgkmcnt(0)")
    e(f"v_add_f32 {v(VR+16)}, {v(VR+16)}, {v(VR+17)}")
    e(f"v_add_f32 {v(VR+18)}, {v(VR+18)}, {v(VR+19)}")
    e(f"v_add_f32 {v(VR+20)}, {v(VR+20)}, {v(VR+21)}")
    e(f"v_add_f32 {v(VR+22)}, {v(VR+22)}, {v(VR+23)}")
    e(f"v_add_f32 {v(VR+16)}, {v(VR+16)}, {v(VR+18)}")
    e(f"v_add_f32 {v(VR+20)}, {v(VR+20)}, {v(VR+22)}")
    e(f"v_mul_f32 {v(VR+20)}, {f32(1/512)}, {v(VR+20)}")
    e(f"v_mul_f32 {v(VR+16)}, {f32(1/512)}, {v(VR+16)}")
    e(f"v_fma_f32 {v(VR+16)}, -{v(VR+20)}, {v(VR+20)}, {v(VR+16)}")
    e(f"v_max_f32 {v(VR+16)}, 0, {v(VR+16)}")
    e(f"v_add_f32 {v(VR+17)}, {f32(1e-5)}, {v(VR+16)}")
    e(f"v_rsq_f32 {v(VR+17)}, {v(VR+17)}")
    e(f"v_pk_add_f32 {v(VR,2)}, {v(VR,2)}, {v(VR+2,2)}")
    e(f"v_pk_add_f32 {v(VR+4,2)}, {v(VR+4,2)}, {v(VR+6,2)}")
    e(f"v_pk_add_f32 {v(VR+8,2)}, {v(VR+8,2)}, {v(VR+10,2)}")
    e(f"v_pk_add_f32 {v(VR+12,2)}, {v(VR+12,2)}, {v(VR+14,2)}")
    e(f"v_pk_add_f32 {v(VR,2)}, {v(VR,2)}, {v(VR+4,2)}")
    e(f"v_pk_add_f32 {v(VR+8,2)}, {v(VR+8,2)}, {v(VR+12,2)}")
    if double_ln:
        e(f"v_mul_f32 {v(VR+18)}, {v(VR+17)}, {v(VR+17)}")
        e(f"v_mul_f32 {v(VR+18)}, {v(VR+18)}, {v(VR+16)}")
        e(f"v_add_f32 {v(VR+18)}, {f32(1e-5)}, {v(VR+18)}")
        e(f"v_rsq_f32 {v(VR+18)}, {v(VR+18)}")
        nop(1)
        e(f"v_mul_f32 {v(VR+17)}, {v(VR+17)}, {v(VR+18)}")
    e(f"v_fma_f32 {v(T)}, -{v(VR+20)}, {v(VR+8)}, {v(VR)}")
    e(f"v_fma_f32 {v(T+1)}, -{v(VR+20)}, {v(VR+9)}, {v(VR+1)}")
    e(f"v_mul_f32 {v(T)}, {v(T)}, {v(VR+17)}")
    e(f"v_mul_f32 {v(T+1)}, {v(T+1)}, {v(VR+17)}")

def reduce_slice(nload, addr, base_off, step, extra_bias):
    def issue():
        e(f"s_add_u32 {s(sT0)}, {s(sLO)}, {base_off}")
        for t in range(nload):
            e(f"buffer_load_dwordx4 {v(VR+4*t,4)}, {v(addr)}, {s(sWS,4)}, {s(sT0)} offen sc1")
            if t + 1 < nload:
                e(f"s_add_u32 {s(sT0)}, {s(sT0)}, {step}")
    poll(issue, range(VR, VR + 4*nload), T)
    n = nload
    while n > 1:
        h = n // 2
        for t in range(h):
            e(f"v_pk_add_f32 {v(VR+4*t,2)}, {v(VR+4*t,2)}, {v(VR+4*(t+h),2)}")
            e(f"v_pk_add_f32 {v(VR+4*t+2,2)}, {v(VR+4*t+2,2)}, {v(VR+4*(t+h)+2,2)}")
        n = h
    nop(2)
    e(f"v_permlane32_swap_b32 {v(VR)}, {v(VR+2)}")
    e(f"v_permlane32_swap_b32 {v(VR+1)}, {v(VR+3)}")
    nop(1)
    e(f"v_add_f32 {v(VR)}, {v(VR)}, {v(VR+2)}")
    e(f"v_add_f32 {v(VR+1)}, {v(VR+1)}, {v(VR+3)}")
    e(f"v_mov_b32 {v(VR+2)}, {v(VR)}")
    e(f"v_mov_b32 {v(VR+3)}, {v(VR+1)}")
    nop(2)
    e(f"v_permlane16_swap_b32 {v(VR)}, {v(VR+2)}")
    e(f"v_permlane16_swap_b32 {v(VR+1)}, {v(VR+3)}")
    nop(1)
    e(f"v_add_f32 {v(VR)}, {v(VR)}, {v(VR+2)}")
    e(f"v_add_f32 {v(VR+1)}, {v(VR+1)}, {v(VR+3)}")
    if extra_bias:
        e(f"v_add_f32 {v(VR)}, {v(VR)}, {v(BIA)}")
        e(f"v_add_f32 {v(VR+1)}, {v(VR+1)}, {v(BIA+1)}")
    e(f"v_cvt_pk_bf16_f32 {v(T)}, {v(VR)}, {v(VR+1)}")
    e(f"v_lshlrev_b32 {v(VR)}, 16, {v(T)}")
    e(f"v_and_b32 {v(VR+1)}, 0xffff0000, {v(T)}")
    e(f"v_add_f32 {v(VR)}, {v(VR)}, {v(RES)}")
    e(f"v_add_f32 {v(VR+1)}, {v(VR+1)}, {v(RES+1)}")
    e(f"v_cvt_pk_bf16_f32 {v(T)}, {v(VR)}, {v(VR+1)}")
    e(f"v_min_u32 {v(T)}, -2, {v(T)}")
    e(f"v_lshlrev_b32 {v(RES)}, 16, {v(T)}")
    e(f"v_and_b32 {v(RES+1)}, 0xffff0000, {v(T)}")

D = OPT["D"]

hdr = open("cdna_kernels/" + NAME + ".s.ref").read().split("\n")
head = [l for l in hdr if l.startswith(";") and "@launch" not in l and "Override launch" not in l and "grid=ceil" not in l]
out.extend(head)
out.append(f"; @launch grid=(256,1,1) block=(512,1,1) lds={LDS_BYTES}")
out.append('.amdgcn_target "amdgcn-amd-amdhsa--gfx950"')
out.append(".text")
out.append(f".globl {KNAME}")
out.append(".p2align 8")
out.append(f".type {KNAME},@function")
lab(KNAME)

e("s_cmp_ge_u32 s2, 256")
e("s_cbranch_scc1 L_END")
for reg, off in ((sX,0),(sK,8),(sV,16),(sWQ,24),(sWO,32),(sW1,48),(sB1,56),(sW2,64),(sB2,72),(sOUT,80),(sDBG,88),(sWS,96)):
    e(f"s_load_dwordx2 {s(reg,2)}, s[0:1], {off}")
for reg, nb in ((sX,4096),(sK,0x4000000),(sV,0x4000000),(sWQ,512*4096*2),(sWO,4096*512*2),(sW1,512*1792*2),(sB1,1792*2),
                (sW2,1792*512*2),(sB2,1024),(sOUT,4096),(sDBG,256),(sWS,0x10000000)):
    e(f"s_mov_b32 {s(reg+2)}, {hex(nb)}")
    e(f"s_mov_b32 {s(reg+3)}, 0x00020000")
e(f"v_lshrrev_b32 {v(T)}, 6, v0")
e(f"v_and_b32 {v(vL)}, 63, v0")
e(f"v_readfirstlane_b32 {s(sW)}, {v(T)}")
e(f"s_and_b32 {s(sG)}, s2, 7")
e(f"s_lshr_b32 {s(sI)}, s2, 3")
e(f"s_lshr_b32 {s(sB)}, {s(sI)}, 3")
e(f"s_and_b32 {s(sS)}, {s(sI)}, 7")
e(f"s_mul_i32 {s(sLB)}, {s(sG)}, {GSZ}")
e(f"s_mov_b32 {s(sLO)}, 0")
e(f"s_mov_b32 {s(sLAYER)}, 0")
e(f"s_mov_b32 {s(sFAST)}, 0")
e(f"s_lshl_b32 {s(sTB)}, {s(sG)}, 14")
e(f"s_add_u32 {s(sTB)}, {s(sTB)}, {TAG_BASE}")
e(f"s_getreg_b32 {s(sXCC)}, hwreg(HW_REG_XCC_ID)")
e(f"s_and_b32 {s(sXCC)}, {s(sXCC)}, 15")
e(f"s_lshl_b32 {s(sSTB)}, s2, 3")
e(f"s_add_u32 {s(sSTB)}, {s(sSTB)}, {s(sW)}")
e(f"s_lshl_b32 {s(sSTB)}, {s(sSTB)}, 7")
e(f"s_add_u32 {s(sSTB)}, {s(sSTB)}, {STAMP_BASE}")
e(f"v_lshlrev_b32 {v(aL16)}, 4, {v(vL)}")
e(f"v_lshlrev_b32 {v(aL4)}, 2, {v(vL)}")
e(f"v_mov_b32 {v(aHG)}, 0")
e(f"v_mov_b32 {v(aX2P)}, 0")
e(f"v_and_b32 {v(T+1)}, 15, {v(vL)}")
e(f"v_lshrrev_b32 {v(T+2)}, 4, {v(vL)}")
for a in range(4):
    m = 0
    for l in range(64):
        if ((l & 15) >> 2) == a: m |= 1 << l
    e(f"s_mov_b32 {s(sMA[a])}, {hex(m & 0xffffffff)}")
    e(f"s_mov_b32 {s(sMA[a]+1)}, {hex(m >> 32)}")
e(f"s_and_b32 {s(sT0)}, {s(sW)}, 3")
e(f"s_lshl_b32 {s(sT0)}, {s(sT0)}, 8")
e(f"v_lshlrev_b32 {v(aX)}, 10, {v(T+1)}")
e(f"v_lshl_add_u32 {v(aX)}, {v(T+2)}, 4, {v(aX)}")
e(f"v_add_u32 {v(aX)}, {s(sT0)}, {v(aX)}")
for r in range(16):
    e(f"v_mov_b32 {v(XF+r)}, 0x3f803f80")
for r in range(4):
    e(f"v_mov_b32 {v(ACC+r)}, -1")
e(f"v_lshlrev_b32 {v(T+3)}, 4, v0")
e(f"s_mul_i32 {s(sT1)}, {s(sI)}, {PF}")
e(f"s_add_u32 {s(sT1)}, {s(sT1)}, {s(sLB)}")
e("s_waitcnt lgkmcnt(0)")
stamp(0)
e(f"v_cmp_gt_u32 vcc, {PF // 16}, v0")
e(f"s_and_saveexec_b64 {s(sEX,2)}, vcc")
e("s_cbranch_execz L_PF_SKIP")
e(f"buffer_store_dwordx4 {v(ACC,4)}, {v(T+3)}, {s(sWS,4)}, {s(sT1)} offen sc1")
lab("L_PF_SKIP")
e(f"s_mov_b64 exec, -1")

e(f"s_add_u32 {s(sT0)}, {s(sW)}, s2")
e(f"s_add_u32 {s(sT0)}, {s(sT0)}, {s(sI)}")
e(f"s_and_b32 {s(sT0)}, {s(sT0)}, 7")
e(f"s_lshr_b32 {s(sT1)}, {s(sW)}, 1")
e(f"s_add_u32 {s(sT1)}, {s(sT1)}, {s(sB)}")
e(f"s_and_b32 {s(sT1)}, {s(sT1)}, 1")
e(f"s_lshl_b32 {s(sT2)}, {s(sB)}, 3")
e(f"s_add_u32 {s(sT2)}, {s(sT2)}, {s(sG)}")
e(f"s_lshl_b32 {s(sT2)}, {s(sT2)}, 21")
e(f"s_lshl_b32 {s(sT3)}, {s(sS)}, 16")
e(f"s_add_u32 {s(sT2)}, {s(sT2)}, {s(sT3)}")
e(f"s_lshl_b32 {s(sT3)}, {s(sW)}, 13")
e(f"s_add_u32 {s(sT2)}, {s(sT2)}, {s(sT3)}")
e(f"s_add_u32 {s(sT2)}, {s(sT2)}, {6144*256}")
kA = [T+4, T+5]
e(f"v_and_b32 {v(T+6)}, 3, {v(vL)}")
e(f"v_add_u32 {v(T+6)}, {s(sT0)}, {v(T+6)}")
e(f"v_bfe_u32 {v(T+7)}, {v(vL)}, 2, 1")
e(f"v_lshrrev_b32 {v(T+8)}, 3, {v(vL)}")
e(f"v_lshlrev_b32 {v(T+8)}, 4, {v(T+8)}")
e(f"v_lshl_add_u32 {v(T+8)}, {v(T+7)}, 8, {v(T+8)}")
e(f"s_lshl_b32 {s(sT3)}, {s(sT1)}, 7")
e(f"v_add_u32 {v(T+8)}, {s(sT3)}, {v(T+8)}")
for t in range(2):
    e(f"v_add_u32 {v(T+9)}, {4*t}, {v(T+6)}")
    e(f"v_and_b32 {v(T+9)}, 7, {v(T+9)}")
    e(f"v_lshl_add_u32 {v(kA[t])}, {v(T+9)}, 10, {v(T+8)}")
e(f"v_xor_b32 {v(T+10)}, 0x80, {v(kA[0])}")
e(f"v_xor_b32 {v(T+11)}, 0x80, {v(kA[1])}")
kAh = [T+10, T+11]

def kslot(t, hf, mh): return KF + 4*(t*4 + hf*2 + mh)
def issue_k(n):
    t, hf, mh = n >> 2, (n >> 1) & 1, n & 1
    a = kA[t] if hf == 0 else kAh[t]
    e(f"buffer_load_dwordx4 {v(kslot(t,hf,mh),4)}, {v(a)}, {s(sK,4)}, {s(sT2)} offen offset:{512*mh} nt")
def issue_v(i):
    e(f"s_add_u32 {s(sT3)}, {s(sT0)}, {i}")
    e(f"s_and_b32 {s(sT3)}, {s(sT3)}, 7")
    e(f"s_lshl_b32 {s(sT3)}, {s(sT3)}, 10")
    e(f"s_add_u32 {s(sT3)}, {s(sT3)}, {s(sT2)}")
    e(f"buffer_load_dwordx4 {v(VR+4*i,4)}, {v(aL16)}, {s(sV,4)}, {s(sT3)} offen nt")

e(f"s_cmp_ge_u32 {s(sW)}, 4")
e("s_cbranch_scc1 L_PRO_B")
c("waves 0-3: x fragments + wq tile (LDS-DMA)")
e(f"s_mov_b64 exec, {s(sMA[0],2)}")
for ks in range(4):
    e(f"buffer_load_dwordx4 {v(XF+4*ks,4)}, {v(aX)}, {s(sX,4)}, 0 offen offset:{64*ks}")
e("s_mov_b64 exec, -1")
e(f"v_lshrrev_b32 {v(T+12)}, 1, {v(vL)}")
e(f"v_lshlrev_b32 {v(T+12)}, 13, {v(T+12)}")
e(f"v_and_b32 {v(T+13)}, 1, {v(vL)}")
e(f"v_lshl_add_u32 {v(T+12)}, {v(T+13)}, 4, {v(T+12)}")
e(f"s_lshl_b32 {s(sT3)}, {s(sW)}, 20")
e(f"s_lshl_b32 {s(sCNT)}, {s(sG)}, 10")
e(f"s_add_u32 {s(sT3)}, {s(sT3)}, {s(sCNT)}")
e(f"s_lshl_b32 {s(sCNT)}, {s(sI)}, 5")
e(f"s_add_u32 {s(sT3)}, {s(sT3)}, {s(sCNT)}")
e(f"s_lshl_b32 {s(sCNT)}, {s(sW)}, 12")
e(f"s_add_u32 {s(sCNT)}, {s(sCNT)}, {L_WQ}")
for n in range(4):
    e(f"s_mov_b32 m0, {s(sCNT)}")
    e(f"s_add_u32 {s(sCNT)}, {s(sCNT)}, 1024")
    e(f"buffer_load_dwordx4 {v(T+12)}, {s(sWQ,4)}, {s(sT3)} offen lds")
    e(f"s_add_u32 {s(sT3)}, {s(sT3)}, {32*8192}")
e("s_branch L_PRO_J")
lab("L_PRO_B")
c("waves 4-7: small loads; wave 5 clears its tagged slots; WG 0 wave 7 publishes the launch nonce")
e(f"v_bfe_u32 {v(T+12)}, {v(vL)}, 3, 2")
e(f"v_and_b32 {v(T+13)}, 7, {v(vL)}")
e(f"v_lshlrev_b32 {v(T+12)}, 11, {v(T+12)}")
e(f"v_lshl_add_u32 {v(T+12)}, {v(T+13)}, 3, {v(T+12)}")
e(f"s_lshl_b32 {s(sT3)}, {s(sI)}, 6")
e(f"v_add_u32 {v(T+12)}, {s(sT3)}, {v(T+12)}")
e(f"s_lshl_b32 {s(sT3)}, {s(sI)}, 3")
e(f"s_add_u32 {s(sT3)}, {s(sT3)}, 8192")
e(f"v_mov_b32 {v(T+13)}, {s(sT3)}")
e(f"v_cmp_lt_u32 vcc, 31, {v(vL)}")
nop(2)
e(f"v_cndmask_b32 {v(aHG)}, {v(T+12)}, {v(T+13)}, vcc")
e(f"s_cmp_lg_u32 {s(sW)}, 5")
e("s_cbranch_scc1 L_PRO_B1")
e(f"v_mov_b32 {v(ACC+4)}, 0")
e(f"v_mov_b32 {v(ACC+5)}, 0")
e(f"s_mov_b32 {s(sEX)}, -1")
e(f"s_mov_b32 {s(sEX+1)}, 1")
e(f"s_mov_b64 exec, {s(sEX,2)}")
e(f"buffer_store_dwordx2 {v(ACC+4,2)}, {v(aHG)}, {s(sWS,4)}, {s(sTB)} offen sc1")
e("s_mov_b64 exec, -1")
lab("L_PRO_B1")
e(f"s_cmp_lg_u32 {s(sW)}, 7")
e("s_cbranch_scc1 L_PRO_J")
e("s_cmp_lg_u32 s2, 0")
e("s_cbranch_scc1 L_PRO_J")
e(f"s_memrealtime {s(sTM,2)}")
e("s_waitcnt lgkmcnt(0)")
e(f"s_or_b32 {s(sNONCE)}, {s(sTM)}, 1")
e(f"v_mov_b32 {v(ACC+4)}, {s(sNONCE)}")
e(f"v_mov_b32 {v(ACC+5)}, 0")
e("s_mov_b64 exec, 1")
e(f"buffer_store_dword {v(ACC+4)}, {v(ACC+5)}, {s(sDBG,4)}, 0 offen sc1")
e("s_mov_b64 exec, -1")
lab("L_PRO_J")
for n in range(4):
    issue_k(n)

e(f"s_mov_b32 {s(sC)}, {f32(128**-0.5 * math.log2(math.e))}")
e(f"s_mov_b32 {s(sPLO)}, 0x05040100")
e(f"s_mov_b32 {s(sPHI)}, 0x07060302")
for r in range(16):
    e(f"v_mov_b32 {v(PB+r)}, 0")
for r in range(4):
    e(f"v_mov_b32 {v(ONE+r)}, 0x3f803f80")
n15, kg = T+1, T+2
e(f"v_and_b32 {v(T+6)}, 3, {v(vL)}")
e(f"v_lshlrev_b32 {v(aQ0)}, 8, {v(T+6)}")
e(f"v_lshl_add_u32 {v(aQ0)}, {v(kg)}, 5, {v(aQ0)}")
e(f"s_lshl_b32 {s(sT3)}, {s(sB)}, 10")
e(f"s_lshl_b32 {s(sCNT)}, {s(sT1)}, 7")
e(f"s_add_u32 {s(sT3)}, {s(sT3)}, {s(sCNT)}")
e(f"v_add_u32 {v(aQ0)}, {s(sT3)}, {v(aQ0)}")
e(f"v_xor_b32 {v(aQ1)}, 0x80, {v(aQ0)}")
e(f"s_lshl_b32 {s(sT3)}, {s(sW)}, 13")
e(f"s_lshl_b32 {s(sCNT)}, {s(sI)}, 8")
e(f"s_add_u32 {s(sT3)}, {s(sT3)}, {s(sCNT)}")
e(f"s_add_u32 {s(sT3)}, {s(sT3)}, {OB_OFF}")
e(f"v_add_u32 {v(aOST)}, {s(sT3)}, {v(aL4)}")
e(f"s_cmp_lg_u32 {s(sW)}, 4")
e("s_cbranch_scc1 L_PRO_A1")
e(f"s_lshl_b32 {s(sT3)}, {s(sI)}, 3")
e(f"s_add_u32 {s(sT3)}, {s(sT3)}, {ML_OFF}")
e(f"v_lshlrev_b32 {v(aOST)}, 8, {v(T+6)}")
e(f"v_add_u32 {v(aOST)}, {s(sT3)}, {v(aOST)}")
lab("L_PRO_A1")
e(f"v_lshrrev_b32 {v(T+7)}, 2, {v(n15)}")
e(f"v_lshlrev_b32 {v(aOG)}, 11, {v(T+7)}")
e(f"v_lshl_add_u32 {v(aOG)}, {v(T+6)}, 8, {v(aOG)}")
e(f"v_lshl_add_u32 {v(aOG)}, {v(kg)}, 4, {v(aOG)}")
e(f"s_lshl_b32 {s(sT3)}, {s(sB)}, 13")
e(f"s_lshr_b32 {s(sCNT)}, {s(sW)}, 2")
e(f"s_lshl_b32 {s(sCNT)}, {s(sCNT)}, 10")
e(f"s_add_u32 {s(sT3)}, {s(sT3)}, {s(sCNT)}")
e(f"s_and_b32 {s(sCNT)}, {s(sW)}, 3")
e(f"s_lshl_b32 {s(sCNT)}, {s(sCNT)}, 6")
e(f"s_add_u32 {s(sT3)}, {s(sT3)}, {s(sCNT)}")
e(f"s_add_u32 {s(sT3)}, {s(sT3)}, {OB_OFF}")
e(f"v_add_u32 {v(aOG)}, {s(sT3)}, {v(aOG)}")
e(f"s_lshl_b32 {s(sT3)}, {s(sB)}, 8")
e(f"s_add_u32 {s(sT3)}, {s(sT3)}, {ML_OFF}")
e(f"v_lshlrev_b32 {v(aMLG)}, 6, {v(kg)}")
e(f"v_add_u32 {v(aMLG)}, {s(sT3)}, {v(aMLG)}")
e(f"s_lshl_b32 {s(sT3)}, {s(sB)}, 13")
e(f"s_lshl_b32 {s(sCNT)}, {s(sS)}, 10")
e(f"s_add_u32 {s(sT3)}, {s(sT3)}, {s(sCNT)}")
e(f"s_lshl_b32 {s(sCNT)}, {s(sW)}, 8")
e(f"s_add_u32 {s(sT3)}, {s(sT3)}, {s(sCNT)}")
e(f"s_add_u32 {s(sT3)}, {s(sT3)}, {X1P_OFF}")
e(f"v_add_u32 {v(aR1)}, {s(sT3)}, {v(aL4)}")
e(f"s_cmp_lt_u32 {s(sW)}, 4")
e("s_cbranch_scc1 L_PRO_A2")
e(f"s_lshl_b32 {s(sT3)}, {s(sI)}, 8")
e(f"v_lshlrev_b32 {v(aR1)}, 13, {v(kg)}")
e(f"v_lshl_add_u32 {v(aR1)}, {v(n15)}, 4, {v(aR1)}")
e(f"v_add_u32 {v(aR1)}, {s(sT3)}, {v(aR1)}")
lab("L_PRO_A2")
e(f"s_mov_b32 {s(sCNT)}, {GSZ}")
e(f"v_mul_lo_u32 {v(aR2)}, {s(sCNT)}, {v(kg)}")
e(f"v_lshl_add_u32 {v(aR2)}, {v(n15)}, 4, {v(aR2)}")
e(f"s_lshl_b32 {s(sT3)}, {s(sI)}, 8")
e(f"v_add_u32 {v(aR2)}, {s(sT3)}, {v(aR2)}")
e(f"v_lshlrev_b32 {v(aXST)}, 10, {v(T+7)}")
e(f"v_lshl_add_u32 {v(aXST)}, {v(T+6)}, 3, {v(aXST)}")
e(f"v_lshrrev_b32 {v(T+8)}, 5, {v(vL)}")
e(f"v_lshl_add_u32 {v(aXST)}, {v(T+8)}, 2, {v(aXST)}")
e(f"s_lshl_b32 {s(sT3)}, {s(sI)}, 5")
e(f"v_add_u32 {v(aXST)}, {s(sT3)}, {v(aXST)}")
e(f"v_bfe_u32 {v(T+8)}, {v(vL)}, 3, 2")
e(f"v_and_b32 {v(T+9)}, 7, {v(vL)}")
e(f"v_lshlrev_b32 {v(aFST)}, 10, {v(T+8)}")
e(f"v_lshl_add_u32 {v(aFST)}, {v(T+9)}, 2, {v(aFST)}")
e(f"s_lshl_b32 {s(sT3)}, {s(sI)}, 5")
e(f"v_add_u32 {v(aFST)}, {s(sT3)}, {v(aFST)}")
e(f"s_cmp_lg_u32 {s(sW)}, 0")
e("s_cbranch_scc1 L_PRO_A3")
e(f"v_lshlrev_b32 {v(aFST)}, 9, {v(T+8)}")
e(f"v_lshl_add_u32 {v(aFST)}, {v(T+9)}, 2, {v(aFST)}")
e(f"s_lshl_b32 {s(sT3)}, {s(sI)}, 4")
e(f"v_add_u32 {v(aFST)}, {s(sT3)}, {v(aFST)}")
lab("L_PRO_A3")
e(f"s_and_b32 {s(sT3)}, {s(sW)}, 3")
e(f"s_lshl_b32 {s(sT3)}, {s(sT3)}, 10")
e(f"v_lshlrev_b32 {v(aRED)}, 6, {v(n15)}")
e(f"v_lshl_add_u32 {v(aRED)}, {v(kg)}, 4, {v(aRED)}")
e(f"v_add_u32 {v(aRED)}, {s(sT3)}, {v(aRED)}")
e(f"v_lshlrev_b32 {v(aFD)}, 6, {v(T+8)}")
e(f"v_lshl_add_u32 {v(aFD)}, {v(T+9)}, 3, {v(aFD)}")
e(f"v_lshlrev_b32 {v(aFC)}, 3, {v(T+9)}")
e(f"v_add_u32 {v(aFC)}, 256, {v(aFC)}")
e(f"v_mul_u32_u24 {v(aFG)}, 68, {v(T+8)}")
e(f"v_add_u32 {v(aFG)}, 4096, {v(aFG)}")
e(f"v_lshlrev_b32 {v(aFS)}, 6, {v(T+8)}")
e(f"v_add_u32 {v(aFS)}, {4096+16}, {v(aFS)}")
e(f"s_mul_i32 {s(sT3)}, {s(sW)}, {OSTR}")
e(f"s_add_u32 {s(sT3)}, {s(sT3)}, {L_OB}")
e(f"v_mul_u32_u24 {v(aOW)}, 272, {v(kg)}")
e(f"v_lshl_add_u32 {v(aOW)}, {v(n15)}, 4, {v(aOW)}")
e(f"v_add_u32 {v(aOW)}, {s(sT3)}, {v(aOW)}")
e(f"v_lshrrev_b32 {v(T+12)}, 5, {v(vL)}")
e(f"v_mul_u32_u24 {v(aOR)}, 1088, {v(T+12)}")
e(f"v_mul_u32_u24 {v(T+12)}, 272, {v(T+8)}")
e(f"v_add_u32 {v(aOR)}, {v(aOR)}, {v(T+12)}")
e(f"v_bfe_u32 {v(T+12)}, {v(vL)}, 1, 2")
e(f"v_lshl_add_u32 {v(aOR)}, {v(T+12)}, 6, {v(aOR)}")
e(f"v_and_b32 {v(T+12)}, 1, {v(vL)}")
e(f"v_lshl_add_u32 {v(aOR)}, {v(T+12)}, 3, {v(aOR)}")
e(f"s_and_b32 {s(sT3)}, {s(sW)}, 3")
e(f"s_lshl_b32 {s(sT3)}, {s(sT3)}, 4")
e(f"s_add_u32 {s(sT3)}, {s(sT3)}, {L_OB}")
e(f"v_add_u32 {v(aOR)}, {s(sT3)}, {v(aOR)}")
e(f"v_lshlrev_b32 {v(aMX)}, 5, {v(T+6)}")
e(f"v_add_u32 {v(aMX)}, {L_MX}, {v(aMX)}")
e(f"s_lshl_b32 {s(sT3)}, {s(sW)}, 2")
e(f"v_add_u32 {v(aMXW)}, {s(sT3)}, {v(aMX)}")

e(f"s_cmp_ge_u32 {s(sW)}, 4")
e("s_cbranch_scc1 L_P1_B")
e(f"v_lshlrev_b32 {v(T+12)}, 3, {v(kg)}")
e(f"v_add_u32 {v(T+12)}, {v(T+12)}, {v(T+7)}")
e(f"v_lshlrev_b32 {v(T+12)}, 5, {v(T+12)}")
e(f"v_lshl_add_u32 {v(T+12)}, {v(T+6)}, 3, {v(T+12)}")
e(f"s_lshl_b32 {s(sT3)}, {s(sW)}, 12")
e(f"v_add_u32 {v(T+13)}, {s(sT3)}, {v(T+12)}")
e("s_waitcnt vmcnt(4)")
stamp(1)
for ks in range(4):
    e(f"ds_read_b64_tr_b16 {v(WA+4*ks,2)}, {v(T+13)} offset:{L_WQ + 1024*ks}")
    e(f"ds_read_b64_tr_b16 {v(WA+4*ks+2,2)}, {v(T+13)} offset:{L_WQ + 1024*ks + 128}")
e("s_waitcnt lgkmcnt(0)")
ln_gemv_mma(L_RED1)
e("s_branch L_P1_J")
lab("L_P1_B")
e(f"s_cmp_lg_u32 {s(sW)}, 5")
e("s_cbranch_scc1 L_P1_B2")
c("wave 5: fetch the launch nonce")
e(f"s_mov_b32 {s(sCNT)}, 0")
e(f"v_mov_b32 {v(T+13)}, 0")
lab("L_NONCE")
e(f"buffer_load_dword {v(T+12)}, {v(T+13)}, {s(sDBG,4)}, 0 offen sc1")
e("s_waitcnt vmcnt(0)")
e(f"v_readfirstlane_b32 {s(sNONCE)}, {v(T+12)}")
e(f"s_add_u32 {s(sCNT)}, {s(sCNT)}, 1")
e(f"s_cmp_ge_u32 {s(sCNT)}, {SPIN_MAX}")
e("s_cbranch_scc1 L_P1_B2")
e(f"s_cmp_eq_u32 {s(sNONCE)}, 0")
e("s_cbranch_scc1 L_NONCE")
lab("L_P1_B2")
e("s_waitcnt vmcnt(4)")
lab("L_P1_J")
for n in range(4, 8):
    e(f"s_waitcnt vmcnt({D-1})")
    issue_k(n)
e("s_barrier")
stamp(2)
e(f"s_cmp_lg_u32 {s(sW)}, 5")
e("s_cbranch_scc1 L_P1_DONE")
ln_gemv_final(L_RED1, False)
e(f"v_cvt_pk_bf16_f32 {v(T+12)}, {v(T)}, {v(T+1)}")
e(f"v_mov_b32 {v(T+13)}, {s(sXCC)}")
e(f"v_cmp_lt_u32 vcc, 31, {v(vL)}")
nop(2)
e(f"v_cndmask_b32 {v(T+12)}, {v(T+12)}, {v(T+13)}, vcc")
e(f"v_mov_b32 {v(T+13)}, {s(sNONCE)}")
e(f"s_mov_b32 {s(sEX)}, -1")
e(f"s_mov_b32 {s(sEX+1)}, 1")
e(f"s_mov_b64 exec, {s(sEX,2)}")
e(f"buffer_store_dwordx2 {v(T+12,2)}, {v(aHG)}, {s(sWS,4)}, {s(sTB)} offen sc1")
e("s_mov_b64 exec, -1")
e(f"v_and_b32 {v(T+1)}, 15, {v(vL)}")
lab("L_P1_DONE")
stamp(3)
for i in range(8):
    e(f"s_waitcnt vmcnt({D-1})")
    issue_v(i)
e(f"s_waitcnt vmcnt({min(D,8)})")
for t in range(2):
    for hf in range(2):
        X = kslot(t, hf, 0); Y = kslot(t, hf, 1)
        for r in range(4):
            e(f"v_mov_b32 {v(T+4+r)}, {v(X+r)}")
        for r in range(4):
            e(f"v_mov_b32_dpp {v(X+r)}, {v(Y+r)} row_ror:8 row_mask:0xf bank_mask:0xc")
        for r in range(4):
            e(f"v_mov_b32_dpp {v(Y+r)}, {v(T+4+r)} row_ror:8 row_mask:0xf bank_mask:0x3")
e(f"v_lshlrev_b32 {v(T+4)}, 1, {v(aQ0)}")
e(f"v_lshlrev_b32 {v(T+5)}, 1, {v(aQ1)}")
e(f"v_and_b32 {v(T+6)}, 31, {v(vL)}")
e(f"v_lshlrev_b32 {v(T+6)}, 3, {v(T+6)}")
e(f"v_add_u32 {v(T+6)}, 8192, {v(T+6)}")
e(f"v_mov_b32 {v(T+7)}, 0")
e(f"s_mov_b32 {s(sCNT)}, 0")
QT = VT
lab("L_QT")
for hf in range(2):
    for k in range(4):
        e(f"buffer_load_dwordx4 {v(QT+16*hf+4*k,4)}, {v(T+4+hf)}, {s(sWS,4)}, {s(sTB)} offen offset:{16*k} sc1")
e(f"buffer_load_dwordx2 {v(T+8,2)}, {v(T+6)}, {s(sWS,4)}, {s(sTB)} offen sc1")
e(f"buffer_load_dword {v(T+10)}, {v(T+7)}, {s(sDBG,4)}, 0 offen sc1")
e("s_waitcnt vmcnt(0)")
e(f"v_readfirstlane_b32 {s(sNONCE)}, {v(T+10)}")
e(f"v_xor_b32 {v(T+11)}, {v(T+10)}, {v(T+9)}")
for k in range(0, 16, 2):
    e(f"v_xor_b32 {v(T+12)}, {v(T+10)}, {v(QT+2*k+1)}")
    e(f"v_xor_b32 {v(T+13)}, {v(T+10)}, {v(QT+2*k+3)}")
    e(f"v_or3_b32 {v(T+11)}, {v(T+11)}, {v(T+12)}, {v(T+13)}")
e(f"v_cmp_ne_u32 vcc, 0, {v(T+11)}")
e(f"s_add_u32 {s(sCNT)}, {s(sCNT)}, 1")
e(f"s_cmp_ge_u32 {s(sCNT)}, {SPIN_MAX}")
e("s_cbranch_scc1 L_QT_DONE")
e("s_cbranch_vccnz L_QT")
e(f"s_cmp_eq_u32 {s(sNONCE)}, 0")
e("s_cbranch_scc1 L_QT")
lab("L_QT_DONE")
stamp(4)
for k in range(16):
    e(f"v_mov_b32 {v(QF+k)}, {v(QT+2*k)}")
e(f"v_cmp_ne_u32 vcc, {s(sXCC)}, {v(T+8)}")
e(f"s_cmp_eq_u64 vcc, 0")
e(f"s_cselect_b32 {s(sFAST)}, 1, 0")
e(f"s_cmp_lg_u32 {s(sI)}, 0")
e("s_cbranch_scc1 L_NOLEAD")
e(f"s_cmp_lg_u32 {s(sW)}, 6")
e("s_cbranch_scc1 L_NOLEAD")
e(f"s_lshl_b32 {s(sT3)}, {s(sG)}, 2")
e(f"v_mov_b32 {v(T+12)}, 1")
e(f"v_mov_b32 {v(T+13)}, {s(sT3)}")
e("s_mov_b64 exec, 1")
e(f"buffer_store_dword {v(T+12)}, {v(T+13)}, {s(sDBG,4)}, 0 offen offset:128 sc1")
e("s_mov_b64 exec, -1")
lab("L_NOLEAD")
for p in range(4):
    for cc in range(4):
        a = VR + 4*(2*p) + cc; b = VR + 4*(2*p+1) + cc
        e(f"v_perm_b32 {v(VT+4*(2*cc)+p)}, {v(b)}, {v(a)}, {s(sPLO)}")
        e(f"v_perm_b32 {v(VT+4*(2*cc+1)+p)}, {v(b)}, {v(a)}, {s(sPHI)}")
e(f"v_lshrrev_b32 {v(T+4)}, 3, {v(vL)}")
e(f"v_lshlrev_b32 {v(T+4)}, 10, {v(T+4)}")
e(f"v_and_b32 {v(T+5)}, 7, {v(vL)}")
e(f"v_lshl_add_u32 {v(T+4)}, {v(T+5)}, 4, {v(T+4)}")
e(f"s_lshl_b32 {s(sT3)}, {s(sG)}, 2")
e(f"s_add_u32 {s(sT3)}, {s(sT3)}, {s(sB)}")
e(f"s_lshl_b32 {s(sT3)}, {s(sT3)}, 17")
e(f"s_lshl_b32 {s(sCNT)}, {s(sW)}, 14")
e(f"s_add_u32 {s(sT3)}, {s(sT3)}, {s(sCNT)}")
e(f"s_lshl_b32 {s(sCNT)}, {s(sS)}, 7")
e(f"s_add_u32 {s(sT3)}, {s(sT3)}, {s(sCNT)}")
e(f"s_lshl_b32 {s(sCNT)}, {s(sW)}, 11")
e(f"s_add_u32 {s(sCNT)}, {s(sCNT)}, {L_WO}")
for n in range(2):
    e(f"s_mov_b32 m0, {s(sCNT)}")
    e(f"s_add_u32 {s(sCNT)}, {s(sCNT)}, 1024")
    e(f"buffer_load_dwordx4 {v(T+4)}, {s(sWO,4)}, {s(sT3)} offen nt lds")
    e(f"s_add_u32 {s(sT3)}, {s(sT3)}, 8192")
e(f"s_cmp_eq_u32 {s(sW)}, 7")
e("s_cbranch_scc1 L_NOW2")
e(f"v_lshrrev_b32 {v(T+4)}, 1, {v(vL)}")
e(f"v_lshlrev_b32 {v(T+4)}, 10, {v(T+4)}")
e(f"v_and_b32 {v(T+5)}, 1, {v(vL)}")
e(f"v_lshl_add_u32 {v(T+4)}, {v(T+5)}, 4, {v(T+4)}")
e(f"s_mul_i32 {s(sT3)}, {s(sG)}, {224*1024}")
e(f"s_lshl_b32 {s(sCNT)}, {s(sW)}, 15")
e(f"s_add_u32 {s(sT3)}, {s(sT3)}, {s(sCNT)}")
e(f"s_lshl_b32 {s(sCNT)}, {s(sI)}, 5")
e(f"s_add_u32 {s(sT3)}, {s(sT3)}, {s(sCNT)}")
e(f"s_lshl_b32 {s(sCNT)}, {s(sW)}, 10")
e(f"s_add_u32 {s(sCNT)}, {s(sCNT)}, {L_W2}")
e(f"s_mov_b32 m0, {s(sCNT)}")
nop(1)
e(f"buffer_load_dwordx4 {v(T+4)}, {s(sW2,4)}, {s(sT3)} offen lds")
lab("L_NOW2")
e(f"s_cmp_lt_u32 {s(sW)}, 4")
e("s_cbranch_scc1 L_NOW1")
e(f"v_mul_u32_u24 {v(T+4)}, 3584, {v(vL)}")
e(f"s_sub_u32 {s(sCNT)}, {s(sW)}, 4")
e(f"s_mul_i32 {s(sT3)}, {s(sCNT)}, {128*3584}")
e(f"s_mul_i32 {s(sT0)}, {s(sG)}, 448")
e(f"s_add_u32 {s(sT3)}, {s(sT3)}, {s(sT0)}")
e(f"s_min_u32 {s(sT0)}, {s(sI)}, 27")
e(f"s_lshl_b32 {s(sT0)}, {s(sT0)}, 4")
e(f"s_add_u32 {s(sT3)}, {s(sT3)}, {s(sT0)}")
e(f"s_lshl_b32 {s(sCNT)}, {s(sCNT)}, 11")
e(f"s_add_u32 {s(sCNT)}, {s(sCNT)}, {L_W1}")
for n in range(2):
    e(f"s_mov_b32 m0, {s(sCNT)}")
    e(f"s_add_u32 {s(sCNT)}, {s(sCNT)}, 1024")
    e(f"buffer_load_dwordx4 {v(T+4)}, {s(sW1,4)}, {s(sT3)} offen lds")
    e(f"s_add_u32 {s(sT3)}, {s(sT3)}, {64*3584}")
e(f"buffer_load_dword {v(RES)}, {v(aXST)}, {s(sX,4)}, 0 offen")
e(f"v_and_b32 {v(T+4)}, 0x3ff, {v(aXST)}")
e(f"buffer_load_dword {v(BIA)}, {v(T+4)}, {s(sB2,4)}, 0 offen")
e("s_branch L_LOOP")
lab("L_NOW1")
e(f"s_mul_i32 {s(sT3)}, {s(sG)}, 448")
e(f"s_min_u32 {s(sT0)}, {s(sI)}, 27")
e(f"s_lshl_b32 {s(sT0)}, {s(sT0)}, 4")
e(f"s_add_u32 {s(sT3)}, {s(sT3)}, {s(sT0)}")
e(f"v_and_b32 {v(T+4)}, 3, {v(vL)}")
e(f"v_lshlrev_b32 {v(T+4)}, 2, {v(T+4)}")
e(f"buffer_load_dword {v(BIA)}, {v(T+4)}, {s(sB1,4)}, {s(sT3)} offen")

lab("L_LOOP")
c("---------------- P2: attention over this wave's 32 keys")
ST = ACC
for sl in range(4):
    for t in range(2):
        mfma(ST+4*t, KF + 4*(t*4+sl), QF + 4*sl, None if sl == 0 else ST+4*t)
nop(8)
e(f"v_max3_f32 {v(T)}, {v(ST)}, {v(ST+1)}, {v(ST+2)}")
e(f"v_max3_f32 {v(T+1)}, {v(ST+3)}, {v(ST+4)}, {v(ST+5)}")
e(f"v_max3_f32 {v(T)}, {v(T)}, {v(ST+6)}, {v(ST+7)}")
e(f"v_max_f32 {v(T)}, {v(T)}, {v(T+1)}")
e(f"v_mov_b32 {v(T+1)}, {v(T)}")
nop(2)
e(f"v_permlane16_swap_b32 {v(T)}, {v(T+1)}")
nop(1)
e(f"v_max_f32 {v(T)}, {v(T)}, {v(T+1)}")
e(f"v_mov_b32 {v(T+1)}, {v(T)}")
nop(2)
e(f"v_permlane32_swap_b32 {v(T)}, {v(T+1)}")
nop(1)
e(f"v_max_f32 {v(T)}, {v(T)}, {v(T+1)}")
e(f"v_mul_f32 {v(vMW)}, {s(sC)}, {v(T)}")
e(f"ds_write_b32 {v(aMXW)}, {v(vMW)}")
for r in range(8):
    e(f"v_fma_f32 {v(ST+r)}, {v(ST+r)}, {s(sC)}, -{v(vMW)}")
for r in range(8):
    e(f"v_exp_f32 {v(ST+r)}, {v(ST+r)}")
nop(1)
for a in range(4):
    e(f"s_mov_b64 exec, {s(sMA[a],2)}")
    for j in range(4):
        e(f"v_cvt_pk_bf16_f32 {v(PB+4*a+j)}, {v(ST+2*j)}, {v(ST+2*j+1)}")
e("s_mov_b64 exec, -1")
nop(2)
OT = ACC + 8
LT = ACC
for a in range(4):
    for u in range(2):
        mfma(OT+4*u, VT + 4*(4*u+a), PB + 4*a, None if a == 0 else OT+4*u)
mfma(LT, ONE, PB, None)
e("s_waitcnt lgkmcnt(0)")
e("s_barrier")
e(f"ds_read_b128 {v(T,4)}, {v(aMX)}")
e(f"ds_read_b128 {v(T+4,4)}, {v(aMX)} offset:16")
e("s_waitcnt lgkmcnt(0)")
e(f"v_max3_f32 {v(T)}, {v(T)}, {v(T+1)}, {v(T+2)}")
e(f"v_max3_f32 {v(T+3)}, {v(T+3)}, {v(T+4)}, {v(T+5)}")
e(f"v_max3_f32 {v(T)}, {v(T)}, {v(T+6)}, {v(T+7)}")
e(f"v_max_f32 {v(T+8)}, {v(T)}, {v(T+3)}")
e(f"v_sub_f32 {v(T)}, {v(vMW)}, {v(T+8)}")
e(f"v_exp_f32 {v(T)}, {v(T)}")
nop(4)
for r in range(8):
    e(f"v_mul_f32 {v(OT+r)}, {v(OT+r)}, {v(T)}")
e(f"v_mul_f32 {v(LT)}, {v(LT)}, {v(T)}")
e(f"ds_write_b128 {v(aOW)}, {v(OT,4)}")
e(f"ds_write_b128 {v(aOW)}, {v(OT+4,4)} offset:1088")
e("s_mov_b64 exec, 15")
e(f"ds_write_b32 {v(aMXW)}, {v(LT)} offset:128")
e("s_mov_b64 exec, -1")
e("s_waitcnt vmcnt(0) lgkmcnt(0)")
e("s_barrier")
stamp(5)
e(f"s_cmp_ge_u32 {s(sW)}, 4")
e("s_cbranch_scc1 L_P2_B")
for k in range(4):
    e(f"ds_read2st64_b64 {v(VR+4*k,4)}, {v(aOR)} offset0:{10*k} offset1:{10*k+5}")
e("s_waitcnt lgkmcnt(0)")
for k in range(4):
    e(f"v_pk_add_f32 {v(VR+4*k,2)}, {v(VR+4*k,2)}, {v(VR+4*k+2,2)}")
e(f"v_pk_add_f32 {v(VR,2)}, {v(VR,2)}, {v(VR+4,2)}")
e(f"v_pk_add_f32 {v(VR+8,2)}, {v(VR+8,2)}, {v(VR+12,2)}")
e(f"v_pk_add_f32 {v(VR,2)}, {v(VR,2)}, {v(VR+8,2)}")
e(f"v_cvt_pk_bf16_f32 {v(T)}, {v(VR)}, {v(VR+1)}")
e(f"v_min_u32 {v(T)}, -2, {v(T)}")
store_intra("buffer_store_dword", v(T), aOST, sLB, 0)
e(f"s_cmp_lg_u32 {s(sLAYER)}, 0")
e("s_cbranch_scc1 L_P3")
e(f"v_lshrrev_b32 {v(T+4)}, 5, {v(vL)}")
e(f"v_lshlrev_b32 {v(T+4)}, 12, {v(T+4)}")
e(f"v_bfe_u32 {v(T+5)}, {v(vL)}, 4, 1")
e(f"v_lshl_add_u32 {v(T+4)}, {v(T+5)}, 8, {v(T+4)}")
e(f"v_bfe_u32 {v(T+5)}, {v(vL)}, 2, 2")
e(f"v_lshl_add_u32 {v(T+4)}, {v(T+5)}, 10, {v(T+4)}")
e(f"v_and_b32 {v(T+5)}, 3, {v(vL)}")
e(f"v_lshl_add_u32 {v(T+4)}, {v(T+5)}, 3, {v(T+4)}")
e(f"s_lshl_b32 {s(sT3)}, {s(sW)}, 5")
e(f"v_add_u32 {v(T+4)}, {s(sT3)}, {v(T+4)}")
for ks in range(4):
    o = L_WO + (64*(ks & 1) + 4*(ks >> 1)) * 128
    e(f"ds_read_b64_tr_b16 {v(WB+4*ks,2)}, {v(T+4)} offset:{o}")
    e(f"ds_read_b64_tr_b16 {v(WB+4*ks+2,2)}, {v(T+4)} offset:{o+128}")
e(f"v_and_b32 {v(BIA+1)}, 0xffff0000, {v(BIA)}")
e(f"v_lshlrev_b32 {v(BIA)}, 16, {v(BIA)}")
e("s_branch L_P3")
lab("L_P2_B")
e(f"s_cmp_lg_u32 {s(sW)}, 4")
e("s_cbranch_scc1 L_P2_B2")
e(f"ds_read_b128 {v(T,4)}, {v(aMX)} offset:128")
e(f"ds_read_b128 {v(T+4,4)}, {v(aMX)} offset:144")
e("s_waitcnt lgkmcnt(0)")
e(f"v_pk_add_f32 {v(T,2)}, {v(T,2)}, {v(T+2,2)}")
e(f"v_pk_add_f32 {v(T+4,2)}, {v(T+4,2)}, {v(T+6,2)}")
e(f"v_pk_add_f32 {v(T,2)}, {v(T,2)}, {v(T+4,2)}")
e(f"v_add_f32 {v(T+9)}, {v(T)}, {v(T+1)}")
e("s_mov_b64 exec, 15")
store_intra("buffer_store_dwordx2", v(T+8,2), aOST, sLB, 0)
e("s_mov_b64 exec, -1")
lab("L_P2_B2")
e(f"s_cmp_lg_u32 {s(sLAYER)}, 0")
e("s_cbranch_scc1 L_P3")
e(f"v_lshrrev_b32 {v(T+4)}, 4, {v(vL)}")
e(f"v_lshlrev_b32 {v(T+4)}, 3, {v(T+4)}")
e(f"v_bfe_u32 {v(T+5)}, {v(vL)}, 2, 2")
e(f"v_add_u32 {v(T+4)}, {v(T+4)}, {v(T+5)}")
e(f"v_lshlrev_b32 {v(T+4)}, 4, {v(T+4)}")
e(f"v_and_b32 {v(T+5)}, 3, {v(vL)}")
e(f"v_lshl_add_u32 {v(T+4)}, {v(T+5)}, 3, {v(T+4)}")
e(f"s_sub_u32 {s(sT3)}, {s(sW)}, 4")
e(f"s_lshl_b32 {s(sT3)}, {s(sT3)}, 11")
e(f"v_add_u32 {v(T+4)}, {s(sT3)}, {v(T+4)}")
for ks in range(4):
    e(f"ds_read_b64_tr_b16 {v(WA+4*ks,2)}, {v(T+4)} offset:{L_W1 + 512*ks}")
    e(f"ds_read_b64_tr_b16 {v(WA+4*ks+2,2)}, {v(T+4)} offset:{L_W1 + 512*ks + 64}")
e(f"v_and_b32 {v(RES+1)}, 0xffff0000, {v(RES)}")
e(f"v_lshlrev_b32 {v(RES)}, 16, {v(RES)}")
e(f"v_and_b32 {v(BIA+1)}, 0xffff0000, {v(BIA)}")
e(f"v_lshlrev_b32 {v(BIA)}, 16, {v(BIA)}")
e(f"v_lshrrev_b32 {v(T+4)}, 4, {v(vL)}")
e(f"v_lshlrev_b32 {v(T+4)}, 3, {v(T+4)}")
e(f"v_bfe_u32 {v(T+5)}, {v(vL)}, 2, 2")
e(f"v_add_u32 {v(T+4)}, {v(T+4)}, {v(T+5)}")
e(f"v_lshlrev_b32 {v(T+4)}, 5, {v(T+4)}")
e(f"v_and_b32 {v(T+5)}, 3, {v(vL)}")
e(f"v_lshl_add_u32 {v(T+4)}, {v(T+5)}, 3, {v(T+4)}")
for ks in range(7):
    e(f"ds_read_b64_tr_b16 {v(WC+4*ks,2)}, {v(T+4)} offset:{L_W2 + 1024*ks}")
    e(f"ds_read_b64_tr_b16 {v(WC+4*ks+2,2)}, {v(T+4)} offset:{L_W2 + 1024*ks + 128}")
e(f"v_and_b32 {v(T+4)}, 15, {v(vL)}")
e(f"v_lshrrev_b32 {v(T+5)}, 4, {v(vL)}")
e(f"v_lshlrev_b32 {v(aHG)}, 9, {v(T+4)}")
e(f"v_lshl_add_u32 {v(aHG)}, {v(T+5)}, 4, {v(aHG)}")
e(f"v_lshlrev_b32 {v(aX2P)}, 6, {v(T+4)}")
e(f"v_lshl_add_u32 {v(aX2P)}, {v(T+5)}, 4, {v(aX2P)}")
e(f"s_lshl_b32 {s(sT3)}, {s(sI)}, 8")
e(f"s_add_u32 {s(sT3)}, {s(sT3)}, {X2P_OFF}")
e(f"v_add_u32 {v(aX2P)}, {s(sT3)}, {v(aX2P)}")

lab("L_P3")
c("---------------- P3: split-softmax combine folded into o @ wo")
stamp(6)
def issue_og():
    e(f"buffer_load_dwordx4 {v(T,4)}, {v(aOG)}, {s(sWS,4)}, {s(sLB)} offen sc1")
poll(issue_og, range(T, T+4), T+4)
e(f"s_lshl_b32 {s(sT3)}, {s(sW)}, 10")
e(f"v_add_u32 {v(T+4)}, {s(sT3)}, {v(aL16)}")
e(f"ds_write_b128 {v(T+4)}, {v(T,4)} offset:{L_AF}")
e(f"s_cmp_ge_u32 {s(sW)}, 4")
e("s_cbranch_scc1 L_P3_B")
MLR = QF
def issue_ml():
    for k in range(4):
        e(f"buffer_load_dwordx4 {v(MLR+4*k,4)}, {v(aMLG)}, {s(sWS,4)}, {s(sLB)} offen offset:{16*k} sc1")
poll(issue_ml, range(MLR, MLR+16), T+4)
e("s_waitcnt lgkmcnt(0)")
e("s_barrier")
for k in range(8):
    e(f"ds_read_b128 {v(VR+4*k,4)}, {v(aL16)} offset:{L_AF + 1024*k}")
e(f"v_max3_f32 {v(T)}, {v(MLR)}, {v(MLR+2)}, {v(MLR+4)}")
e(f"v_max3_f32 {v(T+1)}, {v(MLR+6)}, {v(MLR+8)}, {v(MLR+10)}")
e(f"v_max3_f32 {v(T)}, {v(T)}, {v(MLR+12)}, {v(MLR+14)}")
e(f"v_max_f32 {v(T)}, {v(T)}, {v(T+1)}")
for k in range(8):
    e(f"v_sub_f32 {v(MLR+2*k)}, {v(MLR+2*k)}, {v(T)}")
for k in range(8):
    e(f"v_exp_f32 {v(MLR+2*k)}, {v(MLR+2*k)}")
e("s_waitcnt lgkmcnt(0)")
for ks in range(4):
    for sh in range(2):
        mfma(ACC+4*sh, VR + 4*(sh*4+ks), WB + 4*ks, None if ks == 0 else ACC+4*sh)
e(f"v_mul_f32 {v(T)}, {v(MLR)}, {v(MLR+1)}")
for k in range(1, 8):
    e(f"v_fmac_f32 {v(T)}, {v(MLR+2*k)}, {v(MLR+2*k+1)}")
e(f"v_rcp_f32 {v(T)}, {v(T)}")
nop(4)
e(f"v_mul_f32 {v(T+1)}, {v(MLR)}, {v(ACC)}")
for k in range(1, 8):
    e(f"v_fmac_f32 {v(T+1)}, {v(MLR+2*k)}, {v(ACC+k)}")
e(f"v_mul_f32 {v(T+1)}, {v(T+1)}, {v(T)}")
e(f"buffer_store_dword {v(T+1)}, {v(aR1)}, {s(sWS,4)}, {s(sLB)} offen sc1")
stamp(7)
e("s_branch L_BAR5")
lab("L_P3_B")
e("s_waitcnt lgkmcnt(0)")
e("s_barrier")
e(f"s_cmp_lg_u32 {s(sW)}, 4")
e("s_cbranch_scc1 L_P5")
c("---------------- P4 (wave 4): x1 slice = x + sum over 32 heads")
e(f"s_cmp_lg_u32 {s(sLAYER)}, 0")
e("s_cbranch_scc1 L_P4_GO")
e(f"v_and_b32 {v(T+4)}, 7, {v(vL)}")
e(f"v_lshlrev_b32 {v(T+4)}, 2, {v(T+4)}")
e(f"s_mov_b32 {s(sCNT)}, 0")
lab("L_GFLAG")
e(f"buffer_load_dword {v(T+5)}, {v(T+4)}, {s(sDBG,4)}, 0 offen offset:128 sc1")
e("s_waitcnt vmcnt(0)")
e(f"v_cmp_eq_u32 vcc, 0, {v(T+5)}")
e("s_cbranch_vccz L_P4_GO")
e(f"s_add_u32 {s(sCNT)}, {s(sCNT)}, 1")
e(f"s_cmp_lt_u32 {s(sCNT)}, {SPIN_MAX}")
e("s_cbranch_scc1 L_GFLAG")
lab("L_P4_GO")
reduce_slice(8, aR1, X1P_OFF, GSZ, False)
e(f"s_mov_b32 {s(sEX)}, 0xffff")
e(f"s_mov_b32 {s(sEX+1)}, 0xffff")
e(f"s_mov_b64 exec, {s(sEX,2)}")
e(f"s_add_u32 {s(sT0)}, {s(sLB)}, {X1_OFF}")
store_intra("buffer_store_dword", v(T), aXST, sT0, 0)
e("s_mov_b64 exec, -1")
stamp(8)
lab("L_P5")
c("---------------- P5 (waves 4-7): LN(LN(x1)) @ w1 partials")
e(f"s_add_u32 {s(sT0)}, {s(sLB)}, {X1_OFF}")
def issue_x():
    e(f"s_mov_b64 exec, {s(sMA[0],2)}")
    for ks in range(4):
        e(f"buffer_load_dwordx4 {v(XF+4*ks,4)}, {v(aX)}, {s(sWS,4)}, {s(sT0)} offen offset:{64*ks} sc1")
    e("s_mov_b64 exec, -1")
poll(issue_x, range(XF, XF+16), T)
ln_gemv_mma(L_RED5)
lab("L_BAR5")
e("s_barrier")
stamp(9)
e(f"s_cmp_eq_u32 {s(sW)}, 0")
e("s_cbranch_scc1 L_P5F")
e(f"s_cmp_eq_u32 {s(sW)}, 6")
e("s_cbranch_scc1 L_P6")
e(f"s_cmp_eq_u32 {s(sW)}, 4")
e("s_cbranch_scc1 L_P7")
e("s_branch L_NEXT")
lab("L_P5F")
c("---------------- P5 final (wave 0): h = gelu(. + b1)")
ln_gemv_final(L_RED5, True)
K0 = -2.0 * math.log2(math.e) * math.sqrt(2.0 / math.pi)
for r in range(2):
    e(f"v_add_f32 {v(T+r)}, {v(T+r)}, {v(BIA+r)}")
for r in range(2):
    e(f"v_mul_f32 {v(T+2+r)}, {v(T+r)}, {v(T+r)}")
for r in range(2):
    e(f"v_mov_b32 {v(T+4+r)}, {f32(K0)}")
    e(f"v_fmac_f32 {v(T+4+r)}, {f32(K0*0.044715)}, {v(T+2+r)}")
for r in range(2):
    e(f"v_mul_f32 {v(T+4+r)}, {v(T+4+r)}, {v(T+r)}")
for r in range(2):
    e(f"v_exp_f32 {v(T+4+r)}, {v(T+4+r)}")
nop(1)
for r in range(2):
    e(f"v_add_f32 {v(T+4+r)}, 1.0, {v(T+4+r)}")
for r in range(2):
    e(f"v_rcp_f32 {v(T+4+r)}, {v(T+4+r)}")
nop(1)
for r in range(2):
    e(f"v_mul_f32 {v(T+r)}, {v(T+r)}, {v(T+4+r)}")
e(f"v_cvt_pk_bf16_f32 {v(T)}, {v(T)}, {v(T+1)}")
e(f"v_min_u32 {v(T)}, -2, {v(T)}")
e(f"s_cmp_ge_u32 {s(sI)}, 28")
e("s_cbranch_scc1 L_NEXT")
e(f"s_mov_b32 {s(sEX)}, 0x0f0f0f0f")
e(f"s_mov_b32 {s(sEX+1)}, 0")
e(f"s_mov_b64 exec, {s(sEX,2)}")
e(f"s_add_u32 {s(sT0)}, {s(sLB)}, {HB_OFF}")
store_intra("buffer_store_dword", v(T), aFST, sT0, 0)
e("s_mov_b64 exec, -1")
stamp(10)
e("s_branch L_NEXT")
lab("L_P6")
c("---------------- P6 (wave 6): h[224 of this group] @ w2 -> partial x2 slice")
e(f"s_add_u32 {s(sT0)}, {s(sLB)}, {HB_OFF}")
for r in range(28):
    e(f"v_mov_b32 {v(VR+r)}, 0")
def issue_h():
    e(f"s_mov_b64 exec, {s(sMA[0],2)}")
    for ks in range(7):
        e(f"buffer_load_dwordx4 {v(VR+4*ks,4)}, {v(aHG)}, {s(sWS,4)}, {s(sT0)} offen offset:{64*ks} sc1")
    e("s_mov_b64 exec, -1")
poll(issue_h, range(VR, VR+28), T)
for ks in range(7):
    mfma(ACC, WC + 4*ks, VR + 4*ks, None if ks == 0 else ACC)
nop(8)
e(f"s_mov_b64 exec, {s(sMA[0],2)}")
e(f"buffer_store_dwordx4 {v(ACC,4)}, {v(aX2P)}, {s(sWS,4)}, {s(sLB)} offen sc1")
e("s_mov_b64 exec, -1")
stamp(11)
e("s_branch L_NEXT")
lab("L_P7")
c("---------------- P7 (wave 4): x2 slice = x1 + b2 + sum over 8 groups")
reduce_slice(2, aR2, X2P_OFF, 4*GSZ, True)
e(f"s_mov_b32 {s(sEX)}, 0xffff")
e(f"s_mov_b32 {s(sEX+1)}, 0xffff")
e(f"s_mov_b64 exec, {s(sEX,2)}")
e(f"s_cmp_eq_u32 {s(sLAYER)}, 0")
e("s_cbranch_scc1 L_P7_MID")
e(f"s_cmp_lg_u32 {s(sS)}, {s(sG)}")
e("s_cbranch_scc1 L_END")
e(f"buffer_store_dword {v(T)}, {v(aXST)}, {s(sOUT,4)}, 0 offen")
stamp(12)
e("s_branch L_END")
lab("L_P7_MID")
e(f"s_add_u32 {s(sT0)}, {s(sLB)}, {X2_OFF}")
store_intra("buffer_store_dword", v(T), aXST, sT0, 0)
e("s_mov_b64 exec, -1")
stamp(12)
lab("L_NEXT")
e(f"s_cmp_lg_u32 {s(sLAYER)}, 0")
e("s_cbranch_scc1 L_END")
e(f"s_cmp_ge_u32 {s(sW)}, 4")
e("s_cbranch_scc1 L_BAR1")
c("---------------- P1 (waves 0-3): LN(x2) @ wq partials")
e(f"s_add_u32 {s(sT0)}, {s(sLB)}, {X2_OFF}")
poll(issue_x, range(XF, XF+16), T)
ln_gemv_mma(L_RED1)
lab("L_BAR1")
e(f"s_mov_b32 {s(sLAYER)}, 1")
e(f"s_add_u32 {s(sLB)}, {s(sLB)}, {LSZ}")
e(f"s_mov_b32 {s(sLO)}, {LSZ}")
if OPT["stamps"]:
    e(f"s_add_u32 {s(sSTB)}, {s(sSTB)}, 64")
e("s_barrier")
stamp(2)
e(f"s_cmp_lg_u32 {s(sW)}, 5")
e("s_cbranch_scc1 L_QPOLL")
ln_gemv_final(L_RED1, False)
e(f"v_cvt_pk_bf16_f32 {v(T)}, {v(T)}, {v(T+1)}")
e(f"v_min_u32 {v(T)}, -2, {v(T)}")
e(f"s_mov_b32 {s(sEX)}, -1")
e(f"s_mov_b32 {s(sEX+1)}, 0")
e(f"s_mov_b64 exec, {s(sEX,2)}")
store_intra("buffer_store_dword", v(T), aFST, sLB, QB_OFF)
e("s_mov_b64 exec, -1")
stamp(3)
lab("L_QPOLL")
def issue_q():
    for hf in range(2):
        for ee in range(2):
            a = aQ0 if hf == 0 else aQ1
            e(f"buffer_load_dwordx4 {v(QF+4*(hf*2+ee),4)}, {v(a)}, {s(sWS,4)}, {s(sLB)} offen offset:{QB_OFF+16*ee} sc1")
poll(issue_q, range(QF, QF+16), T)
stamp(4)
e("s_branch L_LOOP")
lab("L_END")
e("s_endpgm")

nv = (NVGPR + 7) // 8 * 8
out.append('.section .rodata,"a"')
out.append(".p2align 6")
out.append(f".amdhsa_kernel {KNAME}")
out.append(f"  .amdhsa_next_free_vgpr {nv}")
out.append(f"  .amdhsa_next_free_sgpr 102")
out.append(f"  .amdhsa_accum_offset {nv}")
out.append("  .amdhsa_group_segment_fixed_size 0")
out.append("  .amdhsa_kernarg_size 104")
out.append("  .amdhsa_user_sgpr_count 2")
out.append("  .amdhsa_user_sgpr_kernarg_segment_ptr 1")
out.append("  .amdhsa_system_sgpr_workgroup_id_x 1")
out.append(".end_amdhsa_kernel")
open(sys.argv[1], "w").write("\n".join(out) + "\n")
print("vgprs", NVGPR, "sgprs", S.n, "lds", LDS_BYTES, "lines", len(out))
```

```python
import sys, struct, math

NAME = "interleave_layers__sliding_block_cached__mixer_channel_mlp__decode"
KNAME = NAME + "_kernel"

OPT = dict(stamps=0, D=4, touch=1, d4=5, d7=5)
for a in sys.argv[2:]:
    k, v_ = a.split("=")
    OPT[k] = int(v_)

def f32(x):
    return "0x%08x" % struct.unpack("<I", struct.pack("<f", x))[0]

X1_OFF = 0x0000
X2_OFF = 0x1000
ML_OFF = 0x2000
HP_OFF = 0x3000
OB_OFF = 0x8000
X1P_OFF = 0x10000
X2P_OFF = 0x18000
LSZ = 0x1C000
QP_OFF = 2 * LSZ
GSZ = QP_OFF + 0xA000
PF = GSZ // 32
TAG_BASE = 8 * GSZ
STAMP_BASE = 0x400000
assert TAG_BASE + 8 * 0x10000 <= STAMP_BASE and PF == 8448

L_WQ = 0
L_WO = 16384
L_W1 = 32768
L_W2 = 40960
L_G1 = 49152
L_G5 = 53248
L_H = 57344
L_Q = L_H + 1088
L_MX = L_Q + 1088
L_LS = L_MX + 128
L_ML = L_LS + 128
L_RES = L_ML + 256
L_X0 = L_RES + 512
L_XI = L_X0
assert L_X0 % 16 == 0 and L_X0 + 4096 <= 65536
L_OB = 65536
OSTR = 2560
L_AF = L_OB + 8 * OSTR
LDS_BYTES = L_AF + 32 * 272

SPIN_MAX = 0x20000

class Regs:
    def __init__(self, start, limit, p):
        self.n = start; self.limit = limit; self.p = p
    def alloc(self, cnt=1, align=1):
        self.n = (self.n + align - 1) // align * align
        r = self.n; self.n += cnt
        assert self.n <= self.limit, (self.p, self.n)
        return r

S = Regs(4, 100, "s")
V = Regs(1, 256, "v")
def s(r, n=1): return f"s{r}" if n == 1 else f"s[{r}:{r+n-1}]"
def v(r, n=1): return f"v{r}" if n == 1 else f"v[{r}:{r+n-1}]"

sX, sK, sV, sWQ, sWO, sW1, sB1, sW2, sB2, sOUT, sDBG, sWS = [S.alloc(4, 4) for _ in range(12)]
sW = S.alloc(); sG = S.alloc(); sI = S.alloc(); sB = S.alloc(); sS = S.alloc()
sGB = S.alloc()
sLB = S.alloc()
sLO = S.alloc()
sLAYER = S.alloc(); sFAST = S.alloc(); sNONCE = S.alloc(); sCNT = S.alloc()
sT0 = S.alloc(); sT1 = S.alloc(); sT2 = S.alloc(); sT3 = S.alloc()
sROT = S.alloc(); sROTH = S.alloc(); sKVB = S.alloc()
sC = S.alloc(); sPLO = S.alloc(); sPHI = S.alloc(); sXCC = S.alloc(); sTB = S.alloc()
sKQ = S.alloc(); sWV = S.alloc(); sKH = S.alloc()
sMA = [S.alloc(2, 2) for _ in range(4)]
sM5 = S.alloc(2, 2)
sTM = S.alloc(2, 2); sSTB = S.alloc()

vL = V.alloc(); vMW = V.alloc(); aL4 = V.alloc()
KF = V.alloc(32, 4)
VT = V.alloc(32, 4)
VR = V.alloc(32, 4)
WA = V.alloc(16, 4)
WB = V.alloc(16, 4)
XF = V.alloc(16, 4)
QF = V.alloc(16, 4)
PB = V.alloc(16, 4)
ONE = V.alloc(4, 4)
ACC = V.alloc(16, 4)
T = V.alloc(16, 4)
aQR = V.alloc()
aXF = V.alloc()
aOST = V.alloc()
aAFW = V.alloc(); aAFR = V.alloc(); aMLR = V.alloc()
aP3S = V.alloc()
aRG = V.alloc()
aXN = V.alloc(); aXS = V.alloc()
aPS = V.alloc()
aSG = V.alloc()
aSW = V.alloc()
aXR = V.alloc()
aHR = V.alloc()
aL16 = V.alloc(); aGW = V.alloc()
aOW = V.alloc(); aOR = V.alloc(); aMX = V.alloc(); aMXW = V.alloc()
aTG = V.alloc()
RES = V.alloc(2, 2); BIA = V.alloc(2, 2); CS = V.alloc(2, 2)
vSTAMP = V.alloc(); vSTAMP0 = V.alloc()
NVGPR = V.n

out = []
def e(x): out.append("    " + x)
def lab(x): out.append(x + ":")
def c(x): out.append("    ; " + x)
def nop(n):
    while n > 0:
        k = min(n, 16); e(f"s_nop {k-1}"); n -= k
_uid = [0]
def uid(p="L"):
    _uid[0] += 1
    return f"{p}_{_uid[0]}"

def stamp(idx):
    if not OPT["stamps"]: return
    if idx >= 16 and OPT["stamps"] < 2: return
    if idx in (0, 13):
        e(f"s_memrealtime {s(sTM,2)}")
        e("s_waitcnt lgkmcnt(0)")
        e(f"v_writelane_b32 {v(vSTAMP)}, {s(sTM)}, 15")
    e(f"s_memtime {s(sTM,2)}")
    e("s_waitcnt lgkmcnt(0)")
    e(f"v_writelane_b32 {v(vSTAMP)}, {s(sTM)}, {idx}")

def mfma(d, a, b, cc):
    cs = "0" if cc is None else v(cc, 4)
    e(f"v_mfma_f32_16x16x32_bf16 {v(d,4)}, {v(a,4)}, {v(b,4)}, {cs}")

def set_exec(lo, hi):
    e(f"s_mov_b32 exec_lo, {hex(lo)}")
    e(f"s_mov_b32 exec_hi, {hex(hi)}")

def check_sentinel(regs, tmp):
    regs = list(regs)
    e(f"v_max3_u32 {v(tmp)}, {v(regs[0])}, {v(regs[1])}, {v(regs[2])}")
    rest = regs[3:]
    while len(rest) >= 2:
        e(f"v_max3_u32 {v(tmp)}, {v(tmp)}, {v(rest[0])}, {v(rest[1])}")
        rest = rest[2:]
    if rest:
        e(f"v_max_u32 {v(tmp)}, {v(tmp)}, {v(rest[0])}")
    e(f"v_cmp_eq_u32 vcc, -1, {v(tmp)}")

def poll(issue, regs, tmp):
    top = uid("POLL"); done = uid("POLLD")
    e(f"s_mov_b32 {s(sCNT)}, 0")
    lab(top)
    issue()
    e("s_waitcnt vmcnt(0)")
    check_sentinel(regs, tmp)
    e(f"s_cbranch_vccz {done}")
    e(f"s_add_u32 {s(sCNT)}, {s(sCNT)}, 1")
    e(f"s_cmp_lt_u32 {s(sCNT)}, {SPIN_MAX}")
    e(f"s_cbranch_scc1 {top}")
    lab(done)

def store_intra(op, data, addr, soff, off):
    slow = uid("STS"); done = uid("STD")
    e(f"s_cmp_eq_u32 {s(sFAST)}, 0")
    e(f"s_cbranch_scc1 {slow}")
    e(f"{op} {data}, {v(addr)}, {s(sWS,4)}, {s(soff)} offen offset:{off}")
    e(f"s_branch {done}")
    lab(slow)
    e(f"{op} {data}, {v(addr)}, {s(sWS,4)}, {s(soff)} offen offset:{off} sc1")
    lab(done)

def poll_x(soff):
    poll(lambda: e(f"buffer_load_dwordx4 {v(T+4,4)}, {v(aL16)}, {s(sWS,4)}, {s(soff)} offen sc1"), range(T+4, T+8), T+1)
    e(f"s_lshl_b32 {s(sT3)}, {s(sWV)}, 10")
    e(f"v_add_u32 {v(T+1)}, {s(sT3)}, {v(aL16)}")
    e(f"ds_write_b128 {v(T+1)}, {v(T+4,4)} offset:{L_XI}")
    e("s_waitcnt lgkmcnt(0)")

def gemv_mma_store(soff):
    for ks in range(4):
        e(f"ds_read_b128 {v(XF+4*ks,4)}, {v(aXF)} offset:{L_XI + 256*ks}")
    for ks in range(4):
        e(f"s_waitcnt lgkmcnt({3-ks})")
        mfma(ACC, WA + 4*ks, XF + 4*ks, None if ks == 0 else ACC)
    nop(6)
    e(f"s_mov_b64 exec, {s(sMA[0],2)}")
    store_intra("buffer_store_dwordx4", v(ACC,4), aPS, soff, 0)
    e("s_mov_b64 exec, -1")

def colsum_store(soff):
    e("s_waitcnt lgkmcnt(0)")
    for ks in range(4):
        mfma(ACC, WA + 4*ks, ONE, None if ks == 0 else ACC)
    nop(6)
    set_exec(0x00100010, 0x00100010)
    store_intra("buffer_store_dwordx4", v(ACC,4), aPS, soff, 0)
    e("s_mov_b64 exec, -1")

def colsum_fetch(soff, kq_stride, addr):
    def issue():
        e(f"s_mov_b32 {s(sT1)}, {s(soff)}")
        for k in range(4):
            e(f"buffer_load_dwordx2 {v(VR+2*k,2)}, {v(addr)}, {s(sWS,4)}, {s(sT1)} offen sc1")
            if k < 3: e(f"s_add_u32 {s(sT1)}, {s(sT1)}, {kq_stride}")
    poll(issue, range(VR, VR+8), T+2)
    e(f"v_pk_add_f32 {v(VR,2)}, {v(VR,2)}, {v(VR+2,2)}")
    e(f"v_pk_add_f32 {v(VR+4,2)}, {v(VR+4,2)}, {v(VR+6,2)}")
    e(f"v_pk_add_f32 {v(CS,2)}, {v(VR,2)}, {v(VR+4,2)}")

def wave_sum(r, tmp):
    for m in ("quad_perm:[1,0,3,2]", "quad_perm:[2,3,0,1]", "row_half_mirror", "row_mirror"):
        nop(2)
        e(f"v_add_f32_dpp {v(r)}, {v(r)}, {v(r)} {m} row_mask:0xf bank_mask:0xf")
    for sw in ("v_permlane16_swap_b32", "v_permlane32_swap_b32"):
        e(f"v_mov_b32 {v(tmp)}, {v(r)}")
        nop(2)
        e(f"{sw} {v(r)}, {v(tmp)}")
        nop(1)
        e(f"v_add_f32 {v(r)}, {v(r)}, {v(tmp)}")

def row_stats(double_ln):
    X = QF
    e(f"ds_read_b128 {v(X,4)}, {v(aXR)}")
    e("s_waitcnt lgkmcnt(0)")
    for k in range(4):
        e(f"v_and_b32 {v(X+4+2*k+1)}, 0xffff0000, {v(X+k)}")
        e(f"v_lshlrev_b32 {v(X+4+2*k)}, 16, {v(X+k)}")
    e(f"v_pk_add_f32 {v(X,2)}, {v(X+4,2)}, {v(X+6,2)}")
    e(f"v_pk_add_f32 {v(X+2,2)}, {v(X+8,2)}, {v(X+10,2)}")
    e(f"v_pk_add_f32 {v(X,2)}, {v(X,2)}, {v(X+2,2)}")
    e(f"v_add_f32 {v(T+8)}, {v(X)}, {v(X+1)}")
    wave_sum(T+8, T+5)
    e(f"v_mul_f32 {v(T+8)}, {f32(1/512)}, {v(T+8)}")
    for k in range(8):
        e(f"v_sub_f32 {v(X+4+k)}, {v(X+4+k)}, {v(T+8)}")
    e(f"v_mul_f32 {v(T+4)}, {v(X+4)}, {v(X+4)}")
    for k in range(1, 8):
        e(f"v_fmac_f32 {v(T+4)}, {v(X+4+k)}, {v(X+4+k)}")
    wave_sum(T+4, T+5)
    e(f"v_mul_f32 {v(T+4)}, {f32(1/512)}, {v(T+4)}")
    scale_from_var(T+4, double_ln, T+5)

def scale_from_var(s2, double_ln, tmp):
    e(f"v_add_f32 {v(tmp)}, {f32(1e-5)}, {v(s2)}")
    e(f"v_rsq_f32 {v(tmp)}, {v(tmp)}")
    nop(1)
    if double_ln:
        e(f"v_mul_f32 {v(s2)}, {v(s2)}, {v(tmp)}")
        e(f"v_mul_f32 {v(s2)}, {v(s2)}, {v(tmp)}")
        e(f"v_add_f32 {v(s2)}, {f32(1e-5)}, {v(s2)}")
        e(f"v_rsq_f32 {v(s2)}, {v(s2)}")
        nop(1)
        e(f"v_mul_f32 {v(s2)}, {v(s2)}, {v(tmp)}")
    else:
        e(f"v_mov_b32 {v(s2)}, {v(tmp)}")

def stats_from(s2, s1, double_ln, tmp):
    e(f"v_mul_f32 {v(s1)}, {f32(1/512)}, {v(s1)}")
    e(f"v_mul_f32 {v(s2)}, {f32(1/512)}, {v(s2)}")
    e(f"v_fma_f32 {v(s2)}, -{v(s1)}, {v(s1)}, {v(s2)}")
    e(f"v_max_f32 {v(s2)}, 0, {v(s2)}")
    scale_from_var(s2, double_ln, tmp)

def sum_partials(soff, kq_stride, double_ln):
    row_stats(double_ln)
    e(f"v_mul_f32 {v(T+6)}, {v(T+8)}, {v(CS)}")
    e(f"v_mul_f32 {v(T+7)}, {v(T+8)}, {v(CS+1)}")
    def issue():
        e(f"s_mov_b32 {s(sT1)}, {s(soff)}")
        for k in range(4):
            e(f"buffer_load_dwordx2 {v(VR+2*k,2)}, {v(aSG)}, {s(sWS,4)}, {s(sT1)} offen sc1")
            if k < 3: e(f"s_add_u32 {s(sT1)}, {s(sT1)}, {kq_stride}")
    poll(issue, range(VR, VR+8), T+2)
    e(f"v_pk_add_f32 {v(VR,2)}, {v(VR,2)}, {v(VR+2,2)}")
    e(f"v_pk_add_f32 {v(VR+4,2)}, {v(VR+4,2)}, {v(VR+6,2)}")
    e(f"v_pk_add_f32 {v(VR,2)}, {v(VR,2)}, {v(T+6,2)} neg_lo:[0,1] neg_hi:[0,1]")
    e(f"v_pk_add_f32 {v(VR,2)}, {v(VR,2)}, {v(VR+4,2)}")
    e(f"v_mul_f32 {v(T)}, {v(VR)}, {v(T+4)}")
    e(f"v_mul_f32 {v(T+1)}, {v(VR+1)}, {v(T+4)}")

def reduce_slice(nload, base_off, step, extra_bias):
    def issue():
        e(f"s_add_u32 {s(sT0)}, {s(sLO)}, {base_off}")
        for t in range(nload):
            e(f"buffer_load_dwordx4 {v(VR+4*t,4)}, {v(aRG)}, {s(sWS,4)}, {s(sT0)} offen sc1")
            if t + 1 < nload:
                e(f"s_add_u32 {s(sT0)}, {s(sT0)}, {step}")
    poll(issue, range(VR, VR + 4*nload), T)
    stamp(25 if nload == 8 else 26)
    n = nload
    while n > 1:
        h = n // 2
        for t in range(h):
            e(f"v_pk_add_f32 {v(VR+4*t,2)}, {v(VR+4*t,2)}, {v(VR+4*(t+h),2)}")
            e(f"v_pk_add_f32 {v(VR+4*t+2,2)}, {v(VR+4*t+2,2)}, {v(VR+4*(t+h)+2,2)}")
        n = h
    nop(2)
    e(f"v_permlane32_swap_b32 {v(VR)}, {v(VR+2)}")
    e(f"v_permlane32_swap_b32 {v(VR+1)}, {v(VR+3)}")
    nop(1)
    e(f"v_add_f32 {v(VR)}, {v(VR)}, {v(VR+2)}")
    e(f"v_add_f32 {v(VR+1)}, {v(VR+1)}, {v(VR+3)}")
    e(f"v_mov_b32 {v(VR+2)}, {v(VR)}")
    e(f"v_mov_b32 {v(VR+3)}, {v(VR+1)}")
    nop(2)
    e(f"v_permlane16_swap_b32 {v(VR)}, {v(VR+2)}")
    e(f"v_permlane16_swap_b32 {v(VR+1)}, {v(VR+3)}")
    nop(1)
    e(f"v_add_f32 {v(VR)}, {v(VR)}, {v(VR+2)}")
    e(f"v_add_f32 {v(VR+1)}, {v(VR+1)}, {v(VR+3)}")
    if extra_bias:
        e(f"v_add_f32 {v(VR)}, {v(VR)}, {v(BIA)}")
        e(f"v_add_f32 {v(VR+1)}, {v(VR+1)}, {v(BIA+1)}")
    e(f"v_cvt_pk_bf16_f32 {v(T)}, {v(VR)}, {v(VR+1)}")
    e(f"v_lshlrev_b32 {v(VR)}, 16, {v(T)}")
    e(f"v_and_b32 {v(VR+1)}, 0xffff0000, {v(T)}")
    e("s_waitcnt lgkmcnt(0)")
    e(f"v_add_f32 {v(VR)}, {v(VR)}, {v(RES)}")
    e(f"v_add_f32 {v(VR+1)}, {v(VR+1)}, {v(RES+1)}")
    e(f"v_cvt_pk_bf16_f32 {v(T)}, {v(VR)}, {v(VR+1)}")
    e(f"v_min_u32 {v(T)}, -2, {v(T)}")
    e(f"v_lshlrev_b32 {v(RES)}, 16, {v(T)}")
    e(f"v_and_b32 {v(RES+1)}, 0xffff0000, {v(T)}")

D = OPT["D"]

hdr = open("cdna_kernels/" + NAME + ".s.ref").read().split("\n")
head = [l for l in hdr if l.startswith(";") and "@launch" not in l and "Override launch" not in l and "grid=ceil" not in l]
out.extend(head)
out.append(f"; @launch grid=(256,1,1) block=(512,1,1) lds={LDS_BYTES}")
out.append('.amdgcn_target "amdgcn-amd-amdhsa--gfx950"')
out.append(".text")
out.append(f".globl {KNAME}")
out.append(".p2align 8")
out.append(f".type {KNAME},@function")
lab(KNAME)

e("s_cmp_ge_u32 s2, 256")
e("s_cbranch_scc1 L_END")
for reg, off in ((sWQ,24),(sK,8),(sV,16),(sWS,96),(sX,0),(sWO,32),(sW1,48),(sB1,56),(sW2,64),(sB2,72),(sOUT,80),(sDBG,88)):
    e(f"s_load_dwordx2 {s(reg,2)}, s[0:1], {off}")
for reg, nb in ((sX,4096),(sK,0x4000000),(sV,0x4000000),(sWQ,512*4096*2),(sWO,4096*512*2),(sW1,512*1792*2),(sB1,1792*2),
                (sW2,1792*512*2),(sB2,1024),(sOUT,4096),(sDBG,256),(sWS,0x10000000)):
    e(f"s_mov_b32 {s(reg+2)}, {hex(nb)}")
    e(f"s_mov_b32 {s(reg+3)}, 0x00020000")
e(f"v_lshrrev_b32 {v(T)}, 6, v0")
e(f"v_and_b32 {v(vL)}, 63, v0")
e(f"v_readfirstlane_b32 {s(sW)}, {v(T)}")
e(f"s_and_b32 {s(sG)}, s2, 7")
e(f"s_lshr_b32 {s(sI)}, s2, 3")
e(f"s_lshr_b32 {s(sB)}, {s(sI)}, 3")
e(f"s_and_b32 {s(sS)}, {s(sI)}, 7")
e(f"s_and_b32 {s(sKQ)}, {s(sI)}, 3")
e(f"s_and_b32 {s(sKH)}, {s(sI)}, 1")
e(f"s_and_b32 {s(sWV)}, {s(sW)}, 3")
e(f"v_lshlrev_b32 {v(aL16)}, 4, {v(vL)}")
e(f"s_add_u32 {s(sROT)}, {s(sW)}, s2")
e(f"s_add_u32 {s(sROT)}, {s(sROT)}, {s(sI)}")
e(f"s_and_b32 {s(sROT)}, {s(sROT)}, 7")
e(f"s_lshr_b32 {s(sROTH)}, {s(sW)}, 1")
e(f"s_add_u32 {s(sROTH)}, {s(sROTH)}, {s(sB)}")
e(f"s_and_b32 {s(sROTH)}, {s(sROTH)}, 1")
e(f"s_lshl_b32 {s(sROTH)}, {s(sROTH)}, 7")
e(f"s_lshl_b32 {s(sKVB)}, {s(sB)}, 3")
e(f"s_add_u32 {s(sKVB)}, {s(sKVB)}, {s(sG)}")
e(f"s_lshl_b32 {s(sKVB)}, {s(sKVB)}, 21")
e(f"s_lshl_b32 {s(sT3)}, {s(sS)}, 16")
e(f"s_add_u32 {s(sKVB)}, {s(sKVB)}, {s(sT3)}")
e(f"s_lshl_b32 {s(sT3)}, {s(sW)}, 13")
e(f"s_add_u32 {s(sKVB)}, {s(sKVB)}, {s(sT3)}")
e(f"s_add_u32 {s(sKVB)}, {s(sKVB)}, {6144*256}")
kA = [PB, PB+1]; kAh = [PB+2, PB+3]
e(f"v_and_b32 {v(T+6)}, 3, {v(vL)}")
e(f"v_add_u32 {v(T+6)}, {s(sROT)}, {v(T+6)}")
e(f"v_bfe_u32 {v(T+7)}, {v(vL)}, 2, 1")
e(f"v_lshrrev_b32 {v(T+8)}, 3, {v(vL)}")
e(f"v_lshlrev_b32 {v(T+9)}, 4, {v(T+8)}")
e(f"v_lshl_add_u32 {v(T+9)}, {v(T+7)}, 8, {v(T+9)}")
e(f"v_add_u32 {v(T+9)}, {s(sROTH)}, {v(T+9)}")
for t in range(2):
    e(f"v_add_u32 {v(T+10)}, {4*t}, {v(T+6)}")
    e(f"v_and_b32 {v(T+10)}, 7, {v(T+10)}")
    e(f"v_lshl_add_u32 {v(kA[t])}, {v(T+10)}, 10, {v(T+9)}")
    e(f"v_xor_b32 {v(kAh[t])}, 0x80, {v(kA[t])}")
if OPT["stamps"]:
    e(f"v_mov_b32 {v(vSTAMP)}, 0")
    e(f"v_mov_b32 {v(vSTAMP0)}, 0")

def kslot(t, hf, mh): return KF + 4*(t*4 + hf*2 + mh)
def issue_k(n):
    t, hf, mh = n >> 2, (n >> 1) & 1, n & 1
    a = kA[t] if hf == 0 else kAh[t]
    e(f"buffer_load_dwordx4 {v(kslot(t,hf,mh),4)}, {v(a)}, {s(sK,4)}, {s(sKVB)} offen offset:{512*mh} nt")
def issue_v(i):
    e(f"s_add_u32 {s(sT3)}, {s(sROT)}, {i}")
    e(f"s_and_b32 {s(sT3)}, {s(sT3)}, 7")
    e(f"s_lshl_b32 {s(sT3)}, {s(sT3)}, 10")
    e(f"s_add_u32 {s(sT3)}, {s(sT3)}, {s(sKVB)}")
    e(f"buffer_load_dwordx4 {v(VR+4*i,4)}, {v(aL16)}, {s(sV,4)}, {s(sT3)} offen nt")

e(f"v_and_b32 {v(T+7)}, 7, {v(vL)}")
e(f"v_lshlrev_b32 {v(T+7)}, 4, {v(T+7)}")
e(f"v_lshl_add_u32 {v(T+7)}, {v(T+8)}, 13, {v(T+7)}")
e(f"s_lshl_b32 {s(sT3)}, {s(sG)}, 10")
e(f"s_lshr_b32 {s(sT0)}, {s(sI)}, 2")
e(f"s_lshl_b32 {s(sT0)}, {s(sT0)}, 7")
e(f"s_add_u32 {s(sT3)}, {s(sT3)}, {s(sT0)}")
e(f"s_lshl_b32 {s(sT0)}, {s(sKQ)}, 20")
e(f"s_add_u32 {s(sT3)}, {s(sT3)}, {s(sT0)}")
e(f"s_lshl_b32 {s(sT0)}, {s(sW)}, 17")
e(f"s_add_u32 {s(sT3)}, {s(sT3)}, {s(sT0)}")
e(f"s_lshl_b32 {s(sT0)}, {s(sW)}, 11")
e(f"s_add_u32 {s(sT0)}, {s(sT0)}, {L_WQ}")
e(f"s_mov_b32 m0, {s(sT0)}")
e("s_waitcnt lgkmcnt(0)")
stamp(0)
e(f"buffer_load_dwordx4 {v(T+7)}, {s(sWQ,4)}, {s(sT3)} offen nt lds")
e(f"s_add_u32 {s(sT0)}, {s(sT0)}, 1024")
e(f"s_mov_b32 m0, {s(sT0)}")
e(f"s_add_u32 {s(sT3)}, {s(sT3)}, {8*8192}")
e(f"buffer_load_dwordx4 {v(T+7)}, {s(sWQ,4)}, {s(sT3)} offen nt lds")
e(f"s_cmp_ge_u32 {s(sW)}, 4")
e("s_cbranch_scc1 L_NOX")
e(f"s_lshl_b32 {s(sT0)}, {s(sW)}, 10")
e(f"s_add_u32 {s(sT1)}, {s(sT0)}, {L_X0}")
e(f"s_mov_b32 m0, {s(sT1)}")
nop(1)
e(f"buffer_load_dwordx4 {v(aL16)}, {s(sX,4)}, {s(sT0)} offen lds")
lab("L_NOX")
for n in range(D):
    issue_k(n)

e(f"s_mul_i32 {s(sGB)}, {s(sG)}, {GSZ}")
e(f"s_mov_b32 {s(sLB)}, {s(sGB)}")
e(f"s_mov_b32 {s(sLO)}, 0")
e(f"s_mov_b32 {s(sLAYER)}, 0")
e(f"s_mov_b32 {s(sFAST)}, 0")
e(f"s_lshl_b32 {s(sTB)}, {s(sG)}, 16")
e(f"s_add_u32 {s(sTB)}, {s(sTB)}, {TAG_BASE}")
for a in range(4):
    m = 0
    for l in range(64):
        if ((l & 15) >> 2) == a: m |= 1 << l
    e(f"s_mov_b32 {s(sMA[a])}, {hex(m & 0xffffffff)}")
    e(f"s_mov_b32 {s(sMA[a]+1)}, {hex(m >> 32)}")
e(f"s_mov_b32 {s(sM5)}, 0x001f001f")
e(f"s_mov_b32 {s(sM5+1)}, 0x001f001f")
n15, kg, l3, n2 = T+1, T+2, T+3, T+4
e(f"v_and_b32 {v(n15)}, 15, {v(vL)}")
e(f"v_lshrrev_b32 {v(kg)}, 4, {v(vL)}")
e(f"v_and_b32 {v(l3)}, 3, {v(vL)}")
e(f"v_bfe_u32 {v(n2)}, {v(vL)}, 2, 2")
e(f"v_lshlrev_b32 {v(aTG)}, 11, {v(l3)}")
e(f"v_lshl_add_u32 {v(aTG)}, {v(kg)}, 4, {v(aTG)}")
e(f"s_lshl_b32 {s(sT3)}, {s(sKQ)}, 13")
e(f"s_lshr_b32 {s(sT0)}, {s(sI)}, 2")
e(f"s_lshl_b32 {s(sT0)}, {s(sT0)}, 8")
e(f"s_add_u32 {s(sT3)}, {s(sT3)}, {s(sT0)}")
e(f"v_add_u32 {v(aTG)}, {s(sT3)}, {v(aTG)}")

e(f"s_cmp_lg_u32 {s(sW)}, 5")
e("s_cbranch_scc1 L_SETUP2")
c("wave 5: sentinel pre-fill of this member's share of the group's hand-off region; clear own tagged slots")
for r in range(4):
    e(f"v_mov_b32 {v(ACC+r)}, -1")
    e(f"v_mov_b32 {v(ACC+4+r)}, 0")
e(f"s_mul_i32 {s(sT1)}, {s(sI)}, {PF}")
e(f"s_add_u32 {s(sT1)}, {s(sT1)}, {s(sGB)}")
for n in range(8):
    if n == 4: e(f"s_add_u32 {s(sT1)}, {s(sT1)}, 4096")
    e(f"buffer_store_dwordx4 {v(ACC,4)}, {v(aL16)}, {s(sWS,4)}, {s(sT1)} offen offset:{1024*(n&3)} sc1")
e(f"s_add_u32 {s(sT1)}, {s(sT1)}, 4096")
e("s_mov_b64 exec, 0xffff")
e(f"buffer_store_dwordx4 {v(ACC,4)}, {v(aL16)}, {s(sWS,4)}, {s(sT1)} offen sc1")
e(f"s_mov_b64 exec, {s(sMA[0],2)}")
for ct in range(4):
    e(f"buffer_store_dwordx4 {v(ACC+4,4)}, {v(aTG)}, {s(sWS,4)}, {s(sTB)} offen offset:{64*ct} sc1")
e(f"s_lshl_b32 {s(sT3)}, {s(sI)}, 3")
e(f"s_add_u32 {s(sT3)}, {s(sT3)}, 32768")
e(f"v_mov_b32 {v(T+15)}, {s(sT3)}")
e("s_mov_b64 exec, 1")
e(f"buffer_store_dwordx2 {v(ACC+4,2)}, {v(T+15)}, {s(sWS,4)}, {s(sTB)} offen sc1")
e("s_mov_b64 exec, -1")
NST5 = 14
lab("L_SETUP2")
e(f"s_cmp_lg_u32 {s(sW)}, 7")
e("s_cbranch_scc1 L_SETUP3")
e("s_cmp_lg_u32 s2, 0")
e("s_cbranch_scc1 L_SETUP3")
c("WG 0 wave 7 publishes the launch nonce (tells this launch's first hand-off from stale words)")
e(f"s_memrealtime {s(sTM,2)}")
e("s_waitcnt lgkmcnt(0)")
e(f"s_or_b32 {s(sNONCE)}, {s(sTM)}, 1")
e(f"v_mov_b32 {v(ACC+4)}, {s(sNONCE)}")
e(f"v_mov_b32 {v(ACC+5)}, 0")
e("s_mov_b64 exec, 1")
e(f"buffer_store_dword {v(ACC+4)}, {v(ACC+5)}, {s(sDBG,4)}, 0 offen sc1")
e("s_mov_b64 exec, -1")
lab("L_SETUP3")
e(f"s_getreg_b32 {s(sXCC)}, hwreg(HW_REG_XCC_ID)")
e(f"s_and_b32 {s(sXCC)}, {s(sXCC)}, 15")
e(f"s_lshl_b32 {s(sSTB)}, s2, 3")
e(f"s_add_u32 {s(sSTB)}, {s(sSTB)}, {s(sW)}")
e(f"s_lshl_b32 {s(sSTB)}, {s(sSTB)}, 8")
e(f"s_add_u32 {s(sSTB)}, {s(sSTB)}, {STAMP_BASE}")
e(f"s_mov_b32 {s(sC)}, {f32(128**-0.5 * math.log2(math.e))}")
e(f"s_mov_b32 {s(sPLO)}, 0x05040100")
e(f"s_mov_b32 {s(sPHI)}, 0x07060302")
e(f"v_lshlrev_b32 {v(aL4)}, 2, {v(vL)}")
for r in range(16):
    e(f"v_mov_b32 {v(XF+r)}, 0x3f803f80")
for r in range(4):
    e(f"v_mov_b32 {v(ONE+r)}, 0x3f803f80")
e(f"v_lshlrev_b32 {v(aXF)}, 6, {v(kg)}")
e(f"v_lshl_add_u32 {v(aXF)}, {v(l3)}, 4, {v(aXF)}")
e(f"s_lshl_b32 {s(sT3)}, {s(sKQ)}, 10")
e(f"v_add_u32 {v(aXF)}, {s(sT3)}, {v(aXF)}")
e(f"v_mul_u32_u24 {v(T+7)}, 272, {v(l3)}")
e(f"v_lshl_add_u32 {v(aQR)}, {v(kg)}, 5, {v(T+7)}")
e(f"v_add_u32 {v(aQR)}, {L_Q}, {v(aQR)}")
e(f"v_lshl_add_u32 {v(aHR)}, {v(kg)}, 4, {v(T+7)}")
e(f"v_add_u32 {v(aHR)}, {L_H}, {v(aHR)}")
e(f"s_lshl_b32 {s(sT3)}, {s(sW)}, 13")
e(f"s_lshl_b32 {s(sT0)}, {s(sI)}, 8")
e(f"s_add_u32 {s(sT3)}, {s(sT3)}, {s(sT0)}")
e(f"s_add_u32 {s(sT3)}, {s(sT3)}, {OB_OFF}")
e(f"v_add_u32 {v(aOST)}, {s(sT3)}, {v(aL4)}")
e(f"s_cmp_lg_u32 {s(sW)}, 4")
e("s_cbranch_scc1 L_A1")
e(f"s_lshl_b32 {s(sT3)}, {s(sI)}, 3")
e(f"s_add_u32 {s(sT3)}, {s(sT3)}, {ML_OFF}")
e(f"v_lshlrev_b32 {v(aOST)}, 8, {v(l3)}")
e(f"v_add_u32 {v(aOST)}, {s(sT3)}, {v(aOST)}")
lab("L_A1")
e(f"s_and_b32 {s(sT3)}, {s(sW)}, 1")
e(f"s_lshl_b32 {s(sT3)}, {s(sT3)}, 4")
e(f"s_lshr_b32 {s(sT0)}, {s(sW)}, 1")
e(f"s_lshl_b32 {s(sT0)}, {s(sT0)}, 2")
e(f"s_add_u32 {s(sT3)}, {s(sT3)}, {s(sT0)}")
e(f"v_add_u32 {v(T+7)}, {s(sT3)}, {v(kg)}")
e(f"v_mul_u32_u24 {v(aAFW)}, 272, {v(T+7)}")
e(f"v_lshl_add_u32 {v(aAFW)}, {v(n15)}, 4, {v(aAFW)}")
e(f"v_add_u32 {v(aAFW)}, {L_AF}, {v(aAFW)}")
e(f"v_mul_u32_u24 {v(aAFR)}, 272, {v(n15)}")
e(f"v_lshl_add_u32 {v(aAFR)}, {v(kg)}, 4, {v(aAFR)}")
e(f"v_add_u32 {v(aAFR)}, {L_AF}, {v(aAFR)}")
e(f"v_lshlrev_b32 {v(aMLR)}, 6, {v(n2)}")
e(f"v_lshl_add_u32 {v(aMLR)}, {v(l3)}, 3, {v(aMLR)}")
e(f"v_add_u32 {v(aMLR)}, {L_ML}, {v(aMLR)}")
e(f"s_lshl_b32 {s(sT3)}, {s(sB)}, 13")
e(f"s_lshl_b32 {s(sT0)}, {s(sS)}, 10")
e(f"s_add_u32 {s(sT3)}, {s(sT3)}, {s(sT0)}")
e(f"s_lshl_b32 {s(sT0)}, {s(sWV)}, 8")
e(f"s_add_u32 {s(sT3)}, {s(sT3)}, {s(sT0)}")
e(f"s_add_u32 {s(sT3)}, {s(sT3)}, {X1P_OFF}")
e(f"v_lshlrev_b32 {v(aP3S)}, 6, {v(n2)}")
e(f"v_lshl_add_u32 {v(aP3S)}, {v(kg)}, 4, {v(aP3S)}")
e(f"v_add_u32 {v(aP3S)}, {s(sT3)}, {v(aP3S)}")
e(f"v_lshlrev_b32 {v(aRG)}, 13, {v(kg)}")
e(f"s_cmp_lt_u32 {s(sW)}, 4")
e("s_cbranch_scc1 L_A2")
e(f"v_lshrrev_b32 {v(T+7)}, 1, {v(kg)}")
e(f"s_mov_b32 {s(sT0)}, {GSZ}")
e(f"v_mul_lo_u32 {v(T+7)}, {s(sT0)}, {v(T+7)}")
e(f"v_and_b32 {v(aRG)}, 0x2000, {v(aRG)}")
e(f"v_add_u32 {v(aRG)}, {v(aRG)}, {v(T+7)}")
lab("L_A2")
e(f"v_lshl_add_u32 {v(aRG)}, {v(n15)}, 4, {v(aRG)}")
e(f"s_lshl_b32 {s(sT3)}, {s(sI)}, 8")
e(f"v_add_u32 {v(aRG)}, {s(sT3)}, {v(aRG)}")
e(f"v_lshrrev_b32 {v(T+7)}, 5, {v(vL)}")
e(f"v_lshlrev_b32 {v(aXN)}, 10, {v(n2)}")
e(f"v_lshl_add_u32 {v(aXN)}, {v(l3)}, 3, {v(aXN)}")
e(f"v_lshl_add_u32 {v(aXN)}, {v(T+7)}, 2, {v(aXN)}")
e(f"s_lshl_b32 {s(sT3)}, {s(sI)}, 5")
e(f"v_add_u32 {v(aXN)}, {s(sT3)}, {v(aXN)}")
e(f"v_bfe_u32 {v(T+8)}, {v(vL)}, 1, 1")
e(f"v_lshlrev_b32 {v(aXS)}, 6, {v(T+8)}")
e(f"v_lshl_add_u32 {v(aXS)}, {v(n2)}, 4, {v(aXS)}")
e(f"v_and_b32 {v(T+8)}, 1, {v(vL)}")
e(f"v_lshl_add_u32 {v(aXS)}, {v(T+8)}, 3, {v(aXS)}")
e(f"v_lshl_add_u32 {v(aXS)}, {v(T+7)}, 2, {v(aXS)}")
e(f"s_lshl_b32 {s(sT3)}, {s(sI)}, 7")
e(f"v_add_u32 {v(aXS)}, {s(sT3)}, {v(aXS)}")
e(f"s_lshl_b32 {s(sT3)}, {s(sWV)}, 10")
e(f"v_lshlrev_b32 {v(aGW)}, 6, {v(n15)}")
e(f"v_lshl_add_u32 {v(aGW)}, {v(kg)}, 4, {v(aGW)}")
e(f"v_add_u32 {v(aGW)}, {s(sT3)}, {v(aGW)}")
e(f"s_lshr_b32 {s(sT2)}, {s(sI)}, 2")
e(f"s_cmp_ge_u32 {s(sW)}, 4")
e("s_cbranch_scc1 L_A3")
c("waves 0-3: QP store ; HP gather (batch = w, units kh*96 + 2l) ; h write")
e(f"s_mul_i32 {s(sT3)}, {s(sKQ)}, 10240")
e(f"s_lshl_b32 {s(sT0)}, {s(sT2)}, 8")
e(f"s_add_u32 {s(sT3)}, {s(sT3)}, {s(sT0)}")
e(f"s_lshl_b32 {s(sT0)}, {s(sW)}, 6")
e(f"s_add_u32 {s(sT3)}, {s(sT3)}, {s(sT0)}")
e(f"v_lshlrev_b32 {v(aPS)}, 11, {v(n15)}")
e(f"v_lshl_add_u32 {v(aPS)}, {v(kg)}, 4, {v(aPS)}")
e(f"v_add_u32 {v(aPS)}, {s(sT3)}, {v(aPS)}")
e(f"s_mul_i32 {s(sT3)}, {s(sKH)}, 384")
e(f"s_lshl_b32 {s(sT0)}, {s(sW)}, 10")
e(f"s_add_u32 {s(sT3)}, {s(sT3)}, {s(sT0)}")
e(f"v_lshlrev_b32 {v(aSG)}, 3, {v(vL)}")
e(f"v_add_u32 {v(aSG)}, {s(sT3)}, {v(aSG)}")
e(f"s_mul_i32 {s(sT3)}, {s(sW)}, 272")
e(f"s_add_u32 {s(sT3)}, {s(sT3)}, {L_H}")
e(f"v_add_u32 {v(aSW)}, {s(sT3)}, {v(aL4)}")
e(f"s_mov_b32 {s(sT1)}, {s(sW)}")
e("s_branch L_A4")
lab("L_A3")
c("waves 4,5: HP store ; waves 6,7: X2P store ; 4-7: QP gather (batch b, head = wv, cols 2l) ; q write")
e(f"s_mul_i32 {s(sT3)}, {s(sKQ)}, 5120")
e(f"s_lshl_b32 {s(sT0)}, {s(sT2)}, 7")
e(f"s_add_u32 {s(sT3)}, {s(sT3)}, {s(sT0)}")
e(f"s_and_b32 {s(sT0)}, {s(sW)}, 1")
e(f"s_lshl_b32 {s(sT0)}, {s(sT0)}, 6")
e(f"s_add_u32 {s(sT3)}, {s(sT3)}, {s(sT0)}")
e(f"s_add_u32 {s(sT3)}, {s(sT3)}, {HP_OFF}")
e(f"v_lshlrev_b32 {v(aPS)}, 10, {v(n15)}")
e(f"v_lshl_add_u32 {v(aPS)}, {v(kg)}, 4, {v(aPS)}")
e(f"v_add_u32 {v(aPS)}, {s(sT3)}, {v(aPS)}")
e(f"s_cmp_lt_u32 {s(sW)}, 6")
e("s_cbranch_scc1 L_A3b")
e(f"s_lshl_b32 {s(sT3)}, {s(sKH)}, 13")
e(f"s_lshr_b32 {s(sT0)}, {s(sI)}, 1")
e(f"s_lshl_b32 {s(sT0)}, {s(sT0)}, 9")
e(f"s_add_u32 {s(sT3)}, {s(sT3)}, {s(sT0)}")
e(f"s_and_b32 {s(sT0)}, {s(sW)}, 1")
e(f"s_lshl_b32 {s(sT0)}, {s(sT0)}, 8")
e(f"s_add_u32 {s(sT3)}, {s(sT3)}, {s(sT0)}")
e(f"s_add_u32 {s(sT3)}, {s(sT3)}, {X2P_OFF}")
e(f"v_and_b32 {v(aPS)}, 0x3ff, {v(aGW)}")
e(f"v_add_u32 {v(aPS)}, {s(sT3)}, {v(aPS)}")
lab("L_A3b")
e(f"s_lshl_b32 {s(sT3)}, {s(sB)}, 11")
e(f"s_lshl_b32 {s(sT0)}, {s(sWV)}, 9")
e(f"s_add_u32 {s(sT3)}, {s(sT3)}, {s(sT0)}")
e(f"v_lshlrev_b32 {v(aSG)}, 3, {v(vL)}")
e(f"v_add_u32 {v(aSG)}, {s(sT3)}, {v(aSG)}")
e(f"s_mul_i32 {s(sT3)}, {s(sWV)}, 272")
e(f"s_add_u32 {s(sT3)}, {s(sT3)}, {L_Q}")
e(f"v_add_u32 {v(aSW)}, {s(sT3)}, {v(aL4)}")
e(f"s_mov_b32 {s(sT1)}, {s(sB)}")
lab("L_A4")
e(f"s_lshl_b32 {s(sT3)}, {s(sT1)}, 4")
e(f"s_add_u32 {s(sT3)}, {s(sT3)}, {L_XI}")
e(f"v_lshlrev_b32 {v(aXR)}, 6, {v(vL)}")
e(f"v_add_u32 {v(aXR)}, {s(sT3)}, {v(aXR)}")
e(f"s_mul_i32 {s(sT3)}, {s(sW)}, {OSTR}")
e(f"s_add_u32 {s(sT3)}, {s(sT3)}, {L_OB}")
e(f"v_mul_u32_u24 {v(aOW)}, 272, {v(kg)}")
e(f"v_lshl_add_u32 {v(aOW)}, {v(n15)}, 4, {v(aOW)}")
e(f"v_add_u32 {v(aOW)}, {s(sT3)}, {v(aOW)}")
e(f"v_mul_u32_u24 {v(aOR)}, 1088, {v(T+7)}")
e(f"v_bfe_u32 {v(T+9)}, {v(vL)}, 3, 2")
e(f"v_mul_u32_u24 {v(T+9)}, 272, {v(T+9)}")
e(f"v_add_u32 {v(aOR)}, {v(aOR)}, {v(T+9)}")
e(f"v_bfe_u32 {v(T+9)}, {v(vL)}, 1, 2")
e(f"v_lshl_add_u32 {v(aOR)}, {v(T+9)}, 6, {v(aOR)}")
e(f"v_lshl_add_u32 {v(aOR)}, {v(T+8)}, 3, {v(aOR)}")
e(f"s_lshl_b32 {s(sT3)}, {s(sWV)}, 4")
e(f"s_add_u32 {s(sT3)}, {s(sT3)}, {L_OB}")
e(f"v_add_u32 {v(aOR)}, {s(sT3)}, {v(aOR)}")
e(f"v_lshlrev_b32 {v(aMX)}, 5, {v(l3)}")
e(f"v_add_u32 {v(aMX)}, {L_MX}, {v(aMX)}")
e(f"s_lshl_b32 {s(sT3)}, {s(sW)}, 2")
e(f"v_add_u32 {v(aMXW)}, {s(sT3)}, {v(aMX)}")
e(f"s_cmp_ge_u32 {s(sW)}, 4")
e("s_cbranch_scc1 L_A5")
e(f"s_lshl_b32 {s(sT3)}, {s(sW)}, 5")
e(f"s_add_u32 {s(sT3)}, {s(sT3)}, {L_MX}")
e(f"v_mov_b32 {v(aMX)}, {s(sT3)}")
lab("L_A5")
TRR = T+10
e(f"v_lshl_add_u32 {v(TRR)}, {v(kg)}, 3, {v(n2)}")

e(f"s_cmp_eq_u32 {s(sW)}, 5")
e("s_cbranch_scc1 L_Q1")
e(f"s_cmp_lg_u32 {s(sW)}, 7")
e("s_cbranch_scc1 L_STREAM")
c("wave 7 runs its whole K/V stream up front so that it is free to poll q early")
e(f"s_waitcnt vmcnt({D})")
e("s_barrier")
for n in range(D, 8):
    issue_k(n)
for i in range(8):
    issue_v(i)
e("s_branch L_WEIGHTS")
lab("L_Q1")
c("---------------- wave 5: this tile's share of q of layer 0 (x is an input: statistics computed locally)")
e(f"v_lshlrev_b32 {v(T+11)}, 10, {v(l3)}")
e(f"v_lshl_add_u32 {v(T+11)}, {v(kg)}, 4, {v(T+11)}")
e(f"v_add_u32 {v(T+11)}, {L_X0}, {v(T+11)}")
e(f"v_lshlrev_b32 {v(T+12)}, 7, {v(TRR)}")
e(f"v_lshl_add_u32 {v(T+12)}, {v(l3)}, 3, {v(T+12)}")
e(f"v_mov_b32 {v(T+14)}, 0")
e(f"buffer_load_dword {v(T+13)}, {v(T+14)}, {s(sDBG,4)}, 0 offen sc1")
e(f"s_waitcnt vmcnt({D+NST5+1})")
e("s_barrier")
stamp(1)
WQ5 = VT
for ct in range(4):
    for ks in range(4):
        r = WQ5 + 16*ct + 4*ks
        e(f"ds_read_b64_tr_b16 {v(r,2)}, {v(T+12)} offset:{L_WQ + 4096*ks + 32*ct}")
        e(f"ds_read_b64_tr_b16 {v(r+2,2)}, {v(T+12)} offset:{L_WQ + 4096*ks + 32*ct + 512}")
    e("s_waitcnt lgkmcnt(0)")
GR = QF
for j in range(4):
    e(f"s_add_u32 {s(sT3)}, {s(sKQ)}, {j}")
    e(f"s_and_b32 {s(sT3)}, {s(sT3)}, 3")
    e(f"s_lshl_b32 {s(sT3)}, {s(sT3)}, 8")
    e(f"v_add_u32 {v(T+5)}, {s(sT3)}, {v(T+11)}")
    e(f"s_mov_b64 exec, {s(sMA[0],2)}")
    for ks in range(4):
        e(f"ds_read_b128 {v(XF+4*ks,4)}, {v(T+5)} offset:{64*ks}")
    e("s_mov_b64 exec, -1")
    e("s_waitcnt lgkmcnt(0)")
    for ks in range(4):
        mfma(GR, XF+4*ks, XF+4*ks, None if (j == 0 and ks == 0) else GR)
    if j == 0:
        for ks in range(4):
            for ct in range(4):
                mfma(ACC+4*ct, WQ5 + 16*ct + 4*ks, XF+4*ks, None if ks == 0 else ACC+4*ct)
nop(8)
e(f"ds_write_b128 {v(aGW)}, {v(GR,4)} offset:{L_G1}")
e(f"v_mul_u32_u24 {v(T+5)}, 68, {v(l3)}")
e(f"v_lshlrev_b32 {v(T+6)}, 6, {v(l3)}")
e("s_waitcnt lgkmcnt(0)")
e(f"ds_read_b32 {v(T+7)}, {v(T+5)} offset:{L_G1 + 1024}")
e(f"ds_read_b32 {v(T+8)}, {v(T+6)} offset:{L_G1 + 1024 + 16}")
e("s_waitcnt lgkmcnt(0)")
stats_from(T+7, T+8, False, T+9)
e(f"v_sub_f32 {v(T+8)}, 0, {v(T+8)}")
for r in range(16):
    e(f"v_mov_b32_dpp {v(VT+r)}, {v(ACC+r)} row_shl:4 row_mask:0xf bank_mask:0xf")
for r in range(16):
    e(f"v_fmac_f32 {v(ACC+r)}, {v(VT+r)}, {v(T+8)}")
for r in range(16):
    e(f"v_mul_f32 {v(ACC+r)}, {v(ACC+r)}, {v(T+7)}")
for ct in range(4):
    e(f"v_cvt_pk_bf16_f32 {v(VT+4*ct)}, {v(ACC+4*ct)}, {v(ACC+4*ct+1)}")
    e(f"v_cvt_pk_bf16_f32 {v(VT+4*ct+2)}, {v(ACC+4*ct+2)}, {v(ACC+4*ct+3)}")
e(f"s_mov_b32 {s(sCNT)}, 0")
lab("L_NONCE")
e("s_waitcnt vmcnt(0)")
e(f"v_readfirstlane_b32 {s(sNONCE)}, {v(T+13)}")
e(f"s_add_u32 {s(sCNT)}, {s(sCNT)}, 1")
e(f"s_cmp_ge_u32 {s(sCNT)}, {SPIN_MAX}")
e("s_cbranch_scc1 L_NONCE_D")
e(f"s_cmp_lg_u32 {s(sNONCE)}, 0")
e("s_cbranch_scc1 L_NONCE_D")
e(f"buffer_load_dword {v(T+13)}, {v(T+14)}, {s(sDBG,4)}, 0 offen sc1")
e("s_branch L_NONCE")
lab("L_NONCE_D")
for ct in range(4):
    e(f"v_mov_b32 {v(VT+4*ct+1)}, {s(sNONCE)}")
    e(f"v_mov_b32 {v(VT+4*ct+3)}, {s(sNONCE)}")
e(f"v_mov_b32 {v(T+12)}, {s(sXCC)}")
e(f"v_mov_b32 {v(T+13)}, {s(sNONCE)}")
e(f"s_lshl_b32 {s(sT3)}, {s(sI)}, 3")
e(f"s_add_u32 {s(sT3)}, {s(sT3)}, 32768")
e(f"v_mov_b32 {v(T+15)}, {s(sT3)}")
e(f"s_mov_b64 exec, {s(sMA[0],2)}")
for ct in range(4):
    e(f"buffer_store_dwordx4 {v(VT+4*ct,4)}, {v(aTG)}, {s(sWS,4)}, {s(sTB)} offen offset:{64*ct} sc1")
e("s_mov_b64 exec, 1")
e(f"buffer_store_dwordx2 {v(T+12,2)}, {v(T+15)}, {s(sWS,4)}, {s(sTB)} offen sc1")
e("s_mov_b64 exec, -1")
stamp(3)
for n in range(D, 8):
    issue_k(n)
for i in range(8):
    issue_v(i)
e("s_branch L_WEIGHTS")

lab("L_STREAM")
e(f"s_waitcnt vmcnt({D})")
e("s_barrier")
for n in range(D, 8):
    e(f"s_waitcnt vmcnt({D-1})")
    issue_k(n)
for i in range(8):
    e(f"s_waitcnt vmcnt({D-1})")
    issue_v(i)
lab("L_WEIGHTS")
e(f"v_lshrrev_b32 {v(T+11)}, 3, {v(vL)}")
e(f"v_lshlrev_b32 {v(T+11)}, 10, {v(T+11)}")
e(f"v_and_b32 {v(T+12)}, 7, {v(vL)}")
e(f"v_lshl_add_u32 {v(T+11)}, {v(T+12)}, 4, {v(T+11)}")
e(f"s_lshl_b32 {s(sT3)}, {s(sG)}, 2")
e(f"s_add_u32 {s(sT3)}, {s(sT3)}, {s(sB)}")
e(f"s_lshl_b32 {s(sT3)}, {s(sT3)}, 17")
e(f"s_lshl_b32 {s(sT0)}, {s(sW)}, 14")
e(f"s_add_u32 {s(sT3)}, {s(sT3)}, {s(sT0)}")
e(f"s_lshl_b32 {s(sT0)}, {s(sS)}, 7")
e(f"s_add_u32 {s(sT3)}, {s(sT3)}, {s(sT0)}")
e(f"s_lshl_b32 {s(sT0)}, {s(sW)}, 11")
e(f"s_add_u32 {s(sT0)}, {s(sT0)}, {L_WO}")
for n in range(2):
    e(f"s_waitcnt vmcnt({D-1})")
    e(f"s_mov_b32 m0, {s(sT0)}")
    e(f"s_add_u32 {s(sT0)}, {s(sT0)}, 1024")
    e(f"buffer_load_dwordx4 {v(T+11)}, {s(sWO,4)}, {s(sT3)} offen nt lds")
    e(f"s_add_u32 {s(sT3)}, {s(sT3)}, 8192")
for t in range(2):
    for hf in range(2):
        X = kslot(t, hf, 0); Y = kslot(t, hf, 1)
        for r in range(4):
            e(f"v_mov_b32 {v(ACC+r)}, {v(X+r)}")
        for r in range(4):
            e(f"v_mov_b32_dpp {v(X+r)}, {v(Y+r)} row_ror:8 row_mask:0xf bank_mask:0xc")
        for r in range(4):
            e(f"v_mov_b32_dpp {v(Y+r)}, {v(ACC+r)} row_ror:8 row_mask:0xf bank_mask:0x3")
for r in range(16):
    e(f"v_mov_b32 {v(PB+r)}, 0")
e(f"v_lshrrev_b32 {v(T+11)}, 2, {v(vL)}")
e(f"v_and_b32 {v(T+12)}, 3, {v(vL)}")
e(f"v_lshlrev_b32 {v(T+12)}, 4, {v(T+12)}")
e(f"v_mul_u32_u24 {v(T+13)}, 3584, {v(T+11)}")
e(f"v_add_u32 {v(T+13)}, {v(T+13)}, {v(T+12)}")
e(f"s_lshl_b32 {s(sT3)}, {s(sKQ)}, 3")
e(f"s_add_u32 {s(sT3)}, {s(sT3)}, {s(sW)}")
e(f"s_mul_i32 {s(sT3)}, {s(sT3)}, {16*3584}")
e(f"s_mul_i32 {s(sT1)}, {s(sG)}, 448")
e(f"s_add_u32 {s(sT3)}, {s(sT3)}, {s(sT1)}")
e(f"s_lshr_b32 {s(sT0)}, {s(sI)}, 2")
e(f"s_min_u32 {s(sT0)}, {s(sT0)}, 6")
e(f"s_lshl_b32 {s(sT0)}, {s(sT0)}, 6")
e(f"s_add_u32 {s(sT3)}, {s(sT3)}, {s(sT0)}")
e(f"s_lshl_b32 {s(sT0)}, {s(sW)}, 10")
e(f"s_add_u32 {s(sT2)}, {s(sT0)}, {L_W1}")
e(f"s_mov_b32 m0, {s(sT2)}")
e(f"s_waitcnt vmcnt({D-1})")
e(f"buffer_load_dwordx4 {v(T+13)}, {s(sW1,4)}, {s(sT3)} offen nt lds")
e(f"v_lshl_add_u32 {v(T+13)}, {v(T+11)}, 10, {v(T+12)}")
e(f"s_mul_i32 {s(sT3)}, {s(sG)}, {224*1024}")
e(f"s_mul_i32 {s(sT2)}, {s(sKH)}, {96*1024}")
e(f"s_add_u32 {s(sT3)}, {s(sT3)}, {s(sT2)}")
e(f"s_lshl_b32 {s(sT2)}, {s(sW)}, 14")
e(f"s_add_u32 {s(sT3)}, {s(sT3)}, {s(sT2)}")
e(f"s_lshr_b32 {s(sT2)}, {s(sI)}, 1")
e(f"s_lshl_b32 {s(sT2)}, {s(sT2)}, 6")
e(f"s_add_u32 {s(sT3)}, {s(sT3)}, {s(sT2)}")
e(f"s_add_u32 {s(sT2)}, {s(sT0)}, {L_W2}")
e(f"s_mov_b32 m0, {s(sT2)}")
e(f"s_waitcnt vmcnt({D-1})")
e(f"buffer_load_dwordx4 {v(T+13)}, {s(sW2,4)}, {s(sT3)} offen nt lds")
e(f"s_cmp_ge_u32 {s(sW)}, 4")
e("s_cbranch_scc1 L_SM2")
e(f"s_mul_i32 {s(sT2)}, {s(sKH)}, 192")
e(f"s_add_u32 {s(sT1)}, {s(sT1)}, {s(sT2)}")
e(f"buffer_load_dword {v(BIA)}, {v(aL4)}, {s(sB1,4)}, {s(sT1)} offen")
e(f"buffer_load_dword {v(RES)}, {v(aXN)}, {s(sX,4)}, 0 offen")
e("s_branch L_QBAR0")
lab("L_SM2")
e(f"s_cmp_eq_u32 {s(sW)}, 7")
e("s_cbranch_scc1 L_QT0")
e(f"v_and_b32 {v(T+11)}, 0x3ff, {v(aXN)}")
e(f"buffer_load_dword {v(BIA)}, {v(T+11)}, {s(sB2,4)}, 0 offen")
e("s_branch L_QBAR0")
lab("L_QT0")
c("---------------- wave 7: tagged q poll (4 x 2 KB of granules of this batch + 32 XCC granules + nonce)")
e(f"s_lshl_b32 {s(sT0)}, {s(sB)}, 11")
e(f"s_add_u32 {s(sT0)}, {s(sT0)}, {s(sTB)}")
e(f"v_and_b32 {v(T+11)}, 31, {v(vL)}")
e(f"v_lshlrev_b32 {v(T+11)}, 3, {v(T+11)}")
e(f"v_add_u32 {v(T+11)}, 32768, {v(T+11)}")
e(f"v_mov_b32 {v(T+12)}, 0")
e(f"s_mov_b32 {s(sCNT)}, 0")
QT = VT
lab("L_QT")
e(f"s_mov_b32 {s(sT1)}, {s(sT0)}")
for k in range(4):
    e(f"buffer_load_dwordx4 {v(QT+8*k,4)}, {v(aL16)}, {s(sWS,4)}, {s(sT1)} offen sc1")
    e(f"buffer_load_dwordx4 {v(QT+8*k+4,4)}, {v(aL16)}, {s(sWS,4)}, {s(sT1)} offen offset:1024 sc1")
    if k < 3: e(f"s_add_u32 {s(sT1)}, {s(sT1)}, 8192")
e(f"buffer_load_dwordx2 {v(QF+8,2)}, {v(T+11)}, {s(sWS,4)}, {s(sTB)} offen sc1")
e(f"buffer_load_dword {v(QF+10)}, {v(T+12)}, {s(sDBG,4)}, 0 offen sc1")
e("s_waitcnt vmcnt(0)")
e(f"v_readfirstlane_b32 {s(sNONCE)}, {v(QF+10)}")
e(f"v_xor_b32 {v(QF+11)}, {v(QF+10)}, {v(QF+9)}")
for k in range(8):
    e(f"v_xor_b32 {v(QF+12)}, {v(QF+10)}, {v(QT+4*k+1)}")
    e(f"v_xor_b32 {v(QF+13)}, {v(QF+10)}, {v(QT+4*k+3)}")
    e(f"v_or3_b32 {v(QF+11)}, {v(QF+11)}, {v(QF+12)}, {v(QF+13)}")
e(f"v_cmp_ne_u32 vcc, 0, {v(QF+11)}")
e(f"s_add_u32 {s(sCNT)}, {s(sCNT)}, 1")
e(f"s_cmp_ge_u32 {s(sCNT)}, {SPIN_MAX}")
e("s_cbranch_scc1 L_QT_DONE")
e("s_cbranch_vccnz L_QT")
e(f"s_cmp_eq_u32 {s(sNONCE)}, 0")
e("s_cbranch_scc1 L_QT")
lab("L_QT_DONE")
stamp(4)
for j in range(4):
    d0 = QT + 2*j
    e(f"v_lshlrev_b32 {v(ACC)}, 16, {v(d0)}")
    e(f"v_and_b32 {v(ACC+1)}, 0xffff0000, {v(d0)}")
    for k in range(1, 4):
        e(f"v_lshlrev_b32 {v(ACC+2)}, 16, {v(d0+8*k)}")
        e(f"v_and_b32 {v(ACC+3)}, 0xffff0000, {v(d0+8*k)}")
        e(f"v_pk_add_f32 {v(ACC,2)}, {v(ACC,2)}, {v(ACC+2,2)}")
    e(f"v_cvt_pk_bf16_f32 {v(QF+j)}, {v(ACC)}, {v(ACC+1)}")
e(f"v_lshrrev_b32 {v(T+11)}, 5, {v(vL)}")
e(f"v_mul_u32_u24 {v(T+11)}, 272, {v(T+11)}")
e(f"v_and_b32 {v(T+12)}, 31, {v(vL)}")
e(f"v_lshl_add_u32 {v(T+11)}, {v(T+12)}, 3, {v(T+11)}")
e(f"ds_write_b64 {v(T+11)}, {v(QF,2)} offset:{L_Q}")
e(f"ds_write_b64 {v(T+11)}, {v(QF+2,2)} offset:{L_Q+544}")
e(f"v_cmp_ne_u32 vcc, {s(sXCC)}, {v(QF+8)}")
e(f"s_cmp_eq_u64 vcc, 0")
e(f"s_cselect_b32 {s(sFAST)}, 1, 0")
e(f"v_mov_b32 {v(T+12)}, {s(sFAST)}")
e(f"v_mov_b32 {v(T+13)}, {L_Q + 256}")
e(f"ds_write_b32 {v(T+13)}, {v(T+12)}")
e(f"s_cmp_lg_u32 {s(sI)}, 0")
e("s_cbranch_scc1 L_NOLEAD")
c("group leader announces 'group g has pre-filled' to the other groups")
e(f"s_lshl_b32 {s(sT3)}, {s(sG)}, 2")
e(f"v_mov_b32 {v(T+12)}, 1")
e(f"v_mov_b32 {v(T+13)}, {s(sT3)}")
e("s_mov_b64 exec, 1")
e(f"buffer_store_dword {v(T+12)}, {v(T+13)}, {s(sDBG,4)}, 0 offen offset:128 sc1")
e("s_mov_b64 exec, -1")
lab("L_NOLEAD")
if OPT["touch"]:
    e(f"s_mul_i32 {s(sT0)}, {s(sI)}, {PF}")
    e(f"s_add_u32 {s(sT0)}, {s(sT0)}, {s(sGB)}")
    e(f"v_lshlrev_b32 {v(T+12)}, 7, {v(vL)}")
    e(f"buffer_load_dword {v(WB)}, {v(T+12)}, {s(sWS,4)}, {s(sT0)} offen sc1")
    e(f"s_add_u32 {s(sT0)}, {s(sT0)}, 8192")
    e("s_mov_b64 exec, 3")
    e(f"buffer_load_dword {v(WB+1)}, {v(T+12)}, {s(sWS,4)}, {s(sT0)} offen sc1")
    e("s_mov_b64 exec, -1")
e("s_waitcnt lgkmcnt(0)")
lab("L_QBAR0")
e("s_barrier")
e(f"v_mov_b32 {v(T+13)}, {L_Q + 256}")
e(f"ds_read_b32 {v(T+12)}, {v(T+13)}")
e("s_waitcnt lgkmcnt(0)")
e(f"v_readfirstlane_b32 {s(sFAST)}, {v(T+12)}")
stamp(2)

lab("L_LOOP")
c("---------------- P2: attention over this wave's 32 keys")
e(f"v_add_u32 {v(T)}, {s(sROTH)}, {v(aQR)}")
e(f"v_subrev_u32 {v(T+1)}, {s(sROTH)}, {v(aQR)}")
e(f"ds_read_b128 {v(QF,4)}, {v(T)}")
e(f"ds_read_b128 {v(QF+4,4)}, {v(T)} offset:16")
e(f"ds_read_b128 {v(QF+8,4)}, {v(T+1)} offset:128")
e(f"ds_read_b128 {v(QF+12,4)}, {v(T+1)} offset:144")
ST = ACC
for sl in range(4):
    e(f"s_waitcnt lgkmcnt({3-sl})")
    for t in range(2):
        mfma(ST+4*t, KF + 4*(t*4+sl), QF + 4*sl, None if sl == 0 else ST+4*t)
stamp(16)
nop(8)
e(f"v_max3_f32 {v(T)}, {v(ST)}, {v(ST+1)}, {v(ST+2)}")
e(f"v_max3_f32 {v(T+1)}, {v(ST+3)}, {v(ST+4)}, {v(ST+5)}")
e(f"v_max3_f32 {v(T)}, {v(T)}, {v(ST+6)}, {v(ST+7)}")
e(f"v_max_f32 {v(T)}, {v(T)}, {v(T+1)}")
e(f"v_mov_b32 {v(T+1)}, {v(T)}")
nop(2)
e(f"v_permlane16_swap_b32 {v(T)}, {v(T+1)}")
nop(1)
e(f"v_max_f32 {v(T)}, {v(T)}, {v(T+1)}")
e(f"v_mov_b32 {v(T+1)}, {v(T)}")
nop(2)
e(f"v_permlane32_swap_b32 {v(T)}, {v(T+1)}")
nop(1)
e(f"v_max_f32 {v(T)}, {v(T)}, {v(T+1)}")
e(f"v_mul_f32 {v(vMW)}, {s(sC)}, {v(T)}")
stamp(17)
e(f"ds_write_b32 {v(aMXW)}, {v(vMW)}")
for r in range(8):
    e(f"v_fma_f32 {v(ST+r)}, {v(ST+r)}, {s(sC)}, -{v(vMW)}")
for r in range(8):
    e(f"v_exp_f32 {v(ST+r)}, {v(ST+r)}")
nop(1)
for a in range(4):
    e(f"s_mov_b64 exec, {s(sMA[a],2)}")
    for j in range(4):
        e(f"v_cvt_pk_bf16_f32 {v(PB+4*a+j)}, {v(ST+2*j)}, {v(ST+2*j+1)}")
e("s_mov_b64 exec, -1")
e(f"s_cmp_lg_u32 {s(sLAYER)}, 0")
e("s_cbranch_scc1 L_PV")
c("first layer only: V has to land, then transpose it in registers")
e("s_waitcnt vmcnt(4)")
stamp(14)
for p in range(4):
    for cc in range(4):
        a = VR + 4*(2*p) + cc; b = VR + 4*(2*p+1) + cc
        e(f"v_perm_b32 {v(VT+4*(2*cc)+p)}, {v(b)}, {v(a)}, {s(sPLO)}")
        e(f"v_perm_b32 {v(VT+4*(2*cc+1)+p)}, {v(b)}, {v(a)}, {s(sPHI)}")
lab("L_PV")
stamp(18)
nop(2)
OT = ACC + 8
LT = ACC
for a in range(4):
    for u in range(2):
        mfma(OT+4*u, VT + 4*(4*u+a), PB + 4*a, None if a == 0 else OT+4*u)
mfma(LT, ONE, PB, None)
stamp(19)
nop(6)
e(f"ds_write_b128 {v(aOW)}, {v(OT,4)}")
e(f"ds_write_b128 {v(aOW)}, {v(OT+4,4)} offset:1088")
e("s_mov_b64 exec, 15")
e(f"ds_write_b32 {v(aMXW)}, {v(LT)} offset:128")
e("s_mov_b64 exec, -1")
stamp(21)
e("s_waitcnt vmcnt(0) lgkmcnt(0)")
e("s_barrier")
stamp(5)
e(f"s_cmp_gt_u32 {s(sW)}, 4")
e("s_cbranch_scc1 L_P2_B2")
e(f"ds_read_b128 {v(T,4)}, {v(aMX)}")
e(f"ds_read_b128 {v(T+4,4)}, {v(aMX)} offset:16")
e(f"s_cmp_eq_u32 {s(sW)}, 4")
e("s_cbranch_scc1 L_P2_B")
for k in range(4):
    e(f"ds_read2st64_b64 {v(VR+4*k,4)}, {v(aOR)} offset0:{10*k} offset1:{10*k+5}")
e("s_waitcnt lgkmcnt(4)")
def factors():
    e(f"v_max3_f32 {v(T+8)}, {v(T)}, {v(T+1)}, {v(T+2)}")
    e(f"v_max3_f32 {v(T+9)}, {v(T+3)}, {v(T+4)}, {v(T+5)}")
    e(f"v_max3_f32 {v(T+8)}, {v(T+8)}, {v(T+6)}, {v(T+7)}")
    e(f"v_max_f32 {v(T+8)}, {v(T+8)}, {v(T+9)}")
    for k in range(8):
        e(f"v_sub_f32 {v(T+k)}, {v(T+k)}, {v(T+8)}")
    for k in range(8):
        e(f"v_exp_f32 {v(T+k)}, {v(T+k)}")
factors()
e("s_waitcnt lgkmcnt(0)")
e(f"v_mul_f32 {v(VR)}, {v(VR)}, {v(T)}")
e(f"v_mul_f32 {v(VR+1)}, {v(VR+1)}, {v(T)}")
for k in range(1, 8):
    e(f"v_fmac_f32 {v(VR)}, {v(VR+2*k)}, {v(T+k)}")
    e(f"v_fmac_f32 {v(VR+1)}, {v(VR+2*k+1)}, {v(T+k)}")
e(f"v_cvt_pk_bf16_f32 {v(T+9)}, {v(VR)}, {v(VR+1)}")
e(f"v_min_u32 {v(T+9)}, -2, {v(T+9)}")
store_intra("buffer_store_dword", v(T+9), aOST, sLB, 0)
e(f"s_cmp_lg_u32 {s(sLAYER)}, 0")
e("s_cbranch_scc1 L_P3")
c("first layer only: wo and wq fragments out of LDS")
e(f"v_lshrrev_b32 {v(T+4)}, 5, {v(vL)}")
e(f"v_lshlrev_b32 {v(T+4)}, 12, {v(T+4)}")
e(f"v_bfe_u32 {v(T+5)}, {v(vL)}, 4, 1")
e(f"v_lshl_add_u32 {v(T+4)}, {v(T+5)}, 8, {v(T+4)}")
e(f"v_bfe_u32 {v(T+5)}, {v(vL)}, 2, 2")
e(f"v_lshl_add_u32 {v(T+4)}, {v(T+5)}, 10, {v(T+4)}")
e(f"v_and_b32 {v(T+5)}, 3, {v(vL)}")
e(f"v_lshlrev_b32 {v(T+5)}, 3, {v(T+5)}")
e(f"s_lshl_b32 {s(sT3)}, {s(sW)}, 5")
e(f"v_add_u32 {v(T+5)}, {s(sT3)}, {v(T+5)}")
e(f"v_add_u32 {v(T+4)}, {v(T+4)}, {v(T+5)}")
for ks in range(4):
    o = L_WO + (64*(ks & 1) + 4*(ks >> 1)) * 128
    e(f"ds_read_b64_tr_b16 {v(WB+4*ks,2)}, {v(T+4)} offset:{o}")
    e(f"ds_read_b64_tr_b16 {v(WB+4*ks+2,2)}, {v(T+4)} offset:{o+128}")
e(f"v_lshl_add_u32 {v(T+4)}, {v(TRR)}, 7, {v(T+5)}")
for ks in range(4):
    e(f"ds_read_b64_tr_b16 {v(WA+4*ks,2)}, {v(T+4)} offset:{L_WQ + 4096*ks}")
    e(f"ds_read_b64_tr_b16 {v(WA+4*ks+2,2)}, {v(T+4)} offset:{L_WQ + 4096*ks + 512}")
e(f"v_and_b32 {v(BIA+1)}, 0xffff0000, {v(BIA)}")
e(f"v_lshlrev_b32 {v(BIA)}, 16, {v(BIA)}")
e(f"v_and_b32 {v(RES+1)}, 0xffff0000, {v(RES)}")
e(f"v_lshlrev_b32 {v(RES)}, 16, {v(RES)}")
e("s_branch L_P3")
lab("L_P2_B")
e(f"ds_read_b128 {v(VR,4)}, {v(aMX)} offset:128")
e(f"ds_read_b128 {v(VR+4,4)}, {v(aMX)} offset:144")
e("s_waitcnt lgkmcnt(2)")
factors()
e("s_waitcnt lgkmcnt(0)")
e(f"v_mul_f32 {v(T+9)}, {v(VR)}, {v(T)}")
for k in range(1, 8):
    e(f"v_fmac_f32 {v(T+9)}, {v(VR+k)}, {v(T+k)}")
e("s_mov_b64 exec, 15")
store_intra("buffer_store_dwordx2", v(T+8,2), aOST, sLB, 0)
e("s_mov_b64 exec, -1")
lab("L_P2_B2")
e(f"s_cmp_lg_u32 {s(sLAYER)}, 0")
e("s_cbranch_scc1 L_P3")
c("first layer only: w1 (waves 4,5) / w2 (waves 6,7) fragments: rows of 64 B, ct = w&1")
e(f"v_and_b32 {v(T+5)}, 3, {v(vL)}")
e(f"v_lshlrev_b32 {v(T+5)}, 3, {v(T+5)}")
e(f"v_lshl_add_u32 {v(T+4)}, {v(TRR)}, 6, {v(T+5)}")
e(f"s_and_b32 {s(sT3)}, {s(sW)}, 1")
e(f"s_lshl_b32 {s(sT3)}, {s(sT3)}, 5")
e(f"s_and_b32 {s(sT0)}, {s(sW)}, 2")
e(f"s_lshl_b32 {s(sT0)}, {s(sT0)}, 12")
e(f"s_add_u32 {s(sT3)}, {s(sT3)}, {s(sT0)}")
e(f"v_add_u32 {v(T+4)}, {s(sT3)}, {v(T+4)}")
for ks in range(4):
    e(f"ds_read_b64_tr_b16 {v(WA+4*ks,2)}, {v(T+4)} offset:{L_W1 + 2048*ks}")
    e(f"ds_read_b64_tr_b16 {v(WA+4*ks+2,2)}, {v(T+4)} offset:{L_W1 + 2048*ks + 256}")
e(f"v_and_b32 {v(BIA+1)}, 0xffff0000, {v(BIA)}")
e(f"v_lshlrev_b32 {v(BIA)}, 16, {v(BIA)}")
e(f"s_cmp_ge_u32 {s(sW)}, 6")
e("s_cbranch_scc1 L_P3")
e(f"s_cmp_ge_u32 {s(sI)}, 28")
e("s_cbranch_scc1 L_P3")
colsum_store(sLB)

lab("L_P3")
c("---------------- P3: split-softmax combine folded into o @ wo")
stamp(6)
e(f"s_lshl_b32 {s(sT0)}, {s(sB)}, 13")
e(f"s_lshl_b32 {s(sT1)}, {s(sW)}, 10")
e(f"s_add_u32 {s(sT0)}, {s(sT0)}, {s(sT1)}")
e(f"s_add_u32 {s(sT0)}, {s(sT0)}, {s(sLB)}")
e(f"s_add_u32 {s(sT0)}, {s(sT0)}, {OB_OFF}")
e(f"s_cmp_eq_u32 {s(sW)}, 7")
e("s_cbranch_scc1 L_P3_W7")
poll(lambda: e(f"buffer_load_dwordx4 {v(T,4)}, {v(aL16)}, {s(sWS,4)}, {s(sT0)} offen sc1"), range(T, T+4), T+4)
stamp(22)
e(f"ds_write_b128 {v(aAFW)}, {v(T,4)}")
e("s_branch L_P3_BAR")
lab("L_P3_W7")
e(f"s_lshl_b32 {s(sT1)}, {s(sB)}, 8")
e(f"s_add_u32 {s(sT1)}, {s(sT1)}, {s(sLB)}")
e(f"s_add_u32 {s(sT1)}, {s(sT1)}, {ML_OFF}")
e(f"v_and_b32 {v(T+9)}, 0xff, {v(aL16)}")
def issue_oml():
    e(f"buffer_load_dwordx4 {v(T,4)}, {v(aL16)}, {s(sWS,4)}, {s(sT0)} offen sc1")
    e(f"buffer_load_dwordx4 {v(T+4,4)}, {v(T+9)}, {s(sWS,4)}, {s(sT1)} offen sc1")
poll(issue_oml, range(T, T+8), T+8)
stamp(22)
e(f"ds_write_b128 {v(aAFW)}, {v(T,4)}")
e(f"ds_write_b128 {v(T+9)}, {v(T+4,4)} offset:{L_ML}")
lab("L_P3_BAR")
stamp(23)
e("s_waitcnt lgkmcnt(0)")
e("s_barrier")
stamp(24)
e(f"s_cmp_ge_u32 {s(sW)}, 4")
e("s_cbranch_scc1 L_P5")
e(f"ds_read2_b64 {v(T,4)}, {v(aMLR)} offset0:0 offset1:4")
for ks in range(4):
    for sh in range(2):
        e(f"ds_read_b128 {v(VR+4*(sh*4+ks),4)}, {v(aAFR)} offset:{sh*16*272 + ks*64}")
e("s_waitcnt lgkmcnt(8)")
e(f"v_max_f32 {v(T+4)}, {v(T)}, {v(T+2)}")
nop(2)
e(f"v_max_f32_dpp {v(T+4)}, {v(T+4)}, {v(T+4)} quad_perm:[1,0,3,2] row_mask:0xf bank_mask:0xf")
nop(2)
e(f"v_max_f32_dpp {v(T+4)}, {v(T+4)}, {v(T+4)} quad_perm:[2,3,0,1] row_mask:0xf bank_mask:0xf")
e(f"v_sub_f32 {v(T)}, {v(T)}, {v(T+4)}")
e(f"v_sub_f32 {v(T+2)}, {v(T+2)}, {v(T+4)}")
e(f"v_exp_f32 {v(T)}, {v(T)}")
e(f"v_exp_f32 {v(T+2)}, {v(T+2)}")
for ks in range(4):
    e(f"s_waitcnt lgkmcnt({6-2*ks})")
    for sh in range(2):
        mfma(ACC+4*sh, WB + 4*ks, VR + 4*(sh*4+ks), None if ks == 0 else ACC+4*sh)
e(f"v_mul_f32 {v(T+4)}, {v(T)}, {v(T+1)}")
e(f"v_fmac_f32 {v(T+4)}, {v(T+2)}, {v(T+3)}")
nop(2)
e(f"v_add_f32_dpp {v(T+4)}, {v(T+4)}, {v(T+4)} quad_perm:[1,0,3,2] row_mask:0xf bank_mask:0xf")
nop(2)
e(f"v_add_f32_dpp {v(T+4)}, {v(T+4)}, {v(T+4)} quad_perm:[2,3,0,1] row_mask:0xf bank_mask:0xf")
e(f"v_rcp_f32 {v(T+4)}, {v(T+4)}")
nop(1)
e(f"v_mul_f32 {v(T)}, {v(T)}, {v(T+4)}")
e(f"v_mul_f32 {v(T+2)}, {v(T+2)}, {v(T+4)}")
for r in range(4):
    e(f"v_mul_f32 {v(ACC+r)}, {v(ACC+r)}, {v(T)}")
for r in range(4):
    e(f"v_fmac_f32 {v(ACC+r)}, {v(ACC+4+r)}, {v(T+2)}")
for r in range(4):
    e(f"v_add_f32_dpp {v(ACC+r)}, {v(ACC+r)}, {v(ACC+r)} quad_perm:[1,0,3,2] row_mask:0xf bank_mask:0xf")
for r in range(4):
    e(f"v_add_f32_dpp {v(ACC+r)}, {v(ACC+r)}, {v(ACC+r)} quad_perm:[2,3,0,1] row_mask:0xf bank_mask:0xf")
set_exec(0x11111111, 0x11111111)
e(f"buffer_store_dwordx4 {v(ACC,4)}, {v(aP3S)}, {s(sWS,4)}, {s(sLB)} offen sc1")
e("s_mov_b64 exec, -1")
stamp(7)
e(f"s_cmp_lg_u32 {s(sW)}, 3")
e("s_cbranch_scc1 L_G5")
c("---------------- P4 (wave 3): x1 slice = x + sum over 32 heads")
e(f"v_lshlrev_b32 {v(T+6)}, 3, {v(vL)}")
e(f"s_cmp_lg_u32 {s(sLAYER)}, 0")
e("s_cbranch_scc1 L_P4_L1")
e(f"v_and_b32 {v(T+4)}, 7, {v(vL)}")
e(f"v_lshlrev_b32 {v(T+4)}, 2, {v(T+4)}")
e(f"s_mov_b32 {s(sCNT)}, 0")
lab("L_GFLAG")
e(f"buffer_load_dword {v(T+5)}, {v(T+4)}, {s(sDBG,4)}, 0 offen offset:128 sc1")
e("s_waitcnt vmcnt(0)")
e(f"v_cmp_eq_u32 vcc, 0, {v(T+5)}")
e("s_cbranch_vccz L_P4_GO")
e(f"s_add_u32 {s(sCNT)}, {s(sCNT)}, 1")
e(f"s_cmp_lt_u32 {s(sCNT)}, {SPIN_MAX}")
e("s_cbranch_scc1 L_GFLAG")
e("s_branch L_P4_GO")
lab("L_P4_L1")
e(f"ds_read_b64 {v(RES,2)}, {v(T+6)} offset:{L_RES}")
if OPT["d4"]:
    e(f"s_sleep {OPT['d4']}")
lab("L_P4_GO")
reduce_slice(8, X1P_OFF, GSZ, False)
set_exec(0xffff, 0xffff)
store_intra("buffer_store_dword", v(T), aXS, sLB, X1_OFF)
e("s_mov_b64 exec, -1")
e(f"ds_write_b64 {v(T+6)}, {v(RES,2)} offset:{L_RES}")
stamp(8)
lab("L_G5")
e(f"s_cmp_lg_u32 {s(sLAYER)}, 0")
e("s_cbranch_scc1 L_G5b")
c("first layer only: waves 0-3 publish the column sums of their wq tile and fetch those of w1")
e(f"s_add_u32 {s(sT0)}, {s(sGB)}, {QP_OFF}")
colsum_store(sT0)
e(f"s_add_u32 {s(sT0)}, {s(sLB)}, {HP_OFF}")
e(f"s_lshl_b32 {s(sT3)}, {s(sW)}, 10")
e(f"s_sub_u32 {s(sT3)}, 4096, {s(sT3)}")
e(f"v_add_u32 {v(T+3)}, {s(sT3)}, {v(aSG)}")
colsum_fetch(sT0, 5120, T+3)
lab("L_G5b")
e("s_waitcnt lgkmcnt(0)")
e("s_branch L_BAR5")
lab("L_P5")
c("---------------- waves 4-7: x1 image -> LDS")
e(f"s_lshl_b32 {s(sT0)}, {s(sWV)}, 10")
e(f"s_add_u32 {s(sT0)}, {s(sT0)}, {s(sLB)}")
poll_x(sT0)
stamp(27)
lab("L_BAR5")
e("s_barrier")
stamp(9)
e(f"s_cmp_lt_u32 {s(sW)}, 4")
e("s_cbranch_scc1 L_HSUM")
e(f"s_cmp_ge_u32 {s(sW)}, 6")
e("s_cbranch_scc1 L_CSQ")
e(f"s_cmp_ge_u32 {s(sI)}, 28")
e("s_cbranch_scc1 L_CSQ")
c("---------------- P5 (waves 4,5): raw x1 @ w1 partial of this tile")
gemv_mma_store(sLB)
stamp(10)
lab("L_CSQ")
e(f"s_cmp_lg_u32 {s(sLAYER)}, 0")
e("s_cbranch_scc1 L_BARH")
c("first layer only: waves 4-7 fetch the column sums of wq")
e(f"s_add_u32 {s(sT0)}, {s(sGB)}, {QP_OFF}")
e(f"s_lshl_b32 {s(sT3)}, {s(sB)}, 11")
e(f"s_sub_u32 {s(sT3)}, 8192, {s(sT3)}")
e(f"v_add_u32 {v(T+3)}, {s(sT3)}, {v(aSG)}")
colsum_fetch(sT0, 10240, T+3)
e("s_branch L_BARH")
lab("L_HSUM")
c("---------------- waves 0-3: h = gelu(LN(LN(x1)) @ w1 + b1) for 128 units x batch w")
e(f"s_add_u32 {s(sT0)}, {s(sLB)}, {HP_OFF}")
sum_partials(sT0, 5120, True)
stamp(28)
K0 = -2.0 * math.log2(math.e) * math.sqrt(2.0 / math.pi)
for r in range(2):
    e(f"v_add_f32 {v(T+r)}, {v(T+r)}, {v(BIA+r)}")
for r in range(2):
    e(f"v_mul_f32 {v(T+2+r)}, {v(T+r)}, {v(T+r)}")
for r in range(2):
    e(f"v_mov_b32 {v(T+4+r)}, {f32(K0)}")
    e(f"v_fmac_f32 {v(T+4+r)}, {f32(K0*0.044715)}, {v(T+2+r)}")
for r in range(2):
    e(f"v_mul_f32 {v(T+4+r)}, {v(T+4+r)}, {v(T+r)}")
for r in range(2):
    e(f"v_exp_f32 {v(T+4+r)}, {v(T+4+r)}")
nop(1)
for r in range(2):
    e(f"v_add_f32 {v(T+4+r)}, 1.0, {v(T+4+r)}")
for r in range(2):
    e(f"v_rcp_f32 {v(T+4+r)}, {v(T+4+r)}")
nop(1)
for r in range(2):
    e(f"v_mul_f32 {v(T+r)}, {v(T+r)}, {v(T+4+r)}")
e(f"v_cvt_pk_bf16_f32 {v(T)}, {v(T)}, {v(T+1)}")
e(f"ds_write_b32 {v(aSW)}, {v(T)}")
e("s_waitcnt lgkmcnt(0)")
lab("L_BARH")
e("s_barrier")
stamp(20)
e(f"s_cmp_lt_u32 {s(sW)}, 6")
e("s_cbranch_scc1 L_NEXT")
c("---------------- P6 (waves 6,7): h[128 units] @ w2 tile -> partial x2")
for ks in range(4):
    e(f"ds_read_b128 {v(VR+4*ks,4)}, {v(aHR)} offset:{64*ks}")
e("s_waitcnt lgkmcnt(2)")
mfma(ACC, WA+4, VR+4, None)
e("s_waitcnt lgkmcnt(1)")
mfma(ACC, WA+8, VR+8, ACC)
e("s_waitcnt lgkmcnt(0)")
mfma(ACC, WA+12, VR+12, ACC)
e(f"s_cmp_lg_u32 {s(sKH)}, 0")
e("s_cbranch_scc1 L_P6_S")
mfma(ACC, WA, VR, ACC)
lab("L_P6_S")
nop(8)
e(f"s_mov_b64 exec, {s(sMA[0],2)}")
e(f"buffer_store_dwordx4 {v(ACC,4)}, {v(aPS)}, {s(sWS,4)}, {s(sLB)} offen sc1")
e("s_mov_b64 exec, -1")
stamp(11)
e(f"s_cmp_lg_u32 {s(sW)}, 6")
e("s_cbranch_scc1 L_NEXT")
c("---------------- P7 (wave 6): x2 slice = x1 + b2 + sum over 16 partials")
e(f"v_lshlrev_b32 {v(T+6)}, 3, {v(vL)}")
e(f"ds_read_b64 {v(RES,2)}, {v(T+6)} offset:{L_RES}")
e(f"s_cmp_eq_u32 {s(sLAYER)}, 0")
e("s_cbranch_scc1 L_P7_GO")
e(f"s_cmp_lg_u32 {s(sS)}, {s(sG)}")
e("s_cbranch_scc1 L_END")
lab("L_P7_GO")
if OPT["d7"]:
    e(f"s_sleep {OPT['d7']}")
reduce_slice(4, X2P_OFF, 2*GSZ, True)
set_exec(0xffff, 0xffff)
e(f"s_cmp_eq_u32 {s(sLAYER)}, 0")
e("s_cbranch_scc1 L_P7_MID")
e(f"buffer_store_dword {v(T)}, {v(aXN)}, {s(sOUT,4)}, 0 offen")
stamp(12)
e("s_branch L_END")
lab("L_P7_MID")
e(f"s_add_u32 {s(sT0)}, {s(sLB)}, {X2_OFF}")
store_intra("buffer_store_dword", v(T), aXS, sT0, 0)
e("s_mov_b64 exec, -1")
e(f"ds_write_b64 {v(T+6)}, {v(RES,2)} offset:{L_RES}")
stamp(12)
lab("L_NEXT")
e(f"s_cmp_lg_u32 {s(sLAYER)}, 0")
e("s_cbranch_scc1 L_END")
e(f"s_cmp_ge_u32 {s(sW)}, 4")
e("s_cbranch_scc1 L_BAR1")
c("---------------- waves 0-3: x2 image -> LDS")
e(f"s_lshl_b32 {s(sT0)}, {s(sWV)}, 10")
e(f"s_add_u32 {s(sT0)}, {s(sT0)}, {s(sLB)}")
e(f"s_add_u32 {s(sT0)}, {s(sT0)}, {X2_OFF}")
poll_x(sT0)
stamp(29)
lab("L_BAR1")
e(f"s_mov_b32 {s(sLAYER)}, 1")
e(f"s_add_u32 {s(sLB)}, {s(sLB)}, {LSZ}")
e(f"s_mov_b32 {s(sLO)}, {LSZ}")
if OPT["stamps"]:
    e(f"v_mov_b32 {v(vSTAMP0)}, {v(vSTAMP)}")
    e(f"v_mov_b32 {v(vSTAMP)}, 0")
e("s_waitcnt lgkmcnt(0)")
e("s_barrier")
stamp(1)
e(f"s_add_u32 {s(sT0)}, {s(sGB)}, {QP_OFF}")
e(f"s_cmp_ge_u32 {s(sW)}, 4")
e("s_cbranch_scc1 L_QSUM")
c("---------------- P1 (waves 0-3): raw x2 @ wq partial of this tile")
gemv_mma_store(sT0)
stamp(3)
e("s_branch L_QBAR")
lab("L_QSUM")
c("---------------- waves 4-7: q = LN(x2) @ wq for head w-4 of this batch")
sum_partials(sT0, 10240, False)
stamp(4)
e(f"v_cvt_pk_bf16_f32 {v(T)}, {v(T)}, {v(T+1)}")
e(f"ds_write_b32 {v(aSW)}, {v(T)}")
e("s_waitcnt lgkmcnt(0)")
lab("L_QBAR")
e("s_barrier")
stamp(2)
e("s_branch L_LOOP")
lab("L_END")
if OPT["stamps"]:
    e("s_mov_b64 exec, -1")
    e("s_cmp_ge_u32 s2, 256")
    e("s_cbranch_scc1 L_END2")
    stamp(13)
    set_exec(0xffffffff, 0)
    e(f"buffer_store_dword {v(vSTAMP0)}, {v(aL4)}, {s(sWS,4)}, {s(sSTB)} offen")
    e(f"buffer_store_dword {v(vSTAMP)}, {v(aL4)}, {s(sWS,4)}, {s(sSTB)} offen offset:128")
    lab("L_END2")
e("s_endpgm")

nv = (NVGPR + 7) // 8 * 8
out.append('.section .rodata,"a"')
out.append(".p2align 6")
out.append(f".amdhsa_kernel {KNAME}")
out.append(f"  .amdhsa_next_free_vgpr {nv}")
out.append(f"  .amdhsa_next_free_sgpr 102")
out.append(f"  .amdhsa_accum_offset {nv}")
out.append("  .amdhsa_group_segment_fixed_size 0")
out.append("  .amdhsa_kernarg_size 104")
out.append("  .amdhsa_user_sgpr_count 2")
out.append("  .amdhsa_user_sgpr_kernarg_segment_ptr 1")
out.append("  .amdhsa_system_sgpr_workgroup_id_x 1")
out.append(".end_amdhsa_kernel")
open(sys.argv[1], "w").write("\n".join(out) + "\n")
print("vgprs", NVGPR, "sgprs", S.n, "lds", LDS_BYTES, "lines", len(out))
```

```python
import sys, struct, math

NAME = "interleave_layers__sliding_block_cached__mixer_channel_mlp__decode"
KNAME = NAME + "_kernel"

OPT = dict(stamps=0, D=4, touch=1, d4=5, d7=5, diag=0)
for a in sys.argv[2:]:
    k, v_ = a.split("=")
    OPT[k] = int(v_)

def f32(x):
    return "0x%08x" % struct.unpack("<I", struct.pack("<f", x))[0]

X1_OFF = 0x0000
X2_OFF = 0x1000
ML_OFF = 0x2000
HP_OFF = 0x3000
OB_OFF = 0x8000
X1P_OFF = 0x10000
X2P_OFF = 0x18000
LSZ = 0x1C000
QP_OFF = 2 * LSZ
GSZ = QP_OFF + 0xA000
PF = GSZ // 32
TAG_BASE = 8 * GSZ
STAMP_BASE = 0x400000
assert TAG_BASE + 8 * 0x10000 <= STAMP_BASE and PF == 8448

L_WQ = 0
L_WO = 16384
L_W1 = 32768
L_W2 = 40960
L_G1 = 49152
L_G5 = 53248
L_H = 57344
L_Q = L_H + 1088
L_MX = L_Q + 1088
L_LS = L_MX + 128
L_ML = L_LS + 128
L_RES = L_ML + 256
L_X0 = L_RES + 512
L_XI = L_X0
assert L_X0 % 16 == 0 and L_X0 + 4096 <= 65536
L_OB = 65536
OSTR = 2560
L_AF = L_OB + 8 * OSTR
LDS_BYTES = L_AF + 32 * 272

SPIN_MAX = 0x20000

class Regs:
    def __init__(self, start, limit, p):
        self.n = start; self.limit = limit; self.p = p
    def alloc(self, cnt=1, align=1):
        self.n = (self.n + align - 1) // align * align
        r = self.n; self.n += cnt
        assert self.n <= self.limit, (self.p, self.n)
        return r

S = Regs(4, 100, "s")
V = Regs(1, 256, "v")
def s(r, n=1): return f"s{r}" if n == 1 else f"s[{r}:{r+n-1}]"
def v(r, n=1): return f"v{r}" if n == 1 else f"v[{r}:{r+n-1}]"

sX, sK, sV, sWQ, sWO, sW1, sB1, sW2, sB2, sOUT, sDBG, sWS = [S.alloc(4, 4) for _ in range(12)]
sW = S.alloc(); sG = S.alloc(); sI = S.alloc(); sB = S.alloc(); sS = S.alloc()
sGB = S.alloc()
sLB = S.alloc()
sLO = S.alloc()
sLAYER = S.alloc(); sFAST = S.alloc(); sNONCE = S.alloc(); sCNT = S.alloc()
sT0 = S.alloc(); sT1 = S.alloc(); sT2 = S.alloc(); sT3 = S.alloc()
sROT = S.alloc(); sROTH = S.alloc(); sKVB = S.alloc()
sC = S.alloc(); sPLO = S.alloc(); sPHI = S.alloc(); sXCC = S.alloc(); sTB = S.alloc()
sKQ = S.alloc(); sWV = S.alloc(); sKH = S.alloc()
sMA = [S.alloc(2, 2) for _ in range(4)]
sM5 = S.alloc(2, 2)
sTM = S.alloc(2, 2); sSTB = S.alloc()
sD0 = S.alloc(); sD1 = S.alloc(); sD2 = S.alloc(); sD3 = S.alloc()

vL = V.alloc(); vMW = V.alloc(); aL4 = V.alloc()
KF = V.alloc(32, 4)
VT = V.alloc(32, 4)
VR = V.alloc(32, 4)
WA = V.alloc(16, 4)
WB = V.alloc(16, 4)
XF = V.alloc(16, 4)
QF = V.alloc(16, 4)
PB = V.alloc(16, 4)
ONE = V.alloc(4, 4)
ACC = V.alloc(16, 4)
T = V.alloc(16, 4)
aQR = V.alloc()
aXF = V.alloc()
aOST = V.alloc()
aAFW = V.alloc(); aAFR = V.alloc(); aMLR = V.alloc()
aP3S = V.alloc()
aRG = V.alloc()
aXN = V.alloc(); aXS = V.alloc()
aPS = V.alloc()
aSG = V.alloc()
aSW = V.alloc()
aXR = V.alloc()
aHR = V.alloc()
aL16 = V.alloc(); aGW = V.alloc()
aOW = V.alloc(); aOR = V.alloc(); aMX = V.alloc(); aMXW = V.alloc()
aTG = V.alloc()
RES = V.alloc(2, 2); BIA = V.alloc(2, 2); CS = V.alloc(2, 2)
vSTAMP = V.alloc(); vSTAMP0 = V.alloc()
NVGPR = V.n

out = []
def e(x): out.append("    " + x)
def lab(x): out.append(x + ":")
def c(x): out.append("    ; " + x)
def nop(n):
    while n > 0:
        k = min(n, 16); e(f"s_nop {k-1}"); n -= k
_uid = [0]
def uid(p="L"):
    _uid[0] += 1
    return f"{p}_{_uid[0]}"

def stamp(idx):
    if not OPT["stamps"]: return
    if idx >= 16 and OPT["stamps"] < 2: return
    if idx in (0, 13):
        e(f"s_memrealtime {s(sTM,2)}")
        e("s_waitcnt lgkmcnt(0)")
        e(f"v_writelane_b32 {v(vSTAMP)}, {s(sTM)}, 15")
    e(f"s_memtime {s(sTM,2)}")
    e("s_waitcnt lgkmcnt(0)")
    e(f"v_writelane_b32 {v(vSTAMP)}, {s(sTM)}, {idx}")

def mfma(d, a, b, cc):
    cs = "0" if cc is None else v(cc, 4)
    e(f"v_mfma_f32_16x16x32_bf16 {v(d,4)}, {v(a,4)}, {v(b,4)}, {cs}")

def set_exec(lo, hi):
    e(f"s_mov_b32 exec_lo, {hex(lo)}")
    e(f"s_mov_b32 exec_hi, {hex(hi)}")

def check_sentinel(regs, tmp):
    regs = list(regs)
    e(f"v_max3_u32 {v(tmp)}, {v(regs[0])}, {v(regs[1])}, {v(regs[2])}")
    rest = regs[3:]
    while len(rest) >= 2:
        e(f"v_max3_u32 {v(tmp)}, {v(tmp)}, {v(rest[0])}, {v(rest[1])}")
        rest = rest[2:]
    if rest:
        e(f"v_max_u32 {v(tmp)}, {v(tmp)}, {v(rest[0])}")
    e(f"v_cmp_eq_u32 vcc, -1, {v(tmp)}")

def poll(issue, regs, tmp):
    top = uid("POLL"); done = uid("POLLD")
    e(f"s_mov_b32 {s(sCNT)}, 0")
    lab(top)
    issue()
    e("s_waitcnt vmcnt(0)")
    check_sentinel(regs, tmp)
    e(f"s_cbranch_vccz {done}")
    e(f"s_add_u32 {s(sCNT)}, {s(sCNT)}, 1")
    e(f"s_cmp_lt_u32 {s(sCNT)}, {SPIN_MAX}")
    e(f"s_cbranch_scc1 {top}")
    lab(done)

def store_intra(op, data, addr, soff, off):
    slow = uid("STS"); done = uid("STD")
    e(f"s_cmp_eq_u32 {s(sFAST)}, 0")
    e(f"s_cbranch_scc1 {slow}")
    e(f"{op} {data}, {v(addr)}, {s(sWS,4)}, {s(soff)} offen offset:{off}")
    e(f"s_branch {done}")
    lab(slow)
    e(f"{op} {data}, {v(addr)}, {s(sWS,4)}, {s(soff)} offen offset:{off} sc1")
    lab(done)

def poll_x(soff):
    poll(lambda: e(f"buffer_load_dwordx4 {v(T+4,4)}, {v(aL16)}, {s(sWS,4)}, {s(soff)} offen sc1"), range(T+4, T+8), T+1)
    e(f"s_lshl_b32 {s(sT3)}, {s(sWV)}, 10")
    e(f"v_add_u32 {v(T+1)}, {s(sT3)}, {v(aL16)}")
    e(f"ds_write_b128 {v(T+1)}, {v(T+4,4)} offset:{L_XI}")
    e("s_waitcnt lgkmcnt(0)")

def gemv_mma_store(soff):
    for ks in range(4):
        e(f"ds_read_b128 {v(XF+4*ks,4)}, {v(aXF)} offset:{L_XI + 256*ks}")
    for ks in range(4):
        e(f"s_waitcnt lgkmcnt({3-ks})")
        mfma(ACC, WA + 4*ks, XF + 4*ks, None if ks == 0 else ACC)
    nop(6)
    e(f"s_mov_b64 exec, {s(sMA[0],2)}")
    store_intra("buffer_store_dwordx4", v(ACC,4), aPS, soff, 0)
    e("s_mov_b64 exec, -1")

def colsum_store(soff):
    e("s_waitcnt lgkmcnt(0)")
    for ks in range(4):
        mfma(ACC, WA + 4*ks, ONE, None if ks == 0 else ACC)
    nop(6)
    set_exec(0x00100010, 0x00100010)
    store_intra("buffer_store_dwordx4", v(ACC,4), aPS, soff, 0)
    e("s_mov_b64 exec, -1")

def colsum_fetch(soff, kq_stride, addr):
    def issue():
        e(f"s_mov_b32 {s(sT1)}, {s(soff)}")
        for k in range(4):
            e(f"buffer_load_dwordx2 {v(VR+2*k,2)}, {v(addr)}, {s(sWS,4)}, {s(sT1)} offen sc1")
            if k < 3: e(f"s_add_u32 {s(sT1)}, {s(sT1)}, {kq_stride}")
    poll(issue, range(VR, VR+8), T+2)
    e(f"v_pk_add_f32 {v(VR,2)}, {v(VR,2)}, {v(VR+2,2)}")
    e(f"v_pk_add_f32 {v(VR+4,2)}, {v(VR+4,2)}, {v(VR+6,2)}")
    e(f"v_pk_add_f32 {v(CS,2)}, {v(VR,2)}, {v(VR+4,2)}")

def wave_sum(r, tmp):
    for m in ("quad_perm:[1,0,3,2]", "quad_perm:[2,3,0,1]", "row_half_mirror", "row_mirror"):
        nop(2)
        e(f"v_add_f32_dpp {v(r)}, {v(r)}, {v(r)} {m} row_mask:0xf bank_mask:0xf")
    for sw in ("v_permlane16_swap_b32", "v_permlane32_swap_b32"):
        e(f"v_mov_b32 {v(tmp)}, {v(r)}")
        nop(2)
        e(f"{sw} {v(r)}, {v(tmp)}")
        nop(1)
        e(f"v_add_f32 {v(r)}, {v(r)}, {v(tmp)}")

def row_stats(double_ln):
    X = QF
    e(f"ds_read_b128 {v(X,4)}, {v(aXR)}")
    e("s_waitcnt lgkmcnt(0)")
    for k in range(4):
        e(f"v_and_b32 {v(X+4+2*k+1)}, 0xffff0000, {v(X+k)}")
        e(f"v_lshlrev_b32 {v(X+4+2*k)}, 16, {v(X+k)}")
    e(f"v_pk_add_f32 {v(X,2)}, {v(X+4,2)}, {v(X+6,2)}")
    e(f"v_pk_add_f32 {v(X+2,2)}, {v(X+8,2)}, {v(X+10,2)}")
    e(f"v_pk_add_f32 {v(X,2)}, {v(X,2)}, {v(X+2,2)}")
    e(f"v_add_f32 {v(T+8)}, {v(X)}, {v(X+1)}")
    wave_sum(T+8, T+5)
    e(f"v_mul_f32 {v(T+8)}, {f32(1/512)}, {v(T+8)}")
    for k in range(8):
        e(f"v_sub_f32 {v(X+4+k)}, {v(X+4+k)}, {v(T+8)}")
    e(f"v_mul_f32 {v(T+4)}, {v(X+4)}, {v(X+4)}")
    for k in range(1, 8):
        e(f"v_fmac_f32 {v(T+4)}, {v(X+4+k)}, {v(X+4+k)}")
    wave_sum(T+4, T+5)
    e(f"v_mul_f32 {v(T+4)}, {f32(1/512)}, {v(T+4)}")
    scale_from_var(T+4, double_ln, T+5)

def scale_from_var(s2, double_ln, tmp):
    e(f"v_add_f32 {v(tmp)}, {f32(1e-5)}, {v(s2)}")
    e(f"v_rsq_f32 {v(tmp)}, {v(tmp)}")
    nop(1)
    if double_ln:
        e(f"v_mul_f32 {v(s2)}, {v(s2)}, {v(tmp)}")
        e(f"v_mul_f32 {v(s2)}, {v(s2)}, {v(tmp)}")
        e(f"v_add_f32 {v(s2)}, {f32(1e-5)}, {v(s2)}")
        e(f"v_rsq_f32 {v(s2)}, {v(s2)}")
        nop(1)
        e(f"v_mul_f32 {v(s2)}, {v(s2)}, {v(tmp)}")
    else:
        e(f"v_mov_b32 {v(s2)}, {v(tmp)}")

def stats_from(s2, s1, double_ln, tmp):
    e(f"v_mul_f32 {v(s1)}, {f32(1/512)}, {v(s1)}")
    e(f"v_mul_f32 {v(s2)}, {f32(1/512)}, {v(s2)}")
    e(f"v_fma_f32 {v(s2)}, -{v(s1)}, {v(s1)}, {v(s2)}")
    e(f"v_max_f32 {v(s2)}, 0, {v(s2)}")
    scale_from_var(s2, double_ln, tmp)

def sum_partials(soff, kq_stride, double_ln):
    row_stats(double_ln)
    e(f"v_mul_f32 {v(T+6)}, {v(T+8)}, {v(CS)}")
    e(f"v_mul_f32 {v(T+7)}, {v(T+8)}, {v(CS+1)}")
    def issue():
        e(f"s_mov_b32 {s(sT1)}, {s(soff)}")
        for k in range(4):
            e(f"buffer_load_dwordx2 {v(VR+2*k,2)}, {v(aSG)}, {s(sWS,4)}, {s(sT1)} offen sc1")
            if k < 3: e(f"s_add_u32 {s(sT1)}, {s(sT1)}, {kq_stride}")
    poll(issue, range(VR, VR+8), T+2)
    e(f"v_pk_add_f32 {v(VR,2)}, {v(VR,2)}, {v(VR+2,2)}")
    e(f"v_pk_add_f32 {v(VR+4,2)}, {v(VR+4,2)}, {v(VR+6,2)}")
    e(f"v_pk_add_f32 {v(VR,2)}, {v(VR,2)}, {v(T+6,2)} neg_lo:[0,1] neg_hi:[0,1]")
    e(f"v_pk_add_f32 {v(VR,2)}, {v(VR,2)}, {v(VR+4,2)}")
    e(f"v_mul_f32 {v(T)}, {v(VR)}, {v(T+4)}")
    e(f"v_mul_f32 {v(T+1)}, {v(VR+1)}, {v(T+4)}")

def reduce_slice(nload, base_off, step, extra_bias):
    def issue():
        e(f"s_add_u32 {s(sT0)}, {s(sLO)}, {base_off}")
        for t in range(nload):
            e(f"buffer_load_dwordx4 {v(VR+4*t,4)}, {v(aRG)}, {s(sWS,4)}, {s(sT0)} offen sc1")
            if t + 1 < nload:
                e(f"s_add_u32 {s(sT0)}, {s(sT0)}, {step}")
    poll(issue, range(VR, VR + 4*nload), T)
    stamp(25 if nload == 8 else 26)
    n = nload
    while n > 1:
        h = n // 2
        for t in range(h):
            e(f"v_pk_add_f32 {v(VR+4*t,2)}, {v(VR+4*t,2)}, {v(VR+4*(t+h),2)}")
            e(f"v_pk_add_f32 {v(VR+4*t+2,2)}, {v(VR+4*t+2,2)}, {v(VR+4*(t+h)+2,2)}")
        n = h
    nop(2)
    e(f"v_permlane32_swap_b32 {v(VR)}, {v(VR+2)}")
    e(f"v_permlane32_swap_b32 {v(VR+1)}, {v(VR+3)}")
    nop(1)
    e(f"v_add_f32 {v(VR)}, {v(VR)}, {v(VR+2)}")
    e(f"v_add_f32 {v(VR+1)}, {v(VR+1)}, {v(VR+3)}")
    e(f"v_mov_b32 {v(VR+2)}, {v(VR)}")
    e(f"v_mov_b32 {v(VR+3)}, {v(VR+1)}")
    nop(2)
    e(f"v_permlane16_swap_b32 {v(VR)}, {v(VR+2)}")
    e(f"v_permlane16_swap_b32 {v(VR+1)}, {v(VR+3)}")
    nop(1)
    e(f"v_add_f32 {v(VR)}, {v(VR)}, {v(VR+2)}")
    e(f"v_add_f32 {v(VR+1)}, {v(VR+1)}, {v(VR+3)}")
    if extra_bias:
        e(f"v_add_f32 {v(VR)}, {v(VR)}, {v(BIA)}")
        e(f"v_add_f32 {v(VR+1)}, {v(VR+1)}, {v(BIA+1)}")
    e(f"v_cvt_pk_bf16_f32 {v(T)}, {v(VR)}, {v(VR+1)}")
    e(f"v_lshlrev_b32 {v(VR)}, 16, {v(T)}")
    e(f"v_and_b32 {v(VR+1)}, 0xffff0000, {v(T)}")
    e("s_waitcnt lgkmcnt(0)")
    e(f"v_add_f32 {v(VR)}, {v(VR)}, {v(RES)}")
    e(f"v_add_f32 {v(VR+1)}, {v(VR+1)}, {v(RES+1)}")
    e(f"v_cvt_pk_bf16_f32 {v(T)}, {v(VR)}, {v(VR+1)}")
    e(f"v_min_u32 {v(T)}, -2, {v(T)}")
    e(f"v_lshlrev_b32 {v(RES)}, 16, {v(T)}")
    e(f"v_and_b32 {v(RES+1)}, 0xffff0000, {v(T)}")

D = OPT["D"]

hdr = open("cdna_kernels/" + NAME + ".s.ref").read().split("\n")
head = [l for l in hdr if l.startswith(";") and "@launch" not in l and "Override launch" not in l and "grid=ceil" not in l]
out.extend(head)
out.append(f"; @launch grid=(256,1,1) block=(512,1,1) lds={LDS_BYTES}")
out.append('.amdgcn_target "amdgcn-amd-amdhsa--gfx950"')
out.append(".text")
out.append(f".globl {KNAME}")
out.append(".p2align 8")
out.append(f".type {KNAME},@function")
lab(KNAME)

e("s_cmp_ge_u32 s2, 256")
e("s_cbranch_scc1 L_END")
for reg, off in ((sWQ,24),(sK,8),(sV,16),(sWS,96),(sX,0),(sWO,32),(sW1,48),(sB1,56),(sW2,64),(sB2,72),(sOUT,80),(sDBG,88)):
    e(f"s_load_dwordx2 {s(reg,2)}, s[0:1], {off}")
for reg, nb in ((sX,4096),(sK,0x4000000),(sV,0x4000000),(sWQ,512*4096*2),(sWO,4096*512*2),(sW1,512*1792*2),(sB1,1792*2),
                (sW2,1792*512*2),(sB2,1024),(sOUT,4096),(sDBG,256),(sWS,0x10000000)):
    e(f"s_mov_b32 {s(reg+2)}, {hex(nb)}")
    e(f"s_mov_b32 {s(reg+3)}, 0x00020000")
e(f"v_lshrrev_b32 {v(T)}, 6, v0")
e(f"v_and_b32 {v(vL)}, 63, v0")
e(f"v_readfirstlane_b32 {s(sW)}, {v(T)}")
e(f"s_and_b32 {s(sG)}, s2, 7")
e(f"s_lshr_b32 {s(sI)}, s2, 3")
e(f"s_lshr_b32 {s(sB)}, {s(sI)}, 3")
e(f"s_and_b32 {s(sS)}, {s(sI)}, 7")
e(f"s_and_b32 {s(sKQ)}, {s(sI)}, 3")
e(f"s_and_b32 {s(sKH)}, {s(sI)}, 1")
e(f"s_and_b32 {s(sWV)}, {s(sW)}, 3")
e(f"v_lshlrev_b32 {v(aL16)}, 4, {v(vL)}")
e(f"s_add_u32 {s(sROT)}, {s(sW)}, s2")
e(f"s_add_u32 {s(sROT)}, {s(sROT)}, {s(sI)}")
e(f"s_and_b32 {s(sROT)}, {s(sROT)}, 7")
e(f"s_lshr_b32 {s(sROTH)}, {s(sW)}, 1")
e(f"s_add_u32 {s(sROTH)}, {s(sROTH)}, {s(sB)}")
e(f"s_and_b32 {s(sROTH)}, {s(sROTH)}, 1")
e(f"s_lshl_b32 {s(sROTH)}, {s(sROTH)}, 7")
e(f"s_lshl_b32 {s(sKVB)}, {s(sB)}, 3")
e(f"s_add_u32 {s(sKVB)}, {s(sKVB)}, {s(sG)}")
e(f"s_lshl_b32 {s(sKVB)}, {s(sKVB)}, 21")
e(f"s_lshl_b32 {s(sT3)}, {s(sS)}, 16")
e(f"s_add_u32 {s(sKVB)}, {s(sKVB)}, {s(sT3)}")
e(f"s_lshl_b32 {s(sT3)}, {s(sW)}, 13")
e(f"s_add_u32 {s(sKVB)}, {s(sKVB)}, {s(sT3)}")
e(f"s_add_u32 {s(sKVB)}, {s(sKVB)}, {6144*256}")
kA = [PB, PB+1]; kAh = [PB+2, PB+3]
e(f"v_and_b32 {v(T+6)}, 3, {v(vL)}")
e(f"v_add_u32 {v(T+6)}, {s(sROT)}, {v(T+6)}")
e(f"v_bfe_u32 {v(T+7)}, {v(vL)}, 2, 1")
e(f"v_lshrrev_b32 {v(T+8)}, 3, {v(vL)}")
e(f"v_lshlrev_b32 {v(T+9)}, 4, {v(T+8)}")
e(f"v_lshl_add_u32 {v(T+9)}, {v(T+7)}, 8, {v(T+9)}")
e(f"v_add_u32 {v(T+9)}, {s(sROTH)}, {v(T+9)}")
for t in range(2):
    e(f"v_add_u32 {v(T+10)}, {4*t}, {v(T+6)}")
    e(f"v_and_b32 {v(T+10)}, 7, {v(T+10)}")
    e(f"v_lshl_add_u32 {v(kA[t])}, {v(T+10)}, 10, {v(T+9)}")
    e(f"v_xor_b32 {v(kAh[t])}, 0x80, {v(kA[t])}")
if OPT["stamps"]:
    e(f"v_mov_b32 {v(vSTAMP)}, 0")
    e(f"v_mov_b32 {v(vSTAMP0)}, 0")

def kslot(t, hf, mh): return KF + 4*(t*4 + hf*2 + mh)
def issue_k(n):
    t, hf, mh = n >> 2, (n >> 1) & 1, n & 1
    a = kA[t] if hf == 0 else kAh[t]
    e(f"buffer_load_dwordx4 {v(kslot(t,hf,mh),4)}, {v(a)}, {s(sK,4)}, {s(sKVB)} offen offset:{512*mh} nt")
def issue_v(i):
    e(f"s_add_u32 {s(sT3)}, {s(sROT)}, {i}")
    e(f"s_and_b32 {s(sT3)}, {s(sT3)}, 7")
    e(f"s_lshl_b32 {s(sT3)}, {s(sT3)}, 10")
    e(f"s_add_u32 {s(sT3)}, {s(sT3)}, {s(sKVB)}")
    e(f"buffer_load_dwordx4 {v(VR+4*i,4)}, {v(aL16)}, {s(sV,4)}, {s(sT3)} offen nt")

e(f"v_and_b32 {v(T+7)}, 7, {v(vL)}")
e(f"v_lshlrev_b32 {v(T+7)}, 4, {v(T+7)}")
e(f"v_lshl_add_u32 {v(T+7)}, {v(T+8)}, 13, {v(T+7)}")
e(f"s_lshl_b32 {s(sT3)}, {s(sG)}, 10")
e(f"s_lshr_b32 {s(sT0)}, {s(sI)}, 2")
e(f"s_lshl_b32 {s(sT0)}, {s(sT0)}, 7")
e(f"s_add_u32 {s(sT3)}, {s(sT3)}, {s(sT0)}")
e(f"s_lshl_b32 {s(sT0)}, {s(sKQ)}, 20")
e(f"s_add_u32 {s(sT3)}, {s(sT3)}, {s(sT0)}")
e(f"s_lshl_b32 {s(sT0)}, {s(sW)}, 17")
e(f"s_add_u32 {s(sT3)}, {s(sT3)}, {s(sT0)}")
e(f"s_lshl_b32 {s(sT0)}, {s(sW)}, 11")
e(f"s_add_u32 {s(sT0)}, {s(sT0)}, {L_WQ}")
e(f"s_mov_b32 m0, {s(sT0)}")
e("s_waitcnt lgkmcnt(0)")
stamp(0)
if OPT["diag"] == 4:
    e(f"s_memrealtime {s(sTM,2)}")
    e("s_waitcnt lgkmcnt(0)")
    e(f"s_mov_b32 {s(sD0)}, {s(sTM)}")
e(f"buffer_load_dwordx4 {v(T+7)}, {s(sWQ,4)}, {s(sT3)} offen nt lds")
e(f"s_add_u32 {s(sT0)}, {s(sT0)}, 1024")
e(f"s_mov_b32 m0, {s(sT0)}")
e(f"s_add_u32 {s(sT3)}, {s(sT3)}, {8*8192}")
e(f"buffer_load_dwordx4 {v(T+7)}, {s(sWQ,4)}, {s(sT3)} offen nt lds")
e(f"s_cmp_ge_u32 {s(sW)}, 4")
e("s_cbranch_scc1 L_NOX")
e(f"s_lshl_b32 {s(sT0)}, {s(sW)}, 10")
e(f"s_add_u32 {s(sT1)}, {s(sT0)}, {L_X0}")
e(f"s_mov_b32 m0, {s(sT1)}")
nop(1)
e(f"buffer_load_dwordx4 {v(aL16)}, {s(sX,4)}, {s(sT0)} offen lds")
lab("L_NOX")
for n in range(D):
    issue_k(n)

e(f"s_mul_i32 {s(sGB)}, {s(sG)}, {GSZ}")
e(f"s_mov_b32 {s(sLB)}, {s(sGB)}")
e(f"s_mov_b32 {s(sLO)}, 0")
e(f"s_mov_b32 {s(sLAYER)}, 0")
e(f"s_mov_b32 {s(sFAST)}, 0")
e(f"s_lshl_b32 {s(sTB)}, {s(sG)}, 16")
e(f"s_add_u32 {s(sTB)}, {s(sTB)}, {TAG_BASE}")
for a in range(4):
    m = 0
    for l in range(64):
        if ((l & 15) >> 2) == a: m |= 1 << l
    e(f"s_mov_b32 {s(sMA[a])}, {hex(m & 0xffffffff)}")
    e(f"s_mov_b32 {s(sMA[a]+1)}, {hex(m >> 32)}")
e(f"s_mov_b32 {s(sM5)}, 0x001f001f")
e(f"s_mov_b32 {s(sM5+1)}, 0x001f001f")
n15, kg, l3, n2 = T+1, T+2, T+3, T+4
e(f"v_and_b32 {v(n15)}, 15, {v(vL)}")
e(f"v_lshrrev_b32 {v(kg)}, 4, {v(vL)}")
e(f"v_and_b32 {v(l3)}, 3, {v(vL)}")
e(f"v_bfe_u32 {v(n2)}, {v(vL)}, 2, 2")
e(f"v_lshlrev_b32 {v(aTG)}, 11, {v(l3)}")
e(f"v_lshl_add_u32 {v(aTG)}, {v(kg)}, 4, {v(aTG)}")
e(f"s_lshl_b32 {s(sT3)}, {s(sKQ)}, 13")
e(f"s_lshr_b32 {s(sT0)}, {s(sI)}, 2")
e(f"s_lshl_b32 {s(sT0)}, {s(sT0)}, 8")
e(f"s_add_u32 {s(sT3)}, {s(sT3)}, {s(sT0)}")
e(f"v_add_u32 {v(aTG)}, {s(sT3)}, {v(aTG)}")

e(f"s_cmp_lg_u32 {s(sW)}, 5")
e("s_cbranch_scc1 L_SETUP2")
c("wave 5: sentinel pre-fill of this member's share of the group's hand-off region; clear own tagged slots")
for r in range(4):
    e(f"v_mov_b32 {v(ACC+r)}, -1")
    e(f"v_mov_b32 {v(ACC+4+r)}, 0")
e(f"s_mul_i32 {s(sT1)}, {s(sI)}, {PF}")
e(f"s_add_u32 {s(sT1)}, {s(sT1)}, {s(sGB)}")
for n in range(8):
    if n == 4: e(f"s_add_u32 {s(sT1)}, {s(sT1)}, 4096")
    e(f"buffer_store_dwordx4 {v(ACC,4)}, {v(aL16)}, {s(sWS,4)}, {s(sT1)} offen offset:{1024*(n&3)} sc1")
e(f"s_add_u32 {s(sT1)}, {s(sT1)}, 4096")
e("s_mov_b64 exec, 0xffff")
e(f"buffer_store_dwordx4 {v(ACC,4)}, {v(aL16)}, {s(sWS,4)}, {s(sT1)} offen sc1")
e(f"s_mov_b64 exec, {s(sMA[0],2)}")
for ct in range(4):
    e(f"buffer_store_dwordx4 {v(ACC+4,4)}, {v(aTG)}, {s(sWS,4)}, {s(sTB)} offen offset:{64*ct} sc1")
e(f"s_lshl_b32 {s(sT3)}, {s(sI)}, 3")
e(f"s_add_u32 {s(sT3)}, {s(sT3)}, 32768")
e(f"v_mov_b32 {v(T+15)}, {s(sT3)}")
e("s_mov_b64 exec, 1")
e(f"buffer_store_dwordx2 {v(ACC+4,2)}, {v(T+15)}, {s(sWS,4)}, {s(sTB)} offen sc1")
e("s_mov_b64 exec, -1")
NST5 = 14
lab("L_SETUP2")
e(f"s_cmp_lg_u32 {s(sW)}, 7")
e("s_cbranch_scc1 L_SETUP3")
e("s_cmp_lg_u32 s2, 0")
e("s_cbranch_scc1 L_SETUP3")
c("WG 0 wave 7 publishes the launch nonce (tells this launch's first hand-off from stale words)")
e(f"s_memrealtime {s(sTM,2)}")
e("s_waitcnt lgkmcnt(0)")
e(f"s_or_b32 {s(sNONCE)}, {s(sTM)}, 1")
e(f"v_mov_b32 {v(ACC+4)}, {s(sNONCE)}")
e(f"v_mov_b32 {v(ACC+5)}, 0")
e("s_mov_b64 exec, 1")
e(f"buffer_store_dword {v(ACC+4)}, {v(ACC+5)}, {s(sDBG,4)}, 0 offen sc1")
e("s_mov_b64 exec, -1")
lab("L_SETUP3")
e(f"s_getreg_b32 {s(sXCC)}, hwreg(HW_REG_XCC_ID)")
e(f"s_and_b32 {s(sXCC)}, {s(sXCC)}, 15")
e(f"s_lshl_b32 {s(sSTB)}, s2, 3")
e(f"s_add_u32 {s(sSTB)}, {s(sSTB)}, {s(sW)}")
e(f"s_lshl_b32 {s(sSTB)}, {s(sSTB)}, 8")
e(f"s_add_u32 {s(sSTB)}, {s(sSTB)}, {STAMP_BASE}")
e(f"s_mov_b32 {s(sC)}, {f32(128**-0.5 * math.log2(math.e))}")
e(f"s_mov_b32 {s(sPLO)}, 0x05040100")
e(f"s_mov_b32 {s(sPHI)}, 0x07060302")
e(f"v_lshlrev_b32 {v(aL4)}, 2, {v(vL)}")
for r in range(16):
    e(f"v_mov_b32 {v(XF+r)}, 0x3f803f80")
for r in range(4):
    e(f"v_mov_b32 {v(ONE+r)}, 0x3f803f80")
e(f"v_lshlrev_b32 {v(aXF)}, 6, {v(kg)}")
e(f"v_lshl_add_u32 {v(aXF)}, {v(l3)}, 4, {v(aXF)}")
e(f"s_lshl_b32 {s(sT3)}, {s(sKQ)}, 10")
e(f"v_add_u32 {v(aXF)}, {s(sT3)}, {v(aXF)}")
e(f"v_mul_u32_u24 {v(T+7)}, 272, {v(l3)}")
e(f"v_lshl_add_u32 {v(aQR)}, {v(kg)}, 5, {v(T+7)}")
e(f"v_add_u32 {v(aQR)}, {L_Q}, {v(aQR)}")
e(f"v_lshl_add_u32 {v(aHR)}, {v(kg)}, 4, {v(T+7)}")
e(f"v_add_u32 {v(aHR)}, {L_H}, {v(aHR)}")
e(f"s_lshl_b32 {s(sT3)}, {s(sW)}, 13")
e(f"s_lshl_b32 {s(sT0)}, {s(sI)}, 8")
e(f"s_add_u32 {s(sT3)}, {s(sT3)}, {s(sT0)}")
e(f"s_add_u32 {s(sT3)}, {s(sT3)}, {OB_OFF}")
e(f"v_add_u32 {v(aOST)}, {s(sT3)}, {v(aL4)}")
e(f"s_cmp_lg_u32 {s(sW)}, 4")
e("s_cbranch_scc1 L_A1")
e(f"s_lshl_b32 {s(sT3)}, {s(sI)}, 3")
e(f"s_add_u32 {s(sT3)}, {s(sT3)}, {ML_OFF}")
e(f"v_lshlrev_b32 {v(aOST)}, 8, {v(l3)}")
e(f"v_add_u32 {v(aOST)}, {s(sT3)}, {v(aOST)}")
lab("L_A1")
e(f"s_and_b32 {s(sT3)}, {s(sW)}, 1")
e(f"s_lshl_b32 {s(sT3)}, {s(sT3)}, 4")
e(f"s_lshr_b32 {s(sT0)}, {s(sW)}, 1")
e(f"s_lshl_b32 {s(sT0)}, {s(sT0)}, 2")
e(f"s_add_u32 {s(sT3)}, {s(sT3)}, {s(sT0)}")
e(f"v_add_u32 {v(T+7)}, {s(sT3)}, {v(kg)}")
e(f"v_mul_u32_u24 {v(aAFW)}, 272, {v(T+7)}")
e(f"v_lshl_add_u32 {v(aAFW)}, {v(n15)}, 4, {v(aAFW)}")
e(f"v_add_u32 {v(aAFW)}, {L_AF}, {v(aAFW)}")
e(f"v_mul_u32_u24 {v(aAFR)}, 272, {v(n15)}")
e(f"v_lshl_add_u32 {v(aAFR)}, {v(kg)}, 4, {v(aAFR)}")
e(f"v_add_u32 {v(aAFR)}, {L_AF}, {v(aAFR)}")
e(f"v_lshlrev_b32 {v(aMLR)}, 6, {v(n2)}")
e(f"v_lshl_add_u32 {v(aMLR)}, {v(l3)}, 3, {v(aMLR)}")
e(f"v_add_u32 {v(aMLR)}, {L_ML}, {v(aMLR)}")
e(f"s_lshl_b32 {s(sT3)}, {s(sB)}, 13")
e(f"s_lshl_b32 {s(sT0)}, {s(sS)}, 10")
e(f"s_add_u32 {s(sT3)}, {s(sT3)}, {s(sT0)}")
e(f"s_lshl_b32 {s(sT0)}, {s(sWV)}, 8")
e(f"s_add_u32 {s(sT3)}, {s(sT3)}, {s(sT0)}")
e(f"s_add_u32 {s(sT3)}, {s(sT3)}, {X1P_OFF}")
e(f"v_lshlrev_b32 {v(aP3S)}, 6, {v(n2)}")
e(f"v_lshl_add_u32 {v(aP3S)}, {v(kg)}, 4, {v(aP3S)}")
e(f"v_add_u32 {v(aP3S)}, {s(sT3)}, {v(aP3S)}")
e(f"v_lshlrev_b32 {v(aRG)}, 13, {v(kg)}")
e(f"s_cmp_lt_u32 {s(sW)}, 4")
e("s_cbranch_scc1 L_A2")
e(f"v_lshrrev_b32 {v(T+7)}, 1, {v(kg)}")
e(f"s_mov_b32 {s(sT0)}, {GSZ}")
e(f"v_mul_lo_u32 {v(T+7)}, {s(sT0)}, {v(T+7)}")
e(f"v_and_b32 {v(aRG)}, 0x2000, {v(aRG)}")
e(f"v_add_u32 {v(aRG)}, {v(aRG)}, {v(T+7)}")
lab("L_A2")
e(f"v_lshl_add_u32 {v(aRG)}, {v(n15)}, 4, {v(aRG)}")
e(f"s_lshl_b32 {s(sT3)}, {s(sI)}, 8")
e(f"v_add_u32 {v(aRG)}, {s(sT3)}, {v(aRG)}")
e(f"v_lshrrev_b32 {v(T+7)}, 5, {v(vL)}")
e(f"v_lshlrev_b32 {v(aXN)}, 10, {v(n2)}")
e(f"v_lshl_add_u32 {v(aXN)}, {v(l3)}, 3, {v(aXN)}")
e(f"v_lshl_add_u32 {v(aXN)}, {v(T+7)}, 2, {v(aXN)}")
e(f"s_lshl_b32 {s(sT3)}, {s(sI)}, 5")
e(f"v_add_u32 {v(aXN)}, {s(sT3)}, {v(aXN)}")
e(f"v_bfe_u32 {v(T+8)}, {v(vL)}, 1, 1")
e(f"v_lshlrev_b32 {v(aXS)}, 6, {v(T+8)}")
e(f"v_lshl_add_u32 {v(aXS)}, {v(n2)}, 4, {v(aXS)}")
e(f"v_and_b32 {v(T+8)}, 1, {v(vL)}")
e(f"v_lshl_add_u32 {v(aXS)}, {v(T+8)}, 3, {v(aXS)}")
e(f"v_lshl_add_u32 {v(aXS)}, {v(T+7)}, 2, {v(aXS)}")
e(f"s_lshl_b32 {s(sT3)}, {s(sI)}, 7")
e(f"v_add_u32 {v(aXS)}, {s(sT3)}, {v(aXS)}")
e(f"s_lshl_b32 {s(sT3)}, {s(sWV)}, 10")
e(f"v_lshlrev_b32 {v(aGW)}, 6, {v(n15)}")
e(f"v_lshl_add_u32 {v(aGW)}, {v(kg)}, 4, {v(aGW)}")
e(f"v_add_u32 {v(aGW)}, {s(sT3)}, {v(aGW)}")
e(f"s_lshr_b32 {s(sT2)}, {s(sI)}, 2")
e(f"s_cmp_ge_u32 {s(sW)}, 4")
e("s_cbranch_scc1 L_A3")
c("waves 0-3: QP store ; HP gather (batch = w, units kh*96 + 2l) ; h write")
e(f"s_mul_i32 {s(sT3)}, {s(sKQ)}, 10240")
e(f"s_lshl_b32 {s(sT0)}, {s(sT2)}, 8")
e(f"s_add_u32 {s(sT3)}, {s(sT3)}, {s(sT0)}")
e(f"s_lshl_b32 {s(sT0)}, {s(sW)}, 6")
e(f"s_add_u32 {s(sT3)}, {s(sT3)}, {s(sT0)}")
e(f"v_lshlrev_b32 {v(aPS)}, 11, {v(n15)}")
e(f"v_lshl_add_u32 {v(aPS)}, {v(kg)}, 4, {v(aPS)}")
e(f"v_add_u32 {v(aPS)}, {s(sT3)}, {v(aPS)}")
e(f"s_mul_i32 {s(sT3)}, {s(sKH)}, 384")
e(f"s_lshl_b32 {s(sT0)}, {s(sW)}, 10")
e(f"s_add_u32 {s(sT3)}, {s(sT3)}, {s(sT0)}")
e(f"v_lshlrev_b32 {v(aSG)}, 3, {v(vL)}")
e(f"v_add_u32 {v(aSG)}, {s(sT3)}, {v(aSG)}")
e(f"s_mul_i32 {s(sT3)}, {s(sW)}, 272")
e(f"s_add_u32 {s(sT3)}, {s(sT3)}, {L_H}")
e(f"v_add_u32 {v(aSW)}, {s(sT3)}, {v(aL4)}")
e(f"s_mov_b32 {s(sT1)}, {s(sW)}")
e("s_branch L_A4")
lab("L_A3")
c("waves 4,5: HP store ; waves 6,7: X2P store ; 4-7: QP gather (batch b, head = wv, cols 2l) ; q write")
e(f"s_mul_i32 {s(sT3)}, {s(sKQ)}, 5120")
e(f"s_lshl_b32 {s(sT0)}, {s(sT2)}, 7")
e(f"s_add_u32 {s(sT3)}, {s(sT3)}, {s(sT0)}")
e(f"s_and_b32 {s(sT0)}, {s(sW)}, 1")
e(f"s_lshl_b32 {s(sT0)}, {s(sT0)}, 6")
e(f"s_add_u32 {s(sT3)}, {s(sT3)}, {s(sT0)}")
e(f"s_add_u32 {s(sT3)}, {s(sT3)}, {HP_OFF}")
e(f"v_lshlrev_b32 {v(aPS)}, 10, {v(n15)}")
e(f"v_lshl_add_u32 {v(aPS)}, {v(kg)}, 4, {v(aPS)}")
e(f"v_add_u32 {v(aPS)}, {s(sT3)}, {v(aPS)}")
e(f"s_cmp_lt_u32 {s(sW)}, 6")
e("s_cbranch_scc1 L_A3b")
e(f"s_lshl_b32 {s(sT3)}, {s(sKH)}, 13")
e(f"s_lshr_b32 {s(sT0)}, {s(sI)}, 1")
e(f"s_lshl_b32 {s(sT0)}, {s(sT0)}, 9")
e(f"s_add_u32 {s(sT3)}, {s(sT3)}, {s(sT0)}")
e(f"s_and_b32 {s(sT0)}, {s(sW)}, 1")
e(f"s_lshl_b32 {s(sT0)}, {s(sT0)}, 8")
e(f"s_add_u32 {s(sT3)}, {s(sT3)}, {s(sT0)}")
e(f"s_add_u32 {s(sT3)}, {s(sT3)}, {X2P_OFF}")
e(f"v_and_b32 {v(aPS)}, 0x3ff, {v(aGW)}")
e(f"v_add_u32 {v(aPS)}, {s(sT3)}, {v(aPS)}")
lab("L_A3b")
e(f"s_lshl_b32 {s(sT3)}, {s(sB)}, 11")
e(f"s_lshl_b32 {s(sT0)}, {s(sWV)}, 9")
e(f"s_add_u32 {s(sT3)}, {s(sT3)}, {s(sT0)}")
e(f"v_lshlrev_b32 {v(aSG)}, 3, {v(vL)}")
e(f"v_add_u32 {v(aSG)}, {s(sT3)}, {v(aSG)}")
e(f"s_mul_i32 {s(sT3)}, {s(sWV)}, 272")
e(f"s_add_u32 {s(sT3)}, {s(sT3)}, {L_Q}")
e(f"v_add_u32 {v(aSW)}, {s(sT3)}, {v(aL4)}")
e(f"s_mov_b32 {s(sT1)}, {s(sB)}")
lab("L_A4")
e(f"s_lshl_b32 {s(sT3)}, {s(sT1)}, 4")
e(f"s_add_u32 {s(sT3)}, {s(sT3)}, {L_XI}")
e(f"v_lshlrev_b32 {v(aXR)}, 6, {v(vL)}")
e(f"v_add_u32 {v(aXR)}, {s(sT3)}, {v(aXR)}")
e(f"s_mul_i32 {s(sT3)}, {s(sW)}, {OSTR}")
e(f"s_add_u32 {s(sT3)}, {s(sT3)}, {L_OB}")
e(f"v_mul_u32_u24 {v(aOW)}, 272, {v(kg)}")
e(f"v_lshl_add_u32 {v(aOW)}, {v(n15)}, 4, {v(aOW)}")
e(f"v_add_u32 {v(aOW)}, {s(sT3)}, {v(aOW)}")
e(f"v_mul_u32_u24 {v(aOR)}, 1088, {v(T+7)}")
e(f"v_bfe_u32 {v(T+9)}, {v(vL)}, 3, 2")
e(f"v_mul_u32_u24 {v(T+9)}, 272, {v(T+9)}")
e(f"v_add_u32 {v(aOR)}, {v(aOR)}, {v(T+9)}")
e(f"v_bfe_u32 {v(T+9)}, {v(vL)}, 1, 2")
e(f"v_lshl_add_u32 {v(aOR)}, {v(T+9)}, 6, {v(aOR)}")
e(f"v_lshl_add_u32 {v(aOR)}, {v(T+8)}, 3, {v(aOR)}")
e(f"s_lshl_b32 {s(sT3)}, {s(sWV)}, 4")
e(f"s_add_u32 {s(sT3)}, {s(sT3)}, {L_OB}")
e(f"v_add_u32 {v(aOR)}, {s(sT3)}, {v(aOR)}")
e(f"v_lshlrev_b32 {v(aMX)}, 5, {v(l3)}")
e(f"v_add_u32 {v(aMX)}, {L_MX}, {v(aMX)}")
e(f"s_lshl_b32 {s(sT3)}, {s(sW)}, 2")
e(f"v_add_u32 {v(aMXW)}, {s(sT3)}, {v(aMX)}")
e(f"s_cmp_ge_u32 {s(sW)}, 4")
e("s_cbranch_scc1 L_A5")
e(f"s_lshl_b32 {s(sT3)}, {s(sW)}, 5")
e(f"s_add_u32 {s(sT3)}, {s(sT3)}, {L_MX}")
e(f"v_mov_b32 {v(aMX)}, {s(sT3)}")
lab("L_A5")
TRR = T+10
e(f"v_lshl_add_u32 {v(TRR)}, {v(kg)}, 3, {v(n2)}")

e(f"s_cmp_eq_u32 {s(sW)}, 5")
e("s_cbranch_scc1 L_Q1")
e(f"s_cmp_lg_u32 {s(sW)}, 7")
e("s_cbranch_scc1 L_STREAM")
c("wave 7 runs its whole K/V stream up front so that it is free to poll q early")
e(f"s_waitcnt vmcnt({D})")
e("s_barrier")
for n in range(D, 8):
    issue_k(n)
for i in range(8):
    issue_v(i)
e("s_branch L_WEIGHTS")
lab("L_Q1")
c("---------------- wave 5: this tile's share of q of layer 0 (x is an input: statistics computed locally)")
e(f"v_lshlrev_b32 {v(T+11)}, 10, {v(l3)}")
e(f"v_lshl_add_u32 {v(T+11)}, {v(kg)}, 4, {v(T+11)}")
e(f"v_add_u32 {v(T+11)}, {L_X0}, {v(T+11)}")
e(f"v_lshlrev_b32 {v(T+12)}, 7, {v(TRR)}")
e(f"v_lshl_add_u32 {v(T+12)}, {v(l3)}, 3, {v(T+12)}")
e(f"v_mov_b32 {v(T+14)}, 0")
e(f"buffer_load_dword {v(T+13)}, {v(T+14)}, {s(sDBG,4)}, 0 offen sc1")
e(f"s_waitcnt vmcnt({D+NST5+1})")
e("s_barrier")
stamp(1)
WQ5 = VT
for ct in range(4):
    for ks in range(4):
        r = WQ5 + 16*ct + 4*ks
        e(f"ds_read_b64_tr_b16 {v(r,2)}, {v(T+12)} offset:{L_WQ + 4096*ks + 32*ct}")
        e(f"ds_read_b64_tr_b16 {v(r+2,2)}, {v(T+12)} offset:{L_WQ + 4096*ks + 32*ct + 512}")
    e("s_waitcnt lgkmcnt(0)")
GR = QF
for j in range(4):
    e(f"s_add_u32 {s(sT3)}, {s(sKQ)}, {j}")
    e(f"s_and_b32 {s(sT3)}, {s(sT3)}, 3")
    e(f"s_lshl_b32 {s(sT3)}, {s(sT3)}, 8")
    e(f"v_add_u32 {v(T+5)}, {s(sT3)}, {v(T+11)}")
    e(f"s_mov_b64 exec, {s(sMA[0],2)}")
    for ks in range(4):
        e(f"ds_read_b128 {v(XF+4*ks,4)}, {v(T+5)} offset:{64*ks}")
    e("s_mov_b64 exec, -1")
    e("s_waitcnt lgkmcnt(0)")
    for ks in range(4):
        mfma(GR, XF+4*ks, XF+4*ks, None if (j == 0 and ks == 0) else GR)
    if j == 0:
        for ks in range(4):
            for ct in range(4):
                mfma(ACC+4*ct, WQ5 + 16*ct + 4*ks, XF+4*ks, None if ks == 0 else ACC+4*ct)
nop(8)
e(f"ds_write_b128 {v(aGW)}, {v(GR,4)} offset:{L_G1}")
e(f"v_mul_u32_u24 {v(T+5)}, 68, {v(l3)}")
e(f"v_lshlrev_b32 {v(T+6)}, 6, {v(l3)}")
e("s_waitcnt lgkmcnt(0)")
e(f"ds_read_b32 {v(T+7)}, {v(T+5)} offset:{L_G1 + 1024}")
e(f"ds_read_b32 {v(T+8)}, {v(T+6)} offset:{L_G1 + 1024 + 16}")
e("s_waitcnt lgkmcnt(0)")
stats_from(T+7, T+8, False, T+9)
e(f"v_sub_f32 {v(T+8)}, 0, {v(T+8)}")
for r in range(16):
    e(f"v_mov_b32_dpp {v(VT+r)}, {v(ACC+r)} row_shl:4 row_mask:0xf bank_mask:0xf")
for r in range(16):
    e(f"v_fmac_f32 {v(ACC+r)}, {v(VT+r)}, {v(T+8)}")
for r in range(16):
    e(f"v_mul_f32 {v(ACC+r)}, {v(ACC+r)}, {v(T+7)}")
for ct in range(4):
    e(f"v_cvt_pk_bf16_f32 {v(VT+4*ct)}, {v(ACC+4*ct)}, {v(ACC+4*ct+1)}")
    e(f"v_cvt_pk_bf16_f32 {v(VT+4*ct+2)}, {v(ACC+4*ct+2)}, {v(ACC+4*ct+3)}")
e(f"s_mov_b32 {s(sCNT)}, 0")
lab("L_NONCE")
e("s_waitcnt vmcnt(0)")
e(f"v_readfirstlane_b32 {s(sNONCE)}, {v(T+13)}")
e(f"s_add_u32 {s(sCNT)}, {s(sCNT)}, 1")
e(f"s_cmp_ge_u32 {s(sCNT)}, {SPIN_MAX}")
e("s_cbranch_scc1 L_NONCE_D")
e(f"s_cmp_lg_u32 {s(sNONCE)}, 0")
e("s_cbranch_scc1 L_NONCE_D")
e(f"buffer_load_dword {v(T+13)}, {v(T+14)}, {s(sDBG,4)}, 0 offen sc1")
e("s_branch L_NONCE")
lab("L_NONCE_D")
for ct in range(4):
    e(f"v_mov_b32 {v(VT+4*ct+1)}, {s(sNONCE)}")
    e(f"v_mov_b32 {v(VT+4*ct+3)}, {s(sNONCE)}")
e(f"v_mov_b32 {v(T+12)}, {s(sXCC)}")
e(f"v_mov_b32 {v(T+13)}, {s(sNONCE)}")
e(f"s_lshl_b32 {s(sT3)}, {s(sI)}, 3")
e(f"s_add_u32 {s(sT3)}, {s(sT3)}, 32768")
e(f"v_mov_b32 {v(T+15)}, {s(sT3)}")
e(f"s_mov_b64 exec, {s(sMA[0],2)}")
for ct in range(4):
    e(f"buffer_store_dwordx4 {v(VT+4*ct,4)}, {v(aTG)}, {s(sWS,4)}, {s(sTB)} offen offset:{64*ct} sc1")
e("s_mov_b64 exec, 1")
e(f"buffer_store_dwordx2 {v(T+12,2)}, {v(T+15)}, {s(sWS,4)}, {s(sTB)} offen sc1")
e("s_mov_b64 exec, -1")
stamp(3)
for n in range(D, 8):
    issue_k(n)
for i in range(8):
    issue_v(i)
e("s_branch L_WEIGHTS")

lab("L_STREAM")
e(f"s_waitcnt vmcnt({D})")
e("s_barrier")
for n in range(D, 8):
    e(f"s_waitcnt vmcnt({D-1})")
    issue_k(n)
for i in range(8):
    e(f"s_waitcnt vmcnt({D-1})")
    issue_v(i)
lab("L_WEIGHTS")
e(f"v_lshrrev_b32 {v(T+11)}, 3, {v(vL)}")
e(f"v_lshlrev_b32 {v(T+11)}, 10, {v(T+11)}")
e(f"v_and_b32 {v(T+12)}, 7, {v(vL)}")
e(f"v_lshl_add_u32 {v(T+11)}, {v(T+12)}, 4, {v(T+11)}")
e(f"s_lshl_b32 {s(sT3)}, {s(sG)}, 2")
e(f"s_add_u32 {s(sT3)}, {s(sT3)}, {s(sB)}")
e(f"s_lshl_b32 {s(sT3)}, {s(sT3)}, 17")
e(f"s_lshl_b32 {s(sT0)}, {s(sW)}, 14")
e(f"s_add_u32 {s(sT3)}, {s(sT3)}, {s(sT0)}")
e(f"s_lshl_b32 {s(sT0)}, {s(sS)}, 7")
e(f"s_add_u32 {s(sT3)}, {s(sT3)}, {s(sT0)}")
e(f"s_lshl_b32 {s(sT0)}, {s(sW)}, 11")
e(f"s_add_u32 {s(sT0)}, {s(sT0)}, {L_WO}")
for n in range(2):
    e(f"s_waitcnt vmcnt({D-1})")
    e(f"s_mov_b32 m0, {s(sT0)}")
    e(f"s_add_u32 {s(sT0)}, {s(sT0)}, 1024")
    e(f"buffer_load_dwordx4 {v(T+11)}, {s(sWO,4)}, {s(sT3)} offen nt lds")
    e(f"s_add_u32 {s(sT3)}, {s(sT3)}, 8192")
for t in range(2):
    for hf in range(2):
        X = kslot(t, hf, 0); Y = kslot(t, hf, 1)
        for r in range(4):
            e(f"v_mov_b32 {v(ACC+r)}, {v(X+r)}")
        for r in range(4):
            e(f"v_mov_b32_dpp {v(X+r)}, {v(Y+r)} row_ror:8 row_mask:0xf bank_mask:0xc")
        for r in range(4):
            e(f"v_mov_b32_dpp {v(Y+r)}, {v(ACC+r)} row_ror:8 row_mask:0xf bank_mask:0x3")
for r in range(16):
    e(f"v_mov_b32 {v(PB+r)}, 0")
e(f"v_lshrrev_b32 {v(T+11)}, 2, {v(vL)}")
e(f"v_and_b32 {v(T+12)}, 3, {v(vL)}")
e(f"v_lshlrev_b32 {v(T+12)}, 4, {v(T+12)}")
e(f"v_mul_u32_u24 {v(T+13)}, 3584, {v(T+11)}")
e(f"v_add_u32 {v(T+13)}, {v(T+13)}, {v(T+12)}")
e(f"s_lshl_b32 {s(sT3)}, {s(sKQ)}, 3")
e(f"s_add_u32 {s(sT3)}, {s(sT3)}, {s(sW)}")
e(f"s_mul_i32 {s(sT3)}, {s(sT3)}, {16*3584}")
e(f"s_mul_i32 {s(sT1)}, {s(sG)}, 448")
e(f"s_add_u32 {s(sT3)}, {s(sT3)}, {s(sT1)}")
e(f"s_lshr_b32 {s(sT0)}, {s(sI)}, 2")
e(f"s_min_u32 {s(sT0)}, {s(sT0)}, 6")
e(f"s_lshl_b32 {s(sT0)}, {s(sT0)}, 6")
e(f"s_add_u32 {s(sT3)}, {s(sT3)}, {s(sT0)}")
e(f"s_lshl_b32 {s(sT0)}, {s(sW)}, 10")
e(f"s_add_u32 {s(sT2)}, {s(sT0)}, {L_W1}")
e(f"s_mov_b32 m0, {s(sT2)}")
e(f"s_waitcnt vmcnt({D-1})")
e(f"buffer_load_dwordx4 {v(T+13)}, {s(sW1,4)}, {s(sT3)} offen nt lds")
e(f"v_lshl_add_u32 {v(T+13)}, {v(T+11)}, 10, {v(T+12)}")
e(f"s_mul_i32 {s(sT3)}, {s(sG)}, {224*1024}")
e(f"s_mul_i32 {s(sT2)}, {s(sKH)}, {96*1024}")
e(f"s_add_u32 {s(sT3)}, {s(sT3)}, {s(sT2)}")
e(f"s_lshl_b32 {s(sT2)}, {s(sW)}, 14")
e(f"s_add_u32 {s(sT3)}, {s(sT3)}, {s(sT2)}")
e(f"s_lshr_b32 {s(sT2)}, {s(sI)}, 1")
e(f"s_lshl_b32 {s(sT2)}, {s(sT2)}, 6")
e(f"s_add_u32 {s(sT3)}, {s(sT3)}, {s(sT2)}")
e(f"s_add_u32 {s(sT2)}, {s(sT0)}, {L_W2}")
e(f"s_mov_b32 m0, {s(sT2)}")
e(f"s_waitcnt vmcnt({D-1})")
e(f"buffer_load_dwordx4 {v(T+13)}, {s(sW2,4)}, {s(sT3)} offen nt lds")
e(f"s_cmp_ge_u32 {s(sW)}, 4")
e("s_cbranch_scc1 L_SM2")
e(f"s_mul_i32 {s(sT2)}, {s(sKH)}, 192")
e(f"s_add_u32 {s(sT1)}, {s(sT1)}, {s(sT2)}")
e(f"buffer_load_dword {v(BIA)}, {v(aL4)}, {s(sB1,4)}, {s(sT1)} offen")
e(f"buffer_load_dword {v(RES)}, {v(aXN)}, {s(sX,4)}, 0 offen")
e("s_branch L_QBAR0")
lab("L_SM2")
e(f"s_cmp_eq_u32 {s(sW)}, 7")
e("s_cbranch_scc1 L_QT0")
e(f"v_and_b32 {v(T+11)}, 0x3ff, {v(aXN)}")
e(f"buffer_load_dword {v(BIA)}, {v(T+11)}, {s(sB2,4)}, 0 offen")
e("s_branch L_QBAR0")
lab("L_QT0")
c("---------------- wave 7: tagged q poll (4 x 2 KB of granules of this batch + 32 XCC granules + nonce)")
e(f"s_lshl_b32 {s(sT0)}, {s(sB)}, 11")
e(f"s_add_u32 {s(sT0)}, {s(sT0)}, {s(sTB)}")
e(f"v_and_b32 {v(T+11)}, 31, {v(vL)}")
e(f"v_lshlrev_b32 {v(T+11)}, 3, {v(T+11)}")
e(f"v_add_u32 {v(T+11)}, 32768, {v(T+11)}")
e(f"v_mov_b32 {v(T+12)}, 0")
e(f"s_mov_b32 {s(sCNT)}, 0")
QT = VT
lab("L_QT")
e(f"s_mov_b32 {s(sT1)}, {s(sT0)}")
for k in range(4):
    e(f"buffer_load_dwordx4 {v(QT+8*k,4)}, {v(aL16)}, {s(sWS,4)}, {s(sT1)} offen sc1")
    e(f"buffer_load_dwordx4 {v(QT+8*k+4,4)}, {v(aL16)}, {s(sWS,4)}, {s(sT1)} offen offset:1024 sc1")
    if k < 3: e(f"s_add_u32 {s(sT1)}, {s(sT1)}, 8192")
e(f"buffer_load_dwordx2 {v(QF+8,2)}, {v(T+11)}, {s(sWS,4)}, {s(sTB)} offen sc1")
e(f"buffer_load_dword {v(QF+10)}, {v(T+12)}, {s(sDBG,4)}, 0 offen sc1")
e("s_waitcnt vmcnt(0)")
e(f"v_readfirstlane_b32 {s(sNONCE)}, {v(QF+10)}")
e(f"v_xor_b32 {v(QF+11)}, {v(QF+10)}, {v(QF+9)}")
for k in range(8):
    e(f"v_xor_b32 {v(QF+12)}, {v(QF+10)}, {v(QT+4*k+1)}")
    e(f"v_xor_b32 {v(QF+13)}, {v(QF+10)}, {v(QT+4*k+3)}")
    e(f"v_or3_b32 {v(QF+11)}, {v(QF+11)}, {v(QF+12)}, {v(QF+13)}")
e(f"v_cmp_ne_u32 vcc, 0, {v(QF+11)}")
e(f"s_add_u32 {s(sCNT)}, {s(sCNT)}, 1")
e(f"s_cmp_ge_u32 {s(sCNT)}, {SPIN_MAX}")
e("s_cbranch_scc1 L_QT_DONE")
e("s_cbranch_vccnz L_QT")
e(f"s_cmp_eq_u32 {s(sNONCE)}, 0")
e("s_cbranch_scc1 L_QT")
lab("L_QT_DONE")
stamp(4)
for j in range(4):
    d0 = QT + 2*j
    e(f"v_lshlrev_b32 {v(ACC)}, 16, {v(d0)}")
    e(f"v_and_b32 {v(ACC+1)}, 0xffff0000, {v(d0)}")
    for k in range(1, 4):
        e(f"v_lshlrev_b32 {v(ACC+2)}, 16, {v(d0+8*k)}")
        e(f"v_and_b32 {v(ACC+3)}, 0xffff0000, {v(d0+8*k)}")
        e(f"v_pk_add_f32 {v(ACC,2)}, {v(ACC,2)}, {v(ACC+2,2)}")
    e(f"v_cvt_pk_bf16_f32 {v(QF+j)}, {v(ACC)}, {v(ACC+1)}")
e(f"v_lshrrev_b32 {v(T+11)}, 5, {v(vL)}")
e(f"v_mul_u32_u24 {v(T+11)}, 272, {v(T+11)}")
e(f"v_and_b32 {v(T+12)}, 31, {v(vL)}")
e(f"v_lshl_add_u32 {v(T+11)}, {v(T+12)}, 3, {v(T+11)}")
e(f"ds_write_b64 {v(T+11)}, {v(QF,2)} offset:{L_Q}")
e(f"ds_write_b64 {v(T+11)}, {v(QF+2,2)} offset:{L_Q+544}")
e(f"v_cmp_ne_u32 vcc, {s(sXCC)}, {v(QF+8)}")
e(f"s_cmp_eq_u64 vcc, 0")
e(f"s_cselect_b32 {s(sFAST)}, 1, 0")
e(f"v_mov_b32 {v(T+12)}, {s(sFAST)}")
e(f"v_mov_b32 {v(T+13)}, {L_Q + 256}")
e(f"ds_write_b32 {v(T+13)}, {v(T+12)}")
e(f"s_cmp_lg_u32 {s(sI)}, 0")
e("s_cbranch_scc1 L_NOLEAD")
c("group leader announces 'group g has pre-filled' to the other groups")
e(f"s_lshl_b32 {s(sT3)}, {s(sG)}, 2")
e(f"v_mov_b32 {v(T+12)}, 1")
e(f"v_mov_b32 {v(T+13)}, {s(sT3)}")
e("s_mov_b64 exec, 1")
e(f"buffer_store_dword {v(T+12)}, {v(T+13)}, {s(sDBG,4)}, 0 offen offset:128 sc1")
e("s_mov_b64 exec, -1")
lab("L_NOLEAD")
if OPT["touch"]:
    e(f"s_mul_i32 {s(sT0)}, {s(sI)}, {PF}")
    e(f"s_add_u32 {s(sT0)}, {s(sT0)}, {s(sGB)}")
    e(f"v_lshlrev_b32 {v(T+12)}, 7, {v(vL)}")
    e(f"buffer_load_dword {v(WB)}, {v(T+12)}, {s(sWS,4)}, {s(sT0)} offen sc1")
    e(f"s_add_u32 {s(sT0)}, {s(sT0)}, 8192")
    e("s_mov_b64 exec, 3")
    e(f"buffer_load_dword {v(WB+1)}, {v(T+12)}, {s(sWS,4)}, {s(sT0)} offen sc1")
    e("s_mov_b64 exec, -1")
e("s_waitcnt lgkmcnt(0)")
lab("L_QBAR0")
e("s_barrier")
e(f"v_mov_b32 {v(T+13)}, {L_Q + 256}")
e(f"ds_read_b32 {v(T+12)}, {v(T+13)}")
e("s_waitcnt lgkmcnt(0)")
e(f"v_readfirstlane_b32 {s(sFAST)}, {v(T+12)}")
if OPT["diag"] == 3:
    e(f"s_mov_b32 {s(sFAST)}, 0")
stamp(2)
if OPT["diag"] == 4:
    e(f"s_memrealtime {s(sTM,2)}")
    e("s_waitcnt lgkmcnt(0)")
    e(f"s_mov_b32 {s(sD1)}, {s(sTM)}")

lab("L_LOOP")
c("---------------- P2: attention over this wave's 32 keys")
e(f"v_add_u32 {v(T)}, {s(sROTH)}, {v(aQR)}")
e(f"v_subrev_u32 {v(T+1)}, {s(sROTH)}, {v(aQR)}")
e(f"ds_read_b128 {v(QF,4)}, {v(T)}")
e(f"ds_read_b128 {v(QF+4,4)}, {v(T)} offset:16")
e(f"ds_read_b128 {v(QF+8,4)}, {v(T+1)} offset:128")
e(f"ds_read_b128 {v(QF+12,4)}, {v(T+1)} offset:144")
ST = ACC
for sl in range(4):
    e(f"s_waitcnt lgkmcnt({3-sl})")
    for t in range(2):
        mfma(ST+4*t, KF + 4*(t*4+sl), QF + 4*sl, None if sl == 0 else ST+4*t)
stamp(16)
nop(8)
e(f"v_max3_f32 {v(T)}, {v(ST)}, {v(ST+1)}, {v(ST+2)}")
e(f"v_max3_f32 {v(T+1)}, {v(ST+3)}, {v(ST+4)}, {v(ST+5)}")
e(f"v_max3_f32 {v(T)}, {v(T)}, {v(ST+6)}, {v(ST+7)}")
e(f"v_max_f32 {v(T)}, {v(T)}, {v(T+1)}")
e(f"v_mov_b32 {v(T+1)}, {v(T)}")
nop(2)
e(f"v_permlane16_swap_b32 {v(T)}, {v(T+1)}")
nop(1)
e(f"v_max_f32 {v(T)}, {v(T)}, {v(T+1)}")
e(f"v_mov_b32 {v(T+1)}, {v(T)}")
nop(2)
e(f"v_permlane32_swap_b32 {v(T)}, {v(T+1)}")
nop(1)
e(f"v_max_f32 {v(T)}, {v(T)}, {v(T+1)}")
e(f"v_mul_f32 {v(vMW)}, {s(sC)}, {v(T)}")
stamp(17)
e(f"ds_write_b32 {v(aMXW)}, {v(vMW)}")
for r in range(8):
    e(f"v_fma_f32 {v(ST+r)}, {v(ST+r)}, {s(sC)}, -{v(vMW)}")
for r in range(8):
    e(f"v_exp_f32 {v(ST+r)}, {v(ST+r)}")
nop(1)
for a in range(4):
    e(f"s_mov_b64 exec, {s(sMA[a],2)}")
    for j in range(4):
        e(f"v_cvt_pk_bf16_f32 {v(PB+4*a+j)}, {v(ST+2*j)}, {v(ST+2*j+1)}")
e("s_mov_b64 exec, -1")
e(f"s_cmp_lg_u32 {s(sLAYER)}, 0")
e("s_cbranch_scc1 L_PV")
c("first layer only: V has to land, then transpose it in registers")
e("s_waitcnt vmcnt(4)")
stamp(14)
for p in range(4):
    for cc in range(4):
        a = VR + 4*(2*p) + cc; b = VR + 4*(2*p+1) + cc
        e(f"v_perm_b32 {v(VT+4*(2*cc)+p)}, {v(b)}, {v(a)}, {s(sPLO)}")
        e(f"v_perm_b32 {v(VT+4*(2*cc+1)+p)}, {v(b)}, {v(a)}, {s(sPHI)}")
lab("L_PV")
stamp(18)
nop(2)
OT = ACC + 8
LT = ACC
for a in range(4):
    for u in range(2):
        mfma(OT+4*u, VT + 4*(4*u+a), PB + 4*a, None if a == 0 else OT+4*u)
mfma(LT, ONE, PB, None)
stamp(19)
nop(6)
e(f"ds_write_b128 {v(aOW)}, {v(OT,4)}")
e(f"ds_write_b128 {v(aOW)}, {v(OT+4,4)} offset:1088")
e("s_mov_b64 exec, 15")
e(f"ds_write_b32 {v(aMXW)}, {v(LT)} offset:128")
e("s_mov_b64 exec, -1")
stamp(21)
e("s_waitcnt vmcnt(0) lgkmcnt(0)")
e("s_barrier")
stamp(5)
e(f"s_cmp_gt_u32 {s(sW)}, 4")
e("s_cbranch_scc1 L_P2_B2")
e(f"ds_read_b128 {v(T,4)}, {v(aMX)}")
e(f"ds_read_b128 {v(T+4,4)}, {v(aMX)} offset:16")
e(f"s_cmp_eq_u32 {s(sW)}, 4")
e("s_cbranch_scc1 L_P2_B")
for k in range(4):
    e(f"ds_read2st64_b64 {v(VR+4*k,4)}, {v(aOR)} offset0:{10*k} offset1:{10*k+5}")
e("s_waitcnt lgkmcnt(4)")
def factors():
    e(f"v_max3_f32 {v(T+8)}, {v(T)}, {v(T+1)}, {v(T+2)}")
    e(f"v_max3_f32 {v(T+9)}, {v(T+3)}, {v(T+4)}, {v(T+5)}")
    e(f"v_max3_f32 {v(T+8)}, {v(T+8)}, {v(T+6)}, {v(T+7)}")
    e(f"v_max_f32 {v(T+8)}, {v(T+8)}, {v(T+9)}")
    for k in range(8):
        e(f"v_sub_f32 {v(T+k)}, {v(T+k)}, {v(T+8)}")
    for k in range(8):
        e(f"v_exp_f32 {v(T+k)}, {v(T+k)}")
factors()
e("s_waitcnt lgkmcnt(0)")
e(f"v_mul_f32 {v(VR)}, {v(VR)}, {v(T)}")
e(f"v_mul_f32 {v(VR+1)}, {v(VR+1)}, {v(T)}")
for k in range(1, 8):
    e(f"v_fmac_f32 {v(VR)}, {v(VR+2*k)}, {v(T+k)}")
    e(f"v_fmac_f32 {v(VR+1)}, {v(VR+2*k+1)}, {v(T+k)}")
e(f"v_cvt_pk_bf16_f32 {v(T+9)}, {v(VR)}, {v(VR+1)}")
e(f"v_min_u32 {v(T+9)}, -2, {v(T+9)}")
store_intra("buffer_store_dword", v(T+9), aOST, sLB, 0)
e(f"s_cmp_lg_u32 {s(sLAYER)}, 0")
e("s_cbranch_scc1 L_P3")
c("first layer only: wo and wq fragments out of LDS")
e(f"v_lshrrev_b32 {v(T+4)}, 5, {v(vL)}")
e(f"v_lshlrev_b32 {v(T+4)}, 12, {v(T+4)}")
e(f"v_bfe_u32 {v(T+5)}, {v(vL)}, 4, 1")
e(f"v_lshl_add_u32 {v(T+4)}, {v(T+5)}, 8, {v(T+4)}")
e(f"v_bfe_u32 {v(T+5)}, {v(vL)}, 2, 2")
e(f"v_lshl_add_u32 {v(T+4)}, {v(T+5)}, 10, {v(T+4)}")
e(f"v_and_b32 {v(T+5)}, 3, {v(vL)}")
e(f"v_lshlrev_b32 {v(T+5)}, 3, {v(T+5)}")
e(f"s_lshl_b32 {s(sT3)}, {s(sW)}, 5")
e(f"v_add_u32 {v(T+5)}, {s(sT3)}, {v(T+5)}")
e(f"v_add_u32 {v(T+4)}, {v(T+4)}, {v(T+5)}")
for ks in range(4):
    o = L_WO + (64*(ks & 1) + 4*(ks >> 1)) * 128
    e(f"ds_read_b64_tr_b16 {v(WB+4*ks,2)}, {v(T+4)} offset:{o}")
    e(f"ds_read_b64_tr_b16 {v(WB+4*ks+2,2)}, {v(T+4)} offset:{o+128}")
e(f"v_lshl_add_u32 {v(T+4)}, {v(TRR)}, 7, {v(T+5)}")
for ks in range(4):
    e(f"ds_read_b64_tr_b16 {v(WA+4*ks,2)}, {v(T+4)} offset:{L_WQ + 4096*ks}")
    e(f"ds_read_b64_tr_b16 {v(WA+4*ks+2,2)}, {v(T+4)} offset:{L_WQ + 4096*ks + 512}")
e(f"v_and_b32 {v(BIA+1)}, 0xffff0000, {v(BIA)}")
e(f"v_lshlrev_b32 {v(BIA)}, 16, {v(BIA)}")
e(f"v_and_b32 {v(RES+1)}, 0xffff0000, {v(RES)}")
e(f"v_lshlrev_b32 {v(RES)}, 16, {v(RES)}")
e("s_branch L_P3")
lab("L_P2_B")
e(f"ds_read_b128 {v(VR,4)}, {v(aMX)} offset:128")
e(f"ds_read_b128 {v(VR+4,4)}, {v(aMX)} offset:144")
e("s_waitcnt lgkmcnt(2)")
factors()
e("s_waitcnt lgkmcnt(0)")
e(f"v_mul_f32 {v(T+9)}, {v(VR)}, {v(T)}")
for k in range(1, 8):
    e(f"v_fmac_f32 {v(T+9)}, {v(VR+k)}, {v(T+k)}")
e("s_mov_b64 exec, 15")
store_intra("buffer_store_dwordx2", v(T+8,2), aOST, sLB, 0)
e("s_mov_b64 exec, -1")
lab("L_P2_B2")
e(f"s_cmp_lg_u32 {s(sLAYER)}, 0")
e("s_cbranch_scc1 L_P3")
c("first layer only: w1 (waves 4,5) / w2 (waves 6,7) fragments: rows of 64 B, ct = w&1")
e(f"v_and_b32 {v(T+5)}, 3, {v(vL)}")
e(f"v_lshlrev_b32 {v(T+5)}, 3, {v(T+5)}")
e(f"v_lshl_add_u32 {v(T+4)}, {v(TRR)}, 6, {v(T+5)}")
e(f"s_and_b32 {s(sT3)}, {s(sW)}, 1")
e(f"s_lshl_b32 {s(sT3)}, {s(sT3)}, 5")
e(f"s_and_b32 {s(sT0)}, {s(sW)}, 2")
e(f"s_lshl_b32 {s(sT0)}, {s(sT0)}, 12")
e(f"s_add_u32 {s(sT3)}, {s(sT3)}, {s(sT0)}")
e(f"v_add_u32 {v(T+4)}, {s(sT3)}, {v(T+4)}")
for ks in range(4):
    e(f"ds_read_b64_tr_b16 {v(WA+4*ks,2)}, {v(T+4)} offset:{L_W1 + 2048*ks}")
    e(f"ds_read_b64_tr_b16 {v(WA+4*ks+2,2)}, {v(T+4)} offset:{L_W1 + 2048*ks + 256}")
e(f"v_and_b32 {v(BIA+1)}, 0xffff0000, {v(BIA)}")
e(f"v_lshlrev_b32 {v(BIA)}, 16, {v(BIA)}")
e(f"s_cmp_ge_u32 {s(sW)}, 6")
e("s_cbranch_scc1 L_P3")
e(f"s_cmp_ge_u32 {s(sI)}, 28")
e("s_cbranch_scc1 L_P3")
colsum_store(sLB)

lab("L_P3")
c("---------------- P3: split-softmax combine folded into o @ wo")
stamp(6)
e(f"s_lshl_b32 {s(sT0)}, {s(sB)}, 13")
e(f"s_lshl_b32 {s(sT1)}, {s(sW)}, 10")
e(f"s_add_u32 {s(sT0)}, {s(sT0)}, {s(sT1)}")
e(f"s_add_u32 {s(sT0)}, {s(sT0)}, {s(sLB)}")
e(f"s_add_u32 {s(sT0)}, {s(sT0)}, {OB_OFF}")
e(f"s_cmp_eq_u32 {s(sW)}, 7")
e("s_cbranch_scc1 L_P3_W7")
poll(lambda: e(f"buffer_load_dwordx4 {v(T,4)}, {v(aL16)}, {s(sWS,4)}, {s(sT0)} offen sc1"), range(T, T+4), T+4)
stamp(22)
e(f"ds_write_b128 {v(aAFW)}, {v(T,4)}")
e("s_branch L_P3_BAR")
lab("L_P3_W7")
e(f"s_lshl_b32 {s(sT1)}, {s(sB)}, 8")
e(f"s_add_u32 {s(sT1)}, {s(sT1)}, {s(sLB)}")
e(f"s_add_u32 {s(sT1)}, {s(sT1)}, {ML_OFF}")
e(f"v_and_b32 {v(T+9)}, 0xff, {v(aL16)}")
def issue_oml():
    e(f"buffer_load_dwordx4 {v(T,4)}, {v(aL16)}, {s(sWS,4)}, {s(sT0)} offen sc1")
    e(f"buffer_load_dwordx4 {v(T+4,4)}, {v(T+9)}, {s(sWS,4)}, {s(sT1)} offen sc1")
poll(issue_oml, range(T, T+8), T+8)
stamp(22)
e(f"ds_write_b128 {v(aAFW)}, {v(T,4)}")
e(f"ds_write_b128 {v(T+9)}, {v(T+4,4)} offset:{L_ML}")
lab("L_P3_BAR")
stamp(23)
e("s_waitcnt lgkmcnt(0)")
e("s_barrier")
stamp(24)
e(f"s_cmp_ge_u32 {s(sW)}, 4")
e("s_cbranch_scc1 L_P5")
e(f"ds_read2_b64 {v(T,4)}, {v(aMLR)} offset0:0 offset1:4")
for ks in range(4):
    for sh in range(2):
        e(f"ds_read_b128 {v(VR+4*(sh*4+ks),4)}, {v(aAFR)} offset:{sh*16*272 + ks*64}")
e("s_waitcnt lgkmcnt(8)")
e(f"v_max_f32 {v(T+4)}, {v(T)}, {v(T+2)}")
nop(2)
e(f"v_max_f32_dpp {v(T+4)}, {v(T+4)}, {v(T+4)} quad_perm:[1,0,3,2] row_mask:0xf bank_mask:0xf")
nop(2)
e(f"v_max_f32_dpp {v(T+4)}, {v(T+4)}, {v(T+4)} quad_perm:[2,3,0,1] row_mask:0xf bank_mask:0xf")
e(f"v_sub_f32 {v(T)}, {v(T)}, {v(T+4)}")
e(f"v_sub_f32 {v(T+2)}, {v(T+2)}, {v(T+4)}")
e(f"v_exp_f32 {v(T)}, {v(T)}")
e(f"v_exp_f32 {v(T+2)}, {v(T+2)}")
for ks in range(4):
    e(f"s_waitcnt lgkmcnt({6-2*ks})")
    for sh in range(2):
        mfma(ACC+4*sh, WB + 4*ks, VR + 4*(sh*4+ks), None if ks == 0 else ACC+4*sh)
e(f"v_mul_f32 {v(T+4)}, {v(T)}, {v(T+1)}")
e(f"v_fmac_f32 {v(T+4)}, {v(T+2)}, {v(T+3)}")
nop(2)
e(f"v_add_f32_dpp {v(T+4)}, {v(T+4)}, {v(T+4)} quad_perm:[1,0,3,2] row_mask:0xf bank_mask:0xf")
nop(2)
e(f"v_add_f32_dpp {v(T+4)}, {v(T+4)}, {v(T+4)} quad_perm:[2,3,0,1] row_mask:0xf bank_mask:0xf")
e(f"v_rcp_f32 {v(T+4)}, {v(T+4)}")
nop(1)
e(f"v_mul_f32 {v(T)}, {v(T)}, {v(T+4)}")
e(f"v_mul_f32 {v(T+2)}, {v(T+2)}, {v(T+4)}")
for r in range(4):
    e(f"v_mul_f32 {v(ACC+r)}, {v(ACC+r)}, {v(T)}")
for r in range(4):
    e(f"v_fmac_f32 {v(ACC+r)}, {v(ACC+4+r)}, {v(T+2)}")
for r in range(4):
    e(f"v_add_f32_dpp {v(ACC+r)}, {v(ACC+r)}, {v(ACC+r)} quad_perm:[1,0,3,2] row_mask:0xf bank_mask:0xf")
for r in range(4):
    e(f"v_add_f32_dpp {v(ACC+r)}, {v(ACC+r)}, {v(ACC+r)} quad_perm:[2,3,0,1] row_mask:0xf bank_mask:0xf")
set_exec(0x11111111, 0x11111111)
e(f"buffer_store_dwordx4 {v(ACC,4)}, {v(aP3S)}, {s(sWS,4)}, {s(sLB)} offen sc1")
e("s_mov_b64 exec, -1")
stamp(7)
e(f"s_cmp_lg_u32 {s(sW)}, 3")
e("s_cbranch_scc1 L_G5")
c("---------------- P4 (wave 3): x1 slice = x + sum over 32 heads")
e(f"v_lshlrev_b32 {v(T+6)}, 3, {v(vL)}")
e(f"s_cmp_lg_u32 {s(sLAYER)}, 0")
e("s_cbranch_scc1 L_P4_L1")
e(f"v_and_b32 {v(T+4)}, 7, {v(vL)}")
e(f"v_lshlrev_b32 {v(T+4)}, 2, {v(T+4)}")
e(f"s_mov_b32 {s(sCNT)}, 0")
lab("L_GFLAG")
e(f"buffer_load_dword {v(T+5)}, {v(T+4)}, {s(sDBG,4)}, 0 offen offset:128 sc1")
e("s_waitcnt vmcnt(0)")
e(f"v_cmp_eq_u32 vcc, 0, {v(T+5)}")
e("s_cbranch_vccz L_P4_GO")
e(f"s_add_u32 {s(sCNT)}, {s(sCNT)}, 1")
e(f"s_cmp_lt_u32 {s(sCNT)}, {SPIN_MAX}")
e("s_cbranch_scc1 L_GFLAG")
e("s_branch L_P4_GO")
lab("L_P4_L1")
e(f"ds_read_b64 {v(RES,2)}, {v(T+6)} offset:{L_RES}")
if OPT["d4"]:
    e(f"s_sleep {OPT['d4']}")
lab("L_P4_GO")
reduce_slice(8, X1P_OFF, GSZ, False)
set_exec(0xffff, 0xffff)
store_intra("buffer_store_dword", v(T), aXS, sLB, X1_OFF)
e("s_mov_b64 exec, -1")
e(f"ds_write_b64 {v(T+6)}, {v(RES,2)} offset:{L_RES}")
stamp(8)
lab("L_G5")
e(f"s_cmp_lg_u32 {s(sLAYER)}, 0")
e("s_cbranch_scc1 L_G5b")
c("first layer only: waves 0-3 publish the column sums of their wq tile and fetch those of w1")
e(f"s_add_u32 {s(sT0)}, {s(sGB)}, {QP_OFF}")
colsum_store(sT0)
e(f"s_add_u32 {s(sT0)}, {s(sLB)}, {HP_OFF}")
e(f"s_lshl_b32 {s(sT3)}, {s(sW)}, 10")
e(f"s_sub_u32 {s(sT3)}, 4096, {s(sT3)}")
e(f"v_add_u32 {v(T+3)}, {s(sT3)}, {v(aSG)}")
colsum_fetch(sT0, 5120, T+3)
lab("L_G5b")
e("s_waitcnt lgkmcnt(0)")
e("s_branch L_BAR5")
lab("L_P5")
c("---------------- waves 4-7: x1 image -> LDS")
e(f"s_lshl_b32 {s(sT0)}, {s(sWV)}, 10")
e(f"s_add_u32 {s(sT0)}, {s(sT0)}, {s(sLB)}")
poll_x(sT0)
stamp(27)
lab("L_BAR5")
e("s_barrier")
stamp(9)
e(f"s_cmp_lt_u32 {s(sW)}, 4")
e("s_cbranch_scc1 L_HSUM")
e(f"s_cmp_ge_u32 {s(sW)}, 6")
e("s_cbranch_scc1 L_CSQ")
e(f"s_cmp_ge_u32 {s(sI)}, 28")
e("s_cbranch_scc1 L_CSQ")
c("---------------- P5 (waves 4,5): raw x1 @ w1 partial of this tile")
gemv_mma_store(sLB)
stamp(10)
lab("L_CSQ")
e(f"s_cmp_lg_u32 {s(sLAYER)}, 0")
e("s_cbranch_scc1 L_BARH")
c("first layer only: waves 4-7 fetch the column sums of wq")
e(f"s_add_u32 {s(sT0)}, {s(sGB)}, {QP_OFF}")
e(f"s_lshl_b32 {s(sT3)}, {s(sB)}, 11")
e(f"s_sub_u32 {s(sT3)}, 8192, {s(sT3)}")
e(f"v_add_u32 {v(T+3)}, {s(sT3)}, {v(aSG)}")
colsum_fetch(sT0, 10240, T+3)
e("s_branch L_BARH")
lab("L_HSUM")
c("---------------- waves 0-3: h = gelu(LN(LN(x1)) @ w1 + b1) for 128 units x batch w")
e(f"s_add_u32 {s(sT0)}, {s(sLB)}, {HP_OFF}")
sum_partials(sT0, 5120, True)
stamp(28)
K0 = -2.0 * math.log2(math.e) * math.sqrt(2.0 / math.pi)
for r in range(2):
    e(f"v_add_f32 {v(T+r)}, {v(T+r)}, {v(BIA+r)}")
for r in range(2):
    e(f"v_mul_f32 {v(T+2+r)}, {v(T+r)}, {v(T+r)}")
for r in range(2):
    e(f"v_mov_b32 {v(T+4+r)}, {f32(K0)}")
    e(f"v_fmac_f32 {v(T+4+r)}, {f32(K0*0.044715)}, {v(T+2+r)}")
for r in range(2):
    e(f"v_mul_f32 {v(T+4+r)}, {v(T+4+r)}, {v(T+r)}")
for r in range(2):
    e(f"v_exp_f32 {v(T+4+r)}, {v(T+4+r)}")
nop(1)
for r in range(2):
    e(f"v_add_f32 {v(T+4+r)}, 1.0, {v(T+4+r)}")
for r in range(2):
    e(f"v_rcp_f32 {v(T+4+r)}, {v(T+4+r)}")
nop(1)
for r in range(2):
    e(f"v_mul_f32 {v(T+r)}, {v(T+r)}, {v(T+4+r)}")
e(f"v_cvt_pk_bf16_f32 {v(T)}, {v(T)}, {v(T+1)}")
e(f"ds_write_b32 {v(aSW)}, {v(T)}")
e("s_waitcnt lgkmcnt(0)")
lab("L_BARH")
e("s_barrier")
stamp(20)
e(f"s_cmp_lt_u32 {s(sW)}, 6")
e("s_cbranch_scc1 L_NEXT")
c("---------------- P6 (waves 6,7): h[128 units] @ w2 tile -> partial x2")
for ks in range(4):
    e(f"ds_read_b128 {v(VR+4*ks,4)}, {v(aHR)} offset:{64*ks}")
e("s_waitcnt lgkmcnt(2)")
mfma(ACC, WA+4, VR+4, None)
e("s_waitcnt lgkmcnt(1)")
mfma(ACC, WA+8, VR+8, ACC)
e("s_waitcnt lgkmcnt(0)")
mfma(ACC, WA+12, VR+12, ACC)
e(f"s_cmp_lg_u32 {s(sKH)}, 0")
e("s_cbranch_scc1 L_P6_S")
mfma(ACC, WA, VR, ACC)
lab("L_P6_S")
nop(8)
e(f"s_mov_b64 exec, {s(sMA[0],2)}")
e(f"buffer_store_dwordx4 {v(ACC,4)}, {v(aPS)}, {s(sWS,4)}, {s(sLB)} offen sc1")
e("s_mov_b64 exec, -1")
stamp(11)
e(f"s_cmp_lg_u32 {s(sW)}, 6")
e("s_cbranch_scc1 L_NEXT")
c("---------------- P7 (wave 6): x2 slice = x1 + b2 + sum over 16 partials")
e(f"v_lshlrev_b32 {v(T+6)}, 3, {v(vL)}")
e(f"ds_read_b64 {v(RES,2)}, {v(T+6)} offset:{L_RES}")
e(f"s_cmp_eq_u32 {s(sLAYER)}, 0")
e("s_cbranch_scc1 L_P7_GO")
e(f"s_cmp_lg_u32 {s(sS)}, {s(sG)}")
e("s_cbranch_scc1 L_END")
lab("L_P7_GO")
if OPT["d7"]:
    e(f"s_sleep {OPT['d7']}")
reduce_slice(4, X2P_OFF, 2*GSZ, True)
set_exec(0xffff, 0xffff)
e(f"s_cmp_eq_u32 {s(sLAYER)}, 0")
e("s_cbranch_scc1 L_P7_MID")
if OPT["diag"] == 1:
    e(f"s_cmp_lg_u32 {s(sFAST)}, 0")
    e("s_cbranch_scc1 L_DIAG")
    for _ in range(16): e("s_sleep 127")
    lab("L_DIAG")
if OPT["diag"] == 2:
    for _ in range(4): e("s_sleep 127")
e(f"buffer_store_dword {v(T)}, {v(aXN)}, {s(sOUT,4)}, 0 offen")
e("s_cmp_lg_u32 s2, 0")
e("s_cbranch_scc1 L_NOCLEAN")
c("WG 0: every workgroup is past the nonce / flag words by now; leave d_debug zero again")
e("s_mov_b64 exec, -1")
e(f"v_mov_b32 {v(T+1)}, 0")
if OPT["diag"] == 4:
    e(f"s_memrealtime {s(sTM,2)}")
    e("s_waitcnt lgkmcnt(0)")
    e(f"s_sub_u32 {s(sD3)}, {s(sTM)}, {s(sD0)}")
    e(f"s_sub_u32 {s(sD1)}, {s(sD1)}, {s(sD0)}")
    e(f"s_sub_u32 {s(sD2)}, {s(sD2)}, {s(sD0)}")
    e(f"v_writelane_b32 {v(T+1)}, {s(sD1)}, 2")
    e(f"v_writelane_b32 {v(T+1)}, {s(sD2)}, 3")
    e(f"v_writelane_b32 {v(T+1)}, {s(sD3)}, 4")
e(f"buffer_store_dword {v(T+1)}, {v(aL4)}, {s(sDBG,4)}, 0 offen sc1")
lab("L_NOCLEAN")
stamp(12)
e("s_branch L_END")
lab("L_P7_MID")
if OPT["diag"] == 4:
    e(f"s_memrealtime {s(sTM,2)}")
    e("s_waitcnt lgkmcnt(0)")
    e(f"s_mov_b32 {s(sD2)}, {s(sTM)}")
e(f"s_add_u32 {s(sT0)}, {s(sLB)}, {X2_OFF}")
store_intra("buffer_store_dword", v(T), aXS, sT0, 0)
e("s_mov_b64 exec, -1")
e(f"ds_write_b64 {v(T+6)}, {v(RES,2)} offset:{L_RES}")
stamp(12)
lab("L_NEXT")
e(f"s_cmp_lg_u32 {s(sLAYER)}, 0")
e("s_cbranch_scc1 L_END")
e(f"s_cmp_ge_u32 {s(sW)}, 4")
e("s_cbranch_scc1 L_BAR1")
c("---------------- waves 0-3: x2 image -> LDS")
e(f"s_lshl_b32 {s(sT0)}, {s(sWV)}, 10")
e(f"s_add_u32 {s(sT0)}, {s(sT0)}, {s(sLB)}")
e(f"s_add_u32 {s(sT0)}, {s(sT0)}, {X2_OFF}")
poll_x(sT0)
stamp(29)
lab("L_BAR1")
e(f"s_mov_b32 {s(sLAYER)}, 1")
e(f"s_add_u32 {s(sLB)}, {s(sLB)}, {LSZ}")
e(f"s_mov_b32 {s(sLO)}, {LSZ}")
if OPT["stamps"]:
    e(f"v_mov_b32 {v(vSTAMP0)}, {v(vSTAMP)}")
    e(f"v_mov_b32 {v(vSTAMP)}, 0")
e("s_waitcnt lgkmcnt(0)")
e("s_barrier")
stamp(1)
e(f"s_add_u32 {s(sT0)}, {s(sGB)}, {QP_OFF}")
e(f"s_cmp_ge_u32 {s(sW)}, 4")
e("s_cbranch_scc1 L_QSUM")
c("---------------- P1 (waves 0-3): raw x2 @ wq partial of this tile")
gemv_mma_store(sT0)
stamp(3)
e("s_branch L_QBAR")
lab("L_QSUM")
c("---------------- waves 4-7: q = LN(x2) @ wq for head w-4 of this batch")
sum_partials(sT0, 10240, False)
stamp(4)
e(f"v_cvt_pk_bf16_f32 {v(T)}, {v(T)}, {v(T+1)}")
e(f"ds_write_b32 {v(aSW)}, {v(T)}")
e("s_waitcnt lgkmcnt(0)")
lab("L_QBAR")
e("s_barrier")
stamp(2)
e("s_branch L_LOOP")
lab("L_END")
if OPT["stamps"]:
    e("s_mov_b64 exec, -1")
    e("s_cmp_ge_u32 s2, 256")
    e("s_cbranch_scc1 L_END2")
    stamp(13)
    set_exec(0xffffffff, 0)
    e(f"buffer_store_dword {v(vSTAMP0)}, {v(aL4)}, {s(sWS,4)}, {s(sSTB)} offen")
    e(f"buffer_store_dword {v(vSTAMP)}, {v(aL4)}, {s(sWS,4)}, {s(sSTB)} offen offset:128")
    lab("L_END2")
e("s_endpgm")

nv = (NVGPR + 7) // 8 * 8
out.append('.section .rodata,"a"')
out.append(".p2align 6")
out.append(f".amdhsa_kernel {KNAME}")
out.append(f"  .amdhsa_next_free_vgpr {nv}")
out.append(f"  .amdhsa_next_free_sgpr 102")
out.append(f"  .amdhsa_accum_offset {nv}")
out.append("  .amdhsa_group_segment_fixed_size 0")
out.append("  .amdhsa_kernarg_size 104")
out.append("  .amdhsa_user_sgpr_count 2")
out.append("  .amdhsa_user_sgpr_kernarg_segment_ptr 1")
out.append("  .amdhsa_system_sgpr_workgroup_id_x 1")
out.append(".end_amdhsa_kernel")
open(sys.argv[1], "w").write("\n".join(out) + "\n")
print("vgprs", NVGPR, "sgprs", S.n, "lds", LDS_BYTES, "lines", len(out))
```

```python
import sys, struct, math

NAME = "interleave_layers__sliding_block_cached__mixer_channel_mlp__decode"
KNAME = NAME + "_kernel"

OPT = dict(stamps=0, D=4, touch=1, d4=9, d7=9, diag=0, cpf=1, K0=4, ns=12, qs=16, DV=0, DW=0, nopf=0, pp=0, gap=2, xb=0)
for a in sys.argv[2:]:
    k, v_ = a.split("=")
    OPT[k] = int(v_)

def f32(x):
    return "0x%08x" % struct.unpack("<I", struct.pack("<f", x))[0]

X1_OFF = 0x0000
X2_OFF = 0x1000
ML_OFF = 0x2000
HP_OFF = 0x3000
OB_OFF = 0x8000
X1P_OFF = 0x10000
X2P_OFF = 0x18000
LSZ = 0x1C000
QP_OFF = 2 * LSZ
GSZ = QP_OFF + 0xA000
PF = GSZ // 32
TAG_BASE = 8 * GSZ
STAMP_BASE = 0x400000
assert TAG_BASE + 8 * 0x10000 <= STAMP_BASE and PF == 8448

L_WQ = 0
L_WO = 16384
L_W1 = 32768
L_W2 = 40960
L_G1 = 49152
L_G5 = 53248
L_CNT = L_G5
L_H = 57344
L_Q = L_H + 1088
L_MX = L_Q + 1088
L_LS = L_MX + 128
L_ML = L_LS + 128
L_RES = L_ML + 256
L_X0 = L_RES + 512
L_XI = L_X0
assert L_X0 % 16 == 0 and L_X0 + 4096 <= 65536
L_OB = 65536
OSTR = 2560
L_AF = L_OB + 8 * OSTR
LDS_BYTES = L_AF + 32 * 272

SPIN_MAX = 0x20000

class Regs:
    def __init__(self, start, limit, p):
        self.n = start; self.limit = limit; self.p = p
    def alloc(self, cnt=1, align=1):
        self.n = (self.n + align - 1) // align * align
        r = self.n; self.n += cnt
        assert self.n <= self.limit, (self.p, self.n)
        return r

S = Regs(4, 100, "s")
V = Regs(1, 256, "v")
def s(r, n=1): return f"s{r}" if n == 1 else f"s[{r}:{r+n-1}]"
def v(r, n=1): return f"v{r}" if n == 1 else f"v[{r}:{r+n-1}]"

sX, sK, sV, sWQ, sWO, sW1, sB1, sW2, sB2, sOUT, sDBG, sWS = [S.alloc(4, 4) for _ in range(12)]
sW = S.alloc(); sG = S.alloc(); sI = S.alloc(); sB = S.alloc(); sS = S.alloc()
sGB = S.alloc()
sLB = S.alloc()
sLO = S.alloc()
sLAYER = S.alloc(); sFAST = S.alloc(); sNONCE = S.alloc(); sCNT = S.alloc()
sT0 = S.alloc(); sT1 = S.alloc(); sT2 = S.alloc(); sT3 = S.alloc()
sROT = S.alloc(); sROTH = S.alloc(); sKVB = S.alloc()
sC = S.alloc(); sPLO = S.alloc(); sPHI = S.alloc(); sXCC = S.alloc(); sTB = S.alloc()
sKQ = S.alloc(); sWV = S.alloc(); sKH = S.alloc()
sMA = [S.alloc(2, 2) for _ in range(4)]
sM5 = S.alloc(2, 2)
sTM = S.alloc(2, 2); sSTB = S.alloc()
sPC = S.alloc(2, 2)
sD0 = S.alloc(); sD1 = S.alloc(); sD2 = S.alloc(); sD3 = S.alloc()

vL = V.alloc(); vMW = V.alloc(); aL4 = V.alloc()
KF = V.alloc(32, 4)
VT = V.alloc(32, 4)
VR = V.alloc(32, 4)
WA = V.alloc(16, 4)
WB = V.alloc(16, 4)
XF = V.alloc(16, 4)
QF = V.alloc(16, 4)
PB = V.alloc(16, 4)
ONE = V.alloc(4, 4)
ACC = V.alloc(16, 4)
T = V.alloc(16, 4)
aQR = V.alloc()
aXF = V.alloc()
aOST = V.alloc()
aAFW = V.alloc(); aAFR = V.alloc(); aMLR = V.alloc()
aP3S = V.alloc()
aRG = V.alloc()
aXN = V.alloc(); aXS = V.alloc()
aPS = V.alloc()
aSG = V.alloc()
aSW = V.alloc()
aXR = V.alloc()
aHR = V.alloc()
aL16 = V.alloc(); aGW = V.alloc()
aOW = V.alloc(); aOR = V.alloc(); aMX = V.alloc(); aMXW = V.alloc()
aTG = V.alloc()
RES = V.alloc(2, 2); BIA = V.alloc(2, 2); CS = V.alloc(2, 2)
vSTAMP = V.alloc(); vSTAMP0 = V.alloc()
NVGPR = V.n

out = []
def e(x): out.append("    " + x)
def lab(x): out.append(x + ":")
def c(x): out.append("    ; " + x)
def nop(n):
    while n > 0:
        k = min(n, 16); e(f"s_nop {k-1}"); n -= k
_uid = [0]
def uid(p="L"):
    _uid[0] += 1
    return f"{p}_{_uid[0]}"

def stamp(idx):
    if not OPT["stamps"]: return
    if idx >= 16 and OPT["stamps"] < 2: return
    if idx in (0, 13):
        e(f"s_memrealtime {s(sTM,2)}")
        e("s_waitcnt lgkmcnt(0)")
        e(f"v_writelane_b32 {v(vSTAMP)}, {s(sTM)}, 15")
    e(f"s_memtime {s(sTM,2)}")
    e("s_waitcnt lgkmcnt(0)")
    e(f"v_writelane_b32 {v(vSTAMP)}, {s(sTM)}, {idx}")

def mfma(d, a, b, cc):
    cs = "0" if cc is None else v(cc, 4)
    e(f"v_mfma_f32_16x16x32_bf16 {v(d,4)}, {v(a,4)}, {v(b,4)}, {cs}")

def set_exec(lo, hi):
    e(f"s_mov_b32 exec_lo, {hex(lo)}")
    e(f"s_mov_b32 exec_hi, {hex(hi)}")

def check_sentinel(regs, tmp):
    regs = list(regs)
    e(f"v_max3_u32 {v(tmp)}, {v(regs[0])}, {v(regs[1])}, {v(regs[2])}")
    rest = regs[3:]
    while len(rest) >= 2:
        e(f"v_max3_u32 {v(tmp)}, {v(tmp)}, {v(rest[0])}, {v(rest[1])}")
        rest = rest[2:]
    if rest:
        e(f"v_max_u32 {v(tmp)}, {v(tmp)}, {v(rest[0])}")
    e(f"v_cmp_eq_u32 vcc, -1, {v(tmp)}")

def poll(issue, regs, tmp):
    top = uid("POLL"); done = uid("POLLD")
    e(f"s_mov_b32 {s(sCNT)}, 0")
    lab(top)
    issue()
    e("s_waitcnt vmcnt(0)")
    check_sentinel(regs, tmp)
    e(f"s_cbranch_vccz {done}")
    e(f"s_add_u32 {s(sCNT)}, {s(sCNT)}, 1")
    e(f"s_cmp_lt_u32 {s(sCNT)}, {SPIN_MAX}")
    e(f"s_cbranch_scc1 {top}")
    lab(done)

def poll2(issue, A, B, n, nloads, tmp):
    if not OPT["pp"]:
        poll(lambda: issue(A), range(A, A+n), tmp); return
    top = uid("PP"); dA = uid("PPA"); dB = uid("PPB")
    e(f"s_mov_b32 {s(sCNT)}, 0")
    issue(A)
    e(f"s_sleep {OPT['gap']}")
    lab(top)
    issue(B)
    e(f"s_waitcnt vmcnt({nloads})")
    check_sentinel(range(A, A+n), tmp)
    e(f"s_cbranch_vccz {dA}")
    issue(A)
    e(f"s_waitcnt vmcnt({nloads})")
    check_sentinel(range(B, B+n), tmp)
    e(f"s_cbranch_vccz {dB}")
    e(f"s_add_u32 {s(sCNT)}, {s(sCNT)}, 1")
    e(f"s_cmp_lt_u32 {s(sCNT)}, {SPIN_MAX}")
    e(f"s_cbranch_scc1 {top}")
    lab(dB)
    for k in range(n):
        e(f"v_mov_b32 {v(A+k)}, {v(B+k)}")
    lab(dA)

def store_intra(op, data, addr, soff, off):
    slow = uid("STS"); done = uid("STD")
    e(f"s_cmp_eq_u32 {s(sFAST)}, 0")
    e(f"s_cbranch_scc1 {slow}")
    e(f"{op} {data}, {v(addr)}, {s(sWS,4)}, {s(soff)} offen offset:{off}")
    e(f"s_branch {done}")
    lab(slow)
    e(f"{op} {data}, {v(addr)}, {s(sWS,4)}, {s(soff)} offen offset:{off} sc1")
    lab(done)

def poll_x(soff):
    e(f"s_lshl_b32 {s(sT3)}, {s(sWV)}, 10")
    e(f"v_add_u32 {v(T+2)}, {s(sT3)}, {v(aL16)}")
    poll2(lambda R: e(f"buffer_load_dwordx4 {v(R,4)}, {v(aL16)}, {s(sWS,4)}, {s(soff)} offen sc1"), QF, QF+4, 4, 1, T+1)
    e(f"ds_write_b128 {v(T+2)}, {v(QF,4)} offset:{L_XI}")
    e("s_waitcnt lgkmcnt(0)")

def gemv_mma_store(soff):
    for ks in range(4):
        e(f"ds_read_b128 {v(XF+4*ks,4)}, {v(aXF)} offset:{L_XI + 256*ks}")
    for ks in range(4):
        e(f"s_waitcnt lgkmcnt({3-ks})")
        mfma(ACC, WA + 4*ks, XF + 4*ks, None if ks == 0 else ACC)
    nop(6)
    e(f"s_mov_b64 exec, {s(sMA[0],2)}")
    store_intra("buffer_store_dwordx4", v(ACC,4), aPS, soff, 0)
    e("s_mov_b64 exec, -1")
    e("s_waitcnt vmcnt(0)")

def colsum_store(soff):
    e("s_waitcnt lgkmcnt(0)")
    for ks in range(4):
        mfma(ACC, WA + 4*ks, ONE, None if ks == 0 else ACC)
    nop(6)
    set_exec(0x00100010, 0x00100010)
    store_intra("buffer_store_dwordx4", v(ACC,4), aPS, soff, 0)
    e("s_mov_b64 exec, -1")

def colsum_fetch(soff, kq_stride, addr):
    def issue():
        e(f"s_mov_b32 {s(sT1)}, {s(soff)}")
        for k in range(4):
            e(f"buffer_load_dwordx2 {v(VR+2*k,2)}, {v(addr)}, {s(sWS,4)}, {s(sT1)} offen sc1")
            if k < 3: e(f"s_add_u32 {s(sT1)}, {s(sT1)}, {kq_stride}")
    poll(issue, range(VR, VR+8), T+2)
    e(f"v_pk_add_f32 {v(VR,2)}, {v(VR,2)}, {v(VR+2,2)}")
    e(f"v_pk_add_f32 {v(VR+4,2)}, {v(VR+4,2)}, {v(VR+6,2)}")
    e(f"v_pk_add_f32 {v(CS,2)}, {v(VR,2)}, {v(VR+4,2)}")

def wave_sum(r, tmp):
    for m in ("quad_perm:[1,0,3,2]", "quad_perm:[2,3,0,1]", "row_half_mirror", "row_mirror"):
        nop(2)
        e(f"v_add_f32_dpp {v(r)}, {v(r)}, {v(r)} {m} row_mask:0xf bank_mask:0xf")
    for sw in ("v_permlane16_swap_b32", "v_permlane32_swap_b32"):
        e(f"v_mov_b32 {v(tmp)}, {v(r)}")
        nop(2)
        e(f"{sw} {v(r)}, {v(tmp)}")
        nop(1)
        e(f"v_add_f32 {v(r)}, {v(r)}, {v(tmp)}")

def row_stats(double_ln):
    X = QF
    e("s_waitcnt vmcnt(0)")
    e(f"ds_read_b128 {v(X,4)}, {v(aXR)}")
    e("s_waitcnt lgkmcnt(0)")
    for k in range(4):
        e(f"v_and_b32 {v(X+4+2*k+1)}, 0xffff0000, {v(X+k)}")
        e(f"v_lshlrev_b32 {v(X+4+2*k)}, 16, {v(X+k)}")
    e(f"v_pk_add_f32 {v(X,2)}, {v(X+4,2)}, {v(X+6,2)}")
    e(f"v_pk_add_f32 {v(X+2,2)}, {v(X+8,2)}, {v(X+10,2)}")
    e(f"v_pk_add_f32 {v(X,2)}, {v(X,2)}, {v(X+2,2)}")
    e(f"v_add_f32 {v(T+8)}, {v(X)}, {v(X+1)}")
    wave_sum(T+8, T+5)
    e(f"v_mul_f32 {v(T+8)}, {f32(1/512)}, {v(T+8)}")
    for k in range(8):
        e(f"v_sub_f32 {v(X+4+k)}, {v(X+4+k)}, {v(T+8)}")
    e(f"v_mul_f32 {v(T+4)}, {v(X+4)}, {v(X+4)}")
    for k in range(1, 8):
        e(f"v_fmac_f32 {v(T+4)}, {v(X+4+k)}, {v(X+4+k)}")
    wave_sum(T+4, T+5)
    e(f"v_mul_f32 {v(T+4)}, {f32(1/512)}, {v(T+4)}")
    scale_from_var(T+4, double_ln, T+5)

def scale_from_var(s2, double_ln, tmp):
    e(f"v_add_f32 {v(tmp)}, {f32(1e-5)}, {v(s2)}")
    e(f"v_rsq_f32 {v(tmp)}, {v(tmp)}")
    nop(1)
    if double_ln:
        e(f"v_mul_f32 {v(s2)}, {v(s2)}, {v(tmp)}")
        e(f"v_mul_f32 {v(s2)}, {v(s2)}, {v(tmp)}")
        e(f"v_add_f32 {v(s2)}, {f32(1e-5)}, {v(s2)}")
        e(f"v_rsq_f32 {v(s2)}, {v(s2)}")
        nop(1)
        e(f"v_mul_f32 {v(s2)}, {v(s2)}, {v(tmp)}")
    else:
        e(f"v_mov_b32 {v(s2)}, {v(tmp)}")

def stats_from(s2, s1, double_ln, tmp):
    e(f"v_mul_f32 {v(s1)}, {f32(1/512)}, {v(s1)}")
    e(f"v_mul_f32 {v(s2)}, {f32(1/512)}, {v(s2)}")
    e(f"v_fma_f32 {v(s2)}, -{v(s1)}, {v(s1)}, {v(s2)}")
    e(f"v_max_f32 {v(s2)}, 0, {v(s2)}")
    scale_from_var(s2, double_ln, tmp)

def sum_partials(soff, kq_stride, double_ln):
    row_stats(double_ln)
    e(f"v_mul_f32 {v(T+6)}, {v(T+8)}, {v(CS)}")
    e(f"v_mul_f32 {v(T+7)}, {v(T+8)}, {v(CS+1)}")
    def issue(R):
        e(f"s_mov_b32 {s(sT1)}, {s(soff)}")
        for k in range(4):
            e(f"buffer_load_dwordx2 {v(R+2*k,2)}, {v(aSG)}, {s(sWS,4)}, {s(sT1)} offen sc1")
            if k < 3: e(f"s_add_u32 {s(sT1)}, {s(sT1)}, {kq_stride}")
    poll2(issue, VR, VR+8, 8, 4, T+2)
    e(f"v_pk_add_f32 {v(VR+16,2)}, {v(VR,2)}, {v(VR+2,2)}")
    e(f"v_pk_add_f32 {v(VR+18,2)}, {v(VR+4,2)}, {v(VR+6,2)}")
    e(f"v_pk_add_f32 {v(VR+16,2)}, {v(VR+16,2)}, {v(T+6,2)} neg_lo:[0,1] neg_hi:[0,1]")
    e(f"v_pk_add_f32 {v(VR+16,2)}, {v(VR+16,2)}, {v(VR+18,2)}")
    e(f"v_mul_f32 {v(T)}, {v(VR+16)}, {v(T+4)}")
    e(f"v_mul_f32 {v(T+1)}, {v(VR+17)}, {v(T+4)}")

def reduce_slice(nload, base_off, step, extra_bias):
    def issue():
        e(f"s_add_u32 {s(sT0)}, {s(sLO)}, {base_off}")
        for t in range(nload):
            e(f"buffer_load_dwordx4 {v(VR+4*t,4)}, {v(aRG)}, {s(sWS,4)}, {s(sT0)} offen sc1")
            if t + 1 < nload:
                e(f"s_add_u32 {s(sT0)}, {s(sT0)}, {step}")
    poll(issue, range(VR, VR + 4*nload), T)
    stamp(25 if nload == 8 else 26)
    n = nload
    while n > 1:
        h = n // 2
        for t in range(h):
            e(f"v_pk_add_f32 {v(VR+4*t,2)}, {v(VR+4*t,2)}, {v(VR+4*(t+h),2)}")
            e(f"v_pk_add_f32 {v(VR+4*t+2,2)}, {v(VR+4*t+2,2)}, {v(VR+4*(t+h)+2,2)}")
        n = h
    nop(2)
    e(f"v_permlane32_swap_b32 {v(VR)}, {v(VR+2)}")
    e(f"v_permlane32_swap_b32 {v(VR+1)}, {v(VR+3)}")
    nop(1)
    e(f"v_add_f32 {v(VR)}, {v(VR)}, {v(VR+2)}")
    e(f"v_add_f32 {v(VR+1)}, {v(VR+1)}, {v(VR+3)}")
    e(f"v_mov_b32 {v(VR+2)}, {v(VR)}")
    e(f"v_mov_b32 {v(VR+3)}, {v(VR+1)}")
    nop(2)
    e(f"v_permlane16_swap_b32 {v(VR)}, {v(VR+2)}")
    e(f"v_permlane16_swap_b32 {v(VR+1)}, {v(VR+3)}")
    nop(1)
    e(f"v_add_f32 {v(VR)}, {v(VR)}, {v(VR+2)}")
    e(f"v_add_f32 {v(VR+1)}, {v(VR+1)}, {v(VR+3)}")
    if extra_bias:
        e(f"v_add_f32 {v(VR)}, {v(VR)}, {v(BIA)}")
        e(f"v_add_f32 {v(VR+1)}, {v(VR+1)}, {v(BIA+1)}")
    e(f"v_cvt_pk_bf16_f32 {v(T)}, {v(VR)}, {v(VR+1)}")
    e(f"v_lshlrev_b32 {v(VR)}, 16, {v(T)}")
    e(f"v_and_b32 {v(VR+1)}, 0xffff0000, {v(T)}")
    e("s_waitcnt lgkmcnt(0)")
    e(f"v_add_f32 {v(VR)}, {v(VR)}, {v(RES)}")
    e(f"v_add_f32 {v(VR+1)}, {v(VR+1)}, {v(RES+1)}")
    e(f"v_cvt_pk_bf16_f32 {v(T)}, {v(VR)}, {v(VR+1)}")
    e(f"v_min_u32 {v(T)}, -2, {v(T)}")
    e(f"v_lshlrev_b32 {v(RES)}, 16, {v(T)}")
    e(f"v_and_b32 {v(RES+1)}, 0xffff0000, {v(T)}")

D = OPT["D"]
DV = OPT["DV"] or D
DW = OPT["DW"] or DV

hdr = open("cdna_kernels/" + NAME + ".s.ref").read().split("\n")
head = [l for l in hdr if l.startswith(";") and "@launch" not in l and "Override launch" not in l and "grid=ceil" not in l]
out.extend(head)
out.append(f"; @launch grid=(256,1,1) block=(512,1,1) lds={LDS_BYTES}")
out.append('.amdgcn_target "amdgcn-amd-amdhsa--gfx950"')
out.append(".text")
out.append(f".globl {KNAME}")
out.append(".p2align 8")
out.append(f".type {KNAME},@function")
lab(KNAME)

e("s_cmp_ge_u32 s2, 256")
e("s_cbranch_scc1 L_END")
for reg, off in ((sWQ,24),(sK,8),(sV,16),(sWS,96),(sX,0),(sWO,32),(sW1,48),(sB1,56),(sW2,64),(sB2,72),(sOUT,80),(sDBG,88)):
    e(f"s_load_dwordx2 {s(reg,2)}, s[0:1], {off}")
for reg, nb in ((sX,4096),(sK,0x4000000),(sV,0x4000000),(sWQ,512*4096*2),(sWO,4096*512*2),(sW1,512*1792*2),(sB1,1792*2),
                (sW2,1792*512*2),(sB2,1024),(sOUT,4096),(sDBG,256),(sWS,0x10000000)):
    e(f"s_mov_b32 {s(reg+2)}, {hex(nb)}")
    e(f"s_mov_b32 {s(reg+3)}, 0x00020000")
e(f"v_lshrrev_b32 {v(T)}, 6, v0")
e(f"v_and_b32 {v(vL)}, 63, v0")
e(f"v_readfirstlane_b32 {s(sW)}, {v(T)}")
e(f"s_and_b32 {s(sG)}, s2, 7")
e(f"s_lshr_b32 {s(sI)}, s2, 3")
e(f"s_lshr_b32 {s(sB)}, {s(sI)}, 3")
e(f"s_and_b32 {s(sS)}, {s(sI)}, 7")
e(f"s_and_b32 {s(sKQ)}, {s(sI)}, 3")
e(f"s_and_b32 {s(sKH)}, {s(sI)}, 1")
e(f"s_and_b32 {s(sWV)}, {s(sW)}, 3")
e(f"v_lshlrev_b32 {v(aL16)}, 4, {v(vL)}")
e(f"s_add_u32 {s(sROT)}, {s(sW)}, s2")
e(f"s_add_u32 {s(sROT)}, {s(sROT)}, {s(sI)}")
e(f"s_and_b32 {s(sROT)}, {s(sROT)}, 7")
e(f"s_lshr_b32 {s(sROTH)}, {s(sW)}, 1")
e(f"s_add_u32 {s(sROTH)}, {s(sROTH)}, {s(sB)}")
e(f"s_and_b32 {s(sROTH)}, {s(sROTH)}, 1")
e(f"s_lshl_b32 {s(sROTH)}, {s(sROTH)}, 7")
e(f"s_lshl_b32 {s(sKVB)}, {s(sB)}, 3")
e(f"s_add_u32 {s(sKVB)}, {s(sKVB)}, {s(sG)}")
e(f"s_lshl_b32 {s(sKVB)}, {s(sKVB)}, 21")
e(f"s_lshl_b32 {s(sT3)}, {s(sS)}, 16")
e(f"s_add_u32 {s(sKVB)}, {s(sKVB)}, {s(sT3)}")
e(f"s_lshl_b32 {s(sT3)}, {s(sW)}, 13")
e(f"s_add_u32 {s(sKVB)}, {s(sKVB)}, {s(sT3)}")
e(f"s_add_u32 {s(sKVB)}, {s(sKVB)}, {6144*256}")
kA = [PB, PB+1]; kAh = [PB+2, PB+3]
e(f"v_and_b32 {v(T+6)}, 3, {v(vL)}")
e(f"v_add_u32 {v(T+6)}, {s(sROT)}, {v(T+6)}")
e(f"v_bfe_u32 {v(T+7)}, {v(vL)}, 2, 1")
e(f"v_lshrrev_b32 {v(T+8)}, 3, {v(vL)}")
e(f"v_lshlrev_b32 {v(T+9)}, 4, {v(T+8)}")
e(f"v_lshl_add_u32 {v(T+9)}, {v(T+7)}, 8, {v(T+9)}")
e(f"v_add_u32 {v(T+9)}, {s(sROTH)}, {v(T+9)}")
for t in range(2):
    e(f"v_add_u32 {v(T+10)}, {4*t}, {v(T+6)}")
    e(f"v_and_b32 {v(T+10)}, 7, {v(T+10)}")
    e(f"v_lshl_add_u32 {v(kA[t])}, {v(T+10)}, 10, {v(T+9)}")
    e(f"v_xor_b32 {v(kAh[t])}, 0x80, {v(kA[t])}")
if OPT["stamps"]:
    e(f"v_mov_b32 {v(vSTAMP)}, 0")
    e(f"v_mov_b32 {v(vSTAMP0)}, 0")

def kslot(t, hf, mh): return KF + 4*(t*4 + hf*2 + mh)
def issue_k(n):
    t, hf, mh = n >> 2, (n >> 1) & 1, n & 1
    a = kA[t] if hf == 0 else kAh[t]
    e(f"buffer_load_dwordx4 {v(kslot(t,hf,mh),4)}, {v(a)}, {s(sK,4)}, {s(sKVB)} offen offset:{512*mh} nt")
def issue_v(i):
    e(f"s_add_u32 {s(sT3)}, {s(sROT)}, {i}")
    e(f"s_and_b32 {s(sT3)}, {s(sT3)}, 7")
    e(f"s_lshl_b32 {s(sT3)}, {s(sT3)}, 10")
    e(f"s_add_u32 {s(sT3)}, {s(sT3)}, {s(sKVB)}")
    e(f"buffer_load_dwordx4 {v(VR+4*i,4)}, {v(aL16)}, {s(sV,4)}, {s(sT3)} offen nt")

e(f"v_and_b32 {v(T+7)}, 7, {v(vL)}")
e(f"v_lshlrev_b32 {v(T+7)}, 4, {v(T+7)}")
e(f"v_lshl_add_u32 {v(T+7)}, {v(T+8)}, 13, {v(T+7)}")
e(f"s_lshl_b32 {s(sT3)}, {s(sG)}, 10")
e(f"s_lshr_b32 {s(sT0)}, {s(sI)}, 2")
e(f"s_lshl_b32 {s(sT0)}, {s(sT0)}, 7")
e(f"s_add_u32 {s(sT3)}, {s(sT3)}, {s(sT0)}")
e(f"s_lshl_b32 {s(sT0)}, {s(sKQ)}, 20")
e(f"s_add_u32 {s(sT3)}, {s(sT3)}, {s(sT0)}")
e(f"s_lshl_b32 {s(sT0)}, {s(sW)}, 17")
e(f"s_add_u32 {s(sT3)}, {s(sT3)}, {s(sT0)}")
e(f"s_lshl_b32 {s(sT0)}, {s(sW)}, 11")
e(f"s_add_u32 {s(sT0)}, {s(sT0)}, {L_WQ}")
e(f"s_mov_b32 m0, {s(sT0)}")
e(f"v_mov_b32 {v(T+11)}, {L_CNT}")
e(f"v_mov_b32 {v(T+12)}, 0")
e(f"ds_write_b32 {v(T+11)}, {v(T+12)}")
e("s_waitcnt lgkmcnt(0)")
stamp(0)
if OPT["diag"] == 4:
    e(f"s_memrealtime {s(sTM,2)}")
    e("s_waitcnt lgkmcnt(0)")
    e(f"s_mov_b32 {s(sD0)}, {s(sTM)}")
e(f"s_cmp_lg_u32 {s(sW)}, 7")
e("s_cbranch_scc1 L_SETUP3")
e("s_cmp_lg_u32 s2, 0")
e("s_cbranch_scc1 L_SETUP3")
c("WG 0 wave 7 publishes the launch nonce (tells this launch's first hand-off from stale words)")
e(f"s_memrealtime {s(sTM,2)}")
e("s_waitcnt lgkmcnt(0)")
e(f"s_lshl_b32 {s(sNONCE)}, {s(sTM)}, 4")
e(f"s_or_b32 {s(sNONCE)}, {s(sNONCE)}, 0x80000000")
e(f"v_mov_b32 {v(ACC+4)}, {s(sNONCE)}")
e(f"v_mov_b32 {v(ACC+5)}, 0")
e("s_mov_b64 exec, 1")
e(f"buffer_store_dword {v(ACC+4)}, {v(ACC+5)}, {s(sDBG,4)}, 0 offen sc1")
e("s_mov_b64 exec, -1")
lab("L_SETUP3")
e(f"buffer_load_dwordx4 {v(T+7)}, {s(sWQ,4)}, {s(sT3)} offen nt lds")
e(f"s_add_u32 {s(sT0)}, {s(sT0)}, 1024")
e(f"s_mov_b32 m0, {s(sT0)}")
e(f"s_add_u32 {s(sT3)}, {s(sT3)}, {8*8192}")
e(f"buffer_load_dwordx4 {v(T+7)}, {s(sWQ,4)}, {s(sT3)} offen nt lds")
e(f"s_cmp_lg_u32 {s(sW)}, 1")
e("s_cbranch_scc1 L_NOCPF")
c("wave 1: pull 1 KB of the kernel's own code into L2 (loads only)")
e(f"s_getpc_b64 {s(sPC,2)}")
lab("L_PCREF")
e(f"s_sub_u32 {s(sPC)}, {s(sPC)}, L_PCREF-{KNAME}")
e(f"s_subb_u32 {s(sPC+1)}, {s(sPC+1)}, 0")
e(f"s_and_b32 {s(sT1)}, {s(sI)}, 15")
e(f"s_lshl_b32 {s(sT1)}, {s(sT1)}, 10")
e(f"v_add_u32 {v(T+9)}, {s(sT1)}, {v(aL16)}")
e(f"global_load_dwordx4 {v(PB+4,4)}, {v(T+9)}, {s(sPC,2)}")
lab("L_NOCPF")
e(f"s_cmp_lg_u32 {s(sW)}, 5")
e("s_cbranch_scc1 L_NOX5")
for r in range(16):
    e(f"v_mov_b32 {v(XF+r)}, 0x3f803f80")
e(f"v_and_b32 {v(T+9)}, 3, {v(vL)}")
e(f"v_lshlrev_b32 {v(T+9)}, 10, {v(T+9)}")
e(f"v_lshrrev_b32 {v(T+10)}, 4, {v(vL)}")
e(f"v_lshl_add_u32 {v(T+9)}, {v(T+10)}, 4, {v(T+9)}")
e(f"s_lshl_b32 {s(sT0)}, {s(sKQ)}, 8")
set_exec(0x000f000f, 0x000f000f)
for ks in range(4):
    e(f"buffer_load_dwordx4 {v(XF+4*ks,4)}, {v(T+9)}, {s(sX,4)}, {s(sT0)} offen offset:{64*ks}")
e("s_mov_b64 exec, -1")
e(f"v_lshlrev_b32 {v(T+9)}, 10, {v(T+10)}")
e(f"v_and_b32 {v(T+10)}, 15, {v(vL)}")
e(f"v_lshl_add_u32 {v(T+9)}, {v(T+10)}, 4, {v(T+9)}")
for k in range(4):
    e(f"buffer_load_dwordx4 {v(QF+4*k,4)}, {v(T+9)}, {s(sX,4)}, 0 offen offset:{256*k}")
lab("L_NOX5")
e("s_barrier")
e(f"s_mul_i32 {s(sGB)}, {s(sG)}, {GSZ}")
e(f"s_lshl_b32 {s(sTB)}, {s(sG)}, 16")
e(f"s_add_u32 {s(sTB)}, {s(sTB)}, {TAG_BASE}")
c("sentinel pre-fill of this member's share of the group's hand-off region: 1 KB per wave (+ one extra store each)")
for r in range(4):
    e(f"v_mov_b32 {v(ACC+r)}, -1")
    e(f"v_mov_b32 {v(ACC+4+r)}, 0")
e(f"s_mul_i32 {s(sT1)}, {s(sI)}, {PF}")
e(f"s_add_u32 {s(sT1)}, {s(sT1)}, {s(sGB)}")
e(f"s_lshl_b32 {s(sT0)}, {s(sW)}, 10")
e(f"s_add_u32 {s(sT0)}, {s(sT0)}, {s(sT1)}")
if OPT["nopf"]:
    e("s_mov_b64 exec, 1")
e(f"buffer_store_dwordx4 {v(ACC,4)}, {v(aL16)}, {s(sWS,4)}, {s(sT0)} offen sc1")
e("s_mov_b64 exec, -1")
e(f"s_cmp_lg_u32 {s(sW)}, 0")
e("s_cbranch_scc1 L_PF1")
e(f"s_add_u32 {s(sT1)}, {s(sT1)}, 8192")
e("s_mov_b64 exec, 0xffff")
e(f"buffer_store_dwordx4 {v(ACC,4)}, {v(aL16)}, {s(sWS,4)}, {s(sT1)} offen sc1")
e("s_mov_b64 exec, -1")
lab("L_PF1")
e(f"s_cmp_lg_u32 {s(sW)}, 5")
e("s_cbranch_scc1 L_NOPF")
c("wave 5: clear own tagged message; x fragments of k-quarter kq (lanes n>=4 keep bf16 ones) and x rows for the statistics")
e(f"s_lshl_b32 {s(sT1)}, {s(sI)}, 10")
e(f"s_add_u32 {s(sT1)}, {s(sT1)}, {s(sTB)}")
e(f"buffer_store_dwordx4 {v(ACC+4,4)}, {v(aL16)}, {s(sWS,4)}, {s(sT1)} offen sc1")
e("s_branch L_NOK")
lab("L_NOPF")
K0N = OPT["K0"]
for n in range(K0N):
    issue_k(n)
lab("L_NOK")

e(f"s_mov_b32 {s(sLB)}, {s(sGB)}")
e(f"s_mov_b32 {s(sLO)}, 0")
e(f"s_mov_b32 {s(sLAYER)}, 0")
e(f"s_mov_b32 {s(sFAST)}, 0")
for a in range(4):
    m = 0
    for l in range(64):
        if ((l & 15) >> 2) == a: m |= 1 << l
    e(f"s_mov_b32 {s(sMA[a])}, {hex(m & 0xffffffff)}")
    e(f"s_mov_b32 {s(sMA[a]+1)}, {hex(m >> 32)}")
e(f"s_mov_b32 {s(sM5)}, 0x001f001f")
e(f"s_mov_b32 {s(sM5+1)}, 0x001f001f")
n15, kg, l3, n2 = T+1, T+2, T+3, T+4
e(f"v_and_b32 {v(n15)}, 15, {v(vL)}")
e(f"v_lshrrev_b32 {v(kg)}, 4, {v(vL)}")
e(f"v_and_b32 {v(l3)}, 3, {v(vL)}")
e(f"v_bfe_u32 {v(n2)}, {v(vL)}, 2, 2")
e(f"s_getreg_b32 {s(sXCC)}, hwreg(HW_REG_XCC_ID)")
e(f"s_and_b32 {s(sXCC)}, {s(sXCC)}, 15")
e(f"s_lshl_b32 {s(sT3)}, {s(sWV)}, 10")
e(f"v_lshlrev_b32 {v(aGW)}, 6, {v(n15)}")
e(f"v_lshl_add_u32 {v(aGW)}, {v(kg)}, 4, {v(aGW)}")
e(f"v_add_u32 {v(aGW)}, {s(sT3)}, {v(aGW)}")
TRR = V.alloc(); NVGPR = V.n
e(f"v_lshl_add_u32 {v(TRR)}, {v(kg)}, 3, {v(n2)}")
e("s_mov_b64 vcc, -1")
e(f"s_cmp_eq_u32 {s(sW)}, 5")
e("s_cbranch_scc1 L_Q1")
e("s_branch L_V")
lab("L_FREE")
e("s_mov_b64 vcc, 0")
for n in range(8):
    issue_k(n)
for i in range(8):
    issue_v(i)
lab("L_V")
def throttle(n=None):
    sk = uid("TH")
    e(f"s_cbranch_vccz {sk}")
    e(f"s_waitcnt vmcnt({DW-1 if n is None else n})")
    lab(sk)
e(f"v_and_b32 {v(n15)}, 15, {v(vL)}")
e(f"v_lshrrev_b32 {v(kg)}, 4, {v(vL)}")
e(f"v_and_b32 {v(l3)}, 3, {v(vL)}")
e(f"v_bfe_u32 {v(n2)}, {v(vL)}, 2, 2")
QT = VT
def issue_qt():
    e(f"s_lshl_b32 {s(sT0)}, {s(sB)}, 6")
    e(f"s_add_u32 {s(sT0)}, {s(sT0)}, {s(sTB)}")
    e(f"s_add_u32 {s(sT1)}, {s(sT0)}, 16384")
    for k in range(4):
        e(f"buffer_load_dwordx4 {v(QT+8*k,4)}, {v(aTG)}, {s(sWS,4)}, {s(sT0)} offen offset:{1024*k} sc1")
        e(f"buffer_load_dwordx4 {v(QT+8*k+4,4)}, {v(aTG)}, {s(sWS,4)}, {s(sT1)} offen offset:{1024*k} sc1")
e(f"v_lshlrev_b32 {v(aTG)}, 12, {v(kg)}")
e(f"v_lshl_add_u32 {v(aTG)}, {v(n2)}, 8, {v(aTG)}")
e(f"v_lshl_add_u32 {v(aTG)}, {v(l3)}, 4, {v(aTG)}")
_vnext = [0]
def vslot():
    if _vnext[0] < 8:
        sk = uid("VS")
        e(f"s_cbranch_vccz {sk}")
        e(f"s_waitcnt vmcnt({DV-1})")
        issue_v(_vnext[0]); _vnext[0] += 1
        lab(sk)
e(f"s_lshl_b32 {s(sSTB)}, s2, 3")
e(f"s_add_u32 {s(sSTB)}, {s(sSTB)}, {s(sW)}")
e(f"s_lshl_b32 {s(sSTB)}, {s(sSTB)}, 8")
e(f"s_add_u32 {s(sSTB)}, {s(sSTB)}, {STAMP_BASE}")
e(f"s_mov_b32 {s(sC)}, {f32(128**-0.5 * math.log2(math.e))}")
e(f"s_mov_b32 {s(sPLO)}, 0x05040100")
e(f"s_mov_b32 {s(sPHI)}, 0x07060302")
e(f"v_lshlrev_b32 {v(aL4)}, 2, {v(vL)}")
for r in range(4):
    e(f"v_mov_b32 {v(ONE+r)}, 0x3f803f80")
e(f"v_lshlrev_b32 {v(aXF)}, 6, {v(kg)}")
e(f"v_lshl_add_u32 {v(aXF)}, {v(l3)}, 4, {v(aXF)}")
e(f"s_lshl_b32 {s(sT3)}, {s(sKQ)}, 10")
e(f"v_add_u32 {v(aXF)}, {s(sT3)}, {v(aXF)}")
e(f"v_mul_u32_u24 {v(T+7)}, 272, {v(l3)}")
e(f"v_lshl_add_u32 {v(aQR)}, {v(kg)}, 5, {v(T+7)}")
e(f"v_add_u32 {v(aQR)}, {L_Q}, {v(aQR)}")
e(f"v_lshl_add_u32 {v(aHR)}, {v(kg)}, 4, {v(T+7)}")
e(f"v_add_u32 {v(aHR)}, {L_H}, {v(aHR)}")
e(f"s_lshl_b32 {s(sT3)}, {s(sW)}, 13")
e(f"s_lshl_b32 {s(sT0)}, {s(sI)}, 8")
e(f"s_add_u32 {s(sT3)}, {s(sT3)}, {s(sT0)}")
e(f"s_add_u32 {s(sT3)}, {s(sT3)}, {OB_OFF}")
e(f"v_add_u32 {v(aOST)}, {s(sT3)}, {v(aL4)}")
e(f"s_cmp_lg_u32 {s(sW)}, 4")
e("s_cbranch_scc1 L_A1")
e(f"s_lshl_b32 {s(sT3)}, {s(sI)}, 3")
e(f"s_add_u32 {s(sT3)}, {s(sT3)}, {ML_OFF}")
e(f"v_lshlrev_b32 {v(aOST)}, 8, {v(l3)}")
e(f"v_add_u32 {v(aOST)}, {s(sT3)}, {v(aOST)}")
lab("L_A1")
e(f"s_and_b32 {s(sT3)}, {s(sW)}, 1")
e(f"s_lshl_b32 {s(sT3)}, {s(sT3)}, 4")
e(f"s_lshr_b32 {s(sT0)}, {s(sW)}, 1")
e(f"s_lshl_b32 {s(sT0)}, {s(sT0)}, 2")
e(f"s_add_u32 {s(sT3)}, {s(sT3)}, {s(sT0)}")
e(f"v_add_u32 {v(T+7)}, {s(sT3)}, {v(kg)}")
e(f"v_mul_u32_u24 {v(aAFW)}, 272, {v(T+7)}")
e(f"v_lshl_add_u32 {v(aAFW)}, {v(n15)}, 4, {v(aAFW)}")
e(f"v_add_u32 {v(aAFW)}, {L_AF}, {v(aAFW)}")
e(f"v_mul_u32_u24 {v(aAFR)}, 272, {v(n15)}")
e(f"v_lshl_add_u32 {v(aAFR)}, {v(kg)}, 4, {v(aAFR)}")
e(f"v_add_u32 {v(aAFR)}, {L_AF}, {v(aAFR)}")
e(f"v_lshlrev_b32 {v(aMLR)}, 6, {v(n2)}")
e(f"v_lshl_add_u32 {v(aMLR)}, {v(l3)}, 3, {v(aMLR)}")
e(f"v_add_u32 {v(aMLR)}, {L_ML}, {v(aMLR)}")
e(f"s_lshl_b32 {s(sT3)}, {s(sB)}, 13")
e(f"s_lshl_b32 {s(sT0)}, {s(sS)}, 10")
e(f"s_add_u32 {s(sT3)}, {s(sT3)}, {s(sT0)}")
e(f"s_lshl_b32 {s(sT0)}, {s(sWV)}, 8")
e(f"s_add_u32 {s(sT3)}, {s(sT3)}, {s(sT0)}")
e(f"s_add_u32 {s(sT3)}, {s(sT3)}, {X1P_OFF}")
e(f"v_lshlrev_b32 {v(aP3S)}, 6, {v(n2)}")
e(f"v_lshl_add_u32 {v(aP3S)}, {v(kg)}, 4, {v(aP3S)}")
e(f"v_add_u32 {v(aP3S)}, {s(sT3)}, {v(aP3S)}")
e(f"v_lshlrev_b32 {v(aRG)}, 13, {v(kg)}")
e(f"s_cmp_lt_u32 {s(sW)}, 4")
e("s_cbranch_scc1 L_A2")
e(f"v_lshrrev_b32 {v(T+7)}, 1, {v(kg)}")
e(f"s_mov_b32 {s(sT0)}, {GSZ}")
e(f"v_mul_lo_u32 {v(T+7)}, {s(sT0)}, {v(T+7)}")
e(f"v_and_b32 {v(aRG)}, 0x2000, {v(aRG)}")
e(f"v_add_u32 {v(aRG)}, {v(aRG)}, {v(T+7)}")
lab("L_A2")
e(f"v_lshl_add_u32 {v(aRG)}, {v(n15)}, 4, {v(aRG)}")
e(f"s_lshl_b32 {s(sT3)}, {s(sI)}, 8")
e(f"v_add_u32 {v(aRG)}, {s(sT3)}, {v(aRG)}")
e(f"v_lshrrev_b32 {v(T+7)}, 5, {v(vL)}")
e(f"v_lshlrev_b32 {v(aXN)}, 10, {v(n2)}")
e(f"v_lshl_add_u32 {v(aXN)}, {v(l3)}, 3, {v(aXN)}")
e(f"v_lshl_add_u32 {v(aXN)}, {v(T+7)}, 2, {v(aXN)}")
e(f"s_lshl_b32 {s(sT3)}, {s(sI)}, 5")
e(f"v_add_u32 {v(aXN)}, {s(sT3)}, {v(aXN)}")
e(f"v_bfe_u32 {v(T+8)}, {v(vL)}, 1, 1")
e(f"v_lshlrev_b32 {v(aXS)}, 6, {v(T+8)}")
e(f"v_lshl_add_u32 {v(aXS)}, {v(n2)}, 4, {v(aXS)}")
e(f"v_and_b32 {v(T+8)}, 1, {v(vL)}")
e(f"v_lshl_add_u32 {v(aXS)}, {v(T+8)}, 3, {v(aXS)}")
e(f"v_lshl_add_u32 {v(aXS)}, {v(T+7)}, 2, {v(aXS)}")
e(f"s_lshl_b32 {s(sT3)}, {s(sI)}, 7")
e(f"v_add_u32 {v(aXS)}, {s(sT3)}, {v(aXS)}")
e(f"s_lshr_b32 {s(sT2)}, {s(sI)}, 2")
e(f"s_cmp_ge_u32 {s(sW)}, 4")
e("s_cbranch_scc1 L_A3")
c("waves 0-3: QP store ; HP gather (batch = w, units kh*96 + 2l) ; h write")
e(f"s_mul_i32 {s(sT3)}, {s(sKQ)}, 10240")
e(f"s_lshl_b32 {s(sT0)}, {s(sT2)}, 8")
e(f"s_add_u32 {s(sT3)}, {s(sT3)}, {s(sT0)}")
e(f"s_lshl_b32 {s(sT0)}, {s(sW)}, 6")
e(f"s_add_u32 {s(sT3)}, {s(sT3)}, {s(sT0)}")
e(f"v_lshlrev_b32 {v(aPS)}, 11, {v(n15)}")
e(f"v_lshl_add_u32 {v(aPS)}, {v(kg)}, 4, {v(aPS)}")
e(f"v_add_u32 {v(aPS)}, {s(sT3)}, {v(aPS)}")
e(f"s_mul_i32 {s(sT3)}, {s(sKH)}, 384")
e(f"s_lshl_b32 {s(sT0)}, {s(sW)}, 10")
e(f"s_add_u32 {s(sT3)}, {s(sT3)}, {s(sT0)}")
e(f"v_lshlrev_b32 {v(aSG)}, 3, {v(vL)}")
e(f"v_add_u32 {v(aSG)}, {s(sT3)}, {v(aSG)}")
e(f"s_mul_i32 {s(sT3)}, {s(sW)}, 272")
e(f"s_add_u32 {s(sT3)}, {s(sT3)}, {L_H}")
e(f"v_add_u32 {v(aSW)}, {s(sT3)}, {v(aL4)}")
e(f"s_mov_b32 {s(sT1)}, {s(sW)}")
e("s_branch L_A4")
lab("L_A3")
c("waves 4,5: HP store ; waves 6,7: X2P store ; 4-7: QP gather (batch b, head = wv, cols 2l) ; q write")
e(f"s_mul_i32 {s(sT3)}, {s(sKQ)}, 5120")
e(f"s_lshl_b32 {s(sT0)}, {s(sT2)}, 7")
e(f"s_add_u32 {s(sT3)}, {s(sT3)}, {s(sT0)}")
e(f"s_and_b32 {s(sT0)}, {s(sW)}, 1")
e(f"s_lshl_b32 {s(sT0)}, {s(sT0)}, 6")
e(f"s_add_u32 {s(sT3)}, {s(sT3)}, {s(sT0)}")
e(f"s_add_u32 {s(sT3)}, {s(sT3)}, {HP_OFF}")
e(f"v_lshlrev_b32 {v(aPS)}, 10, {v(n15)}")
e(f"v_lshl_add_u32 {v(aPS)}, {v(kg)}, 4, {v(aPS)}")
e(f"v_add_u32 {v(aPS)}, {s(sT3)}, {v(aPS)}")
e(f"s_cmp_lt_u32 {s(sW)}, 6")
e("s_cbranch_scc1 L_A3b")
e(f"s_lshl_b32 {s(sT3)}, {s(sKH)}, 13")
e(f"s_lshr_b32 {s(sT0)}, {s(sI)}, 1")
e(f"s_lshl_b32 {s(sT0)}, {s(sT0)}, 9")
e(f"s_add_u32 {s(sT3)}, {s(sT3)}, {s(sT0)}")
e(f"s_and_b32 {s(sT0)}, {s(sW)}, 1")
e(f"s_lshl_b32 {s(sT0)}, {s(sT0)}, 8")
e(f"s_add_u32 {s(sT3)}, {s(sT3)}, {s(sT0)}")
e(f"s_add_u32 {s(sT3)}, {s(sT3)}, {X2P_OFF}")
e(f"v_and_b32 {v(aPS)}, 0x3ff, {v(aGW)}")
e(f"v_add_u32 {v(aPS)}, {s(sT3)}, {v(aPS)}")
lab("L_A3b")
e(f"s_lshl_b32 {s(sT3)}, {s(sB)}, 11")
e(f"s_lshl_b32 {s(sT0)}, {s(sWV)}, 9")
e(f"s_add_u32 {s(sT3)}, {s(sT3)}, {s(sT0)}")
e(f"v_lshlrev_b32 {v(aSG)}, 3, {v(vL)}")
e(f"v_add_u32 {v(aSG)}, {s(sT3)}, {v(aSG)}")
e(f"s_mul_i32 {s(sT3)}, {s(sWV)}, 272")
e(f"s_add_u32 {s(sT3)}, {s(sT3)}, {L_Q}")
e(f"v_add_u32 {v(aSW)}, {s(sT3)}, {v(aL4)}")
e(f"s_mov_b32 {s(sT1)}, {s(sB)}")
lab("L_A4")
e(f"s_lshl_b32 {s(sT3)}, {s(sT1)}, 4")
e(f"s_add_u32 {s(sT3)}, {s(sT3)}, {L_XI}")
e(f"v_lshlrev_b32 {v(aXR)}, 6, {v(vL)}")
e(f"v_add_u32 {v(aXR)}, {s(sT3)}, {v(aXR)}")
e(f"s_mul_i32 {s(sT3)}, {s(sW)}, {OSTR}")
e(f"s_add_u32 {s(sT3)}, {s(sT3)}, {L_OB}")
e(f"v_mul_u32_u24 {v(aOW)}, 272, {v(kg)}")
e(f"v_lshl_add_u32 {v(aOW)}, {v(n15)}, 4, {v(aOW)}")
e(f"v_add_u32 {v(aOW)}, {s(sT3)}, {v(aOW)}")
e(f"v_mul_u32_u24 {v(aOR)}, 1088, {v(T+7)}")
e(f"v_bfe_u32 {v(T+9)}, {v(vL)}, 3, 2")
e(f"v_mul_u32_u24 {v(T+9)}, 272, {v(T+9)}")
e(f"v_add_u32 {v(aOR)}, {v(aOR)}, {v(T+9)}")
e(f"v_bfe_u32 {v(T+9)}, {v(vL)}, 1, 2")
e(f"v_lshl_add_u32 {v(aOR)}, {v(T+9)}, 6, {v(aOR)}")
e(f"v_lshl_add_u32 {v(aOR)}, {v(T+8)}, 3, {v(aOR)}")
e(f"s_lshl_b32 {s(sT3)}, {s(sWV)}, 4")
e(f"s_add_u32 {s(sT3)}, {s(sT3)}, {L_OB}")
e(f"v_add_u32 {v(aOR)}, {s(sT3)}, {v(aOR)}")
e(f"v_lshlrev_b32 {v(aMX)}, 5, {v(l3)}")
e(f"v_add_u32 {v(aMX)}, {L_MX}, {v(aMX)}")
e(f"s_lshl_b32 {s(sT3)}, {s(sW)}, 2")
e(f"v_add_u32 {v(aMXW)}, {s(sT3)}, {v(aMX)}")
e(f"s_cmp_ge_u32 {s(sW)}, 4")
e("s_cbranch_scc1 L_A5")
e(f"s_lshl_b32 {s(sT3)}, {s(sW)}, 5")
e(f"s_add_u32 {s(sT3)}, {s(sT3)}, {L_MX}")
e(f"v_mov_b32 {v(aMX)}, {s(sT3)}")
lab("L_A5")

e("s_cbranch_vccz L_NOKT")
e(f"v_mov_b32 {v(T+11)}, {L_CNT}")
e(f"v_mov_b32 {v(T+12)}, 1")
e(f"v_mov_b32 {v(T+13)}, 0x100")
e("s_mov_b64 exec, 1")
e(f"s_waitcnt vmcnt({K0N+1})")
e(f"ds_add_u32 {v(T+11)}, {v(T+12)}")
e(f"s_waitcnt vmcnt({K0N})")
e(f"ds_add_u32 {v(T+11)}, {v(T+13)}")
e("s_mov_b64 exec, -1")
for n in range(K0N, 8):
    if n >= D: e(f"s_waitcnt vmcnt({D-1})")
    issue_k(n)
lab("L_NOKT")
for _ in range(8):
    vslot()
e(f"s_cmp_ge_u32 {s(sW)}, 4")
e("s_cbranch_scc1 L_SM2")
e(f"s_mul_i32 {s(sT1)}, {s(sG)}, 448")
e(f"s_mul_i32 {s(sT2)}, {s(sKH)}, 192")
e(f"s_add_u32 {s(sT1)}, {s(sT1)}, {s(sT2)}")
e(f"buffer_load_dword {v(BIA)}, {v(aL4)}, {s(sB1,4)}, {s(sT1)} offen")
e(f"buffer_load_dword {v(RES)}, {v(aXN)}, {s(sX,4)}, 0 offen")
e("s_branch L_WEIGHTS")
lab("L_SM2")
e(f"v_and_b32 {v(T+11)}, 0x3ff, {v(aXN)}")
e(f"buffer_load_dword {v(BIA)}, {v(T+11)}, {s(sB2,4)}, 0 offen")
lab("L_WEIGHTS")
e(f"v_lshrrev_b32 {v(T+11)}, 3, {v(vL)}")
e(f"v_lshlrev_b32 {v(T+11)}, 10, {v(T+11)}")
e(f"v_and_b32 {v(T+12)}, 7, {v(vL)}")
e(f"v_lshl_add_u32 {v(T+11)}, {v(T+12)}, 4, {v(T+11)}")
e(f"s_lshl_b32 {s(sT3)}, {s(sG)}, 2")
e(f"s_add_u32 {s(sT3)}, {s(sT3)}, {s(sB)}")
e(f"s_lshl_b32 {s(sT3)}, {s(sT3)}, 17")
e(f"s_lshl_b32 {s(sT0)}, {s(sW)}, 14")
e(f"s_add_u32 {s(sT3)}, {s(sT3)}, {s(sT0)}")
e(f"s_lshl_b32 {s(sT0)}, {s(sS)}, 7")
e(f"s_add_u32 {s(sT3)}, {s(sT3)}, {s(sT0)}")
e(f"s_lshl_b32 {s(sT0)}, {s(sW)}, 11")
e(f"s_add_u32 {s(sT0)}, {s(sT0)}, {L_WO}")
for n in range(2):
    throttle()
    e(f"s_mov_b32 m0, {s(sT0)}")
    e(f"s_add_u32 {s(sT0)}, {s(sT0)}, 1024")
    e(f"buffer_load_dwordx4 {v(T+11)}, {s(sWO,4)}, {s(sT3)} offen nt lds")
    e(f"s_add_u32 {s(sT3)}, {s(sT3)}, 8192")
def k_fixup():
    for t in range(2):
        for hf in range(2):
            X = kslot(t, hf, 0); Y = kslot(t, hf, 1)
            for r in range(4):
                e(f"v_mov_b32 {v(ACC+r)}, {v(X+r)}")
            for r in range(4):
                e(f"v_mov_b32_dpp {v(X+r)}, {v(Y+r)} row_ror:8 row_mask:0xf bank_mask:0xc")
            for r in range(4):
                e(f"v_mov_b32_dpp {v(Y+r)}, {v(ACC+r)} row_ror:8 row_mask:0xf bank_mask:0x3")
for r in range(16):
    e(f"v_mov_b32 {v(PB+r)}, 0")
e("s_cbranch_vccz L_NOFIX")
e("s_waitcnt vmcnt(10)")
k_fixup()
lab("L_NOFIX")
e(f"v_lshrrev_b32 {v(T+11)}, 2, {v(vL)}")
e(f"v_and_b32 {v(T+12)}, 3, {v(vL)}")
e(f"v_lshlrev_b32 {v(T+12)}, 4, {v(T+12)}")
e(f"v_mul_u32_u24 {v(T+13)}, 3584, {v(T+11)}")
e(f"v_add_u32 {v(T+13)}, {v(T+13)}, {v(T+12)}")
e(f"s_lshl_b32 {s(sT3)}, {s(sKQ)}, 3")
e(f"s_add_u32 {s(sT3)}, {s(sT3)}, {s(sW)}")
e(f"s_mul_i32 {s(sT3)}, {s(sT3)}, {16*3584}")
e(f"s_mul_i32 {s(sT1)}, {s(sG)}, 448")
e(f"s_add_u32 {s(sT3)}, {s(sT3)}, {s(sT1)}")
e(f"s_lshr_b32 {s(sT0)}, {s(sI)}, 2")
e(f"s_min_u32 {s(sT0)}, {s(sT0)}, 6")
e(f"s_lshl_b32 {s(sT0)}, {s(sT0)}, 6")
e(f"s_add_u32 {s(sT3)}, {s(sT3)}, {s(sT0)}")
e(f"s_lshl_b32 {s(sT0)}, {s(sW)}, 10")
e(f"s_add_u32 {s(sT2)}, {s(sT0)}, {L_W1}")
e(f"s_mov_b32 m0, {s(sT2)}")
throttle()
e(f"buffer_load_dwordx4 {v(T+13)}, {s(sW1,4)}, {s(sT3)} offen nt lds")
e(f"v_lshl_add_u32 {v(T+13)}, {v(T+11)}, 10, {v(T+12)}")
e(f"s_mul_i32 {s(sT3)}, {s(sG)}, {224*1024}")
e(f"s_mul_i32 {s(sT2)}, {s(sKH)}, {96*1024}")
e(f"s_add_u32 {s(sT3)}, {s(sT3)}, {s(sT2)}")
e(f"s_lshl_b32 {s(sT2)}, {s(sW)}, 14")
e(f"s_add_u32 {s(sT3)}, {s(sT3)}, {s(sT2)}")
e(f"s_lshr_b32 {s(sT2)}, {s(sI)}, 1")
e(f"s_lshl_b32 {s(sT2)}, {s(sT2)}, 6")
e(f"s_add_u32 {s(sT3)}, {s(sT3)}, {s(sT2)}")
e(f"s_add_u32 {s(sT2)}, {s(sT0)}, {L_W2}")
e(f"s_mov_b32 m0, {s(sT2)}")
throttle()
e(f"buffer_load_dwordx4 {v(T+13)}, {s(sW2,4)}, {s(sT3)} offen nt lds")
e(f"s_cmp_lg_u32 {s(sW)}, 5")
e("s_cbranch_scc1 L_QBAR0")
e("s_branch L_QT0")
lab("L_Q1")
c("---------------- wave 5: this tile's share of q of layer 0 (x is an input: statistics computed locally)")
e(f"v_mov_b32 {v(T+5)}, 0x3f803f80")
e(f"v_mov_b32 {v(T+7)}, 0")
e(f"v_mov_b32 {v(T+8)}, 0")
e(f"v_mov_b32 {v(T+14)}, 0")
e(f"v_lshlrev_b32 {v(T+12)}, 7, {v(TRR)}")
e(f"v_lshl_add_u32 {v(T+12)}, {v(l3)}, 3, {v(T+12)}")
e(f"buffer_load_dword {v(ONE)}, {v(T+14)}, {s(sDBG,4)}, 0 offen sc1")
e("s_waitcnt vmcnt(3)")
e(f"buffer_load_dword {v(ONE+1)}, {v(T+14)}, {s(sDBG,4)}, 0 offen sc1")
for k in range(16):
    e(f"v_dot2c_f32_bf16 {v(T+7)}, {v(QF+k)}, {v(QF+k)}")
    e(f"v_dot2c_f32_bf16 {v(T+8)}, {v(QF+k)}, {v(T+5)}")
e(f"v_mov_b32 {v(T+11)}, {L_CNT}")
e(f"s_mov_b32 {s(sCNT)}, 0")
lab("L_WQW")
e(f"ds_read_b32 {v(T+13)}, {v(T+11)}")
e(f"s_add_u32 {s(sCNT)}, {s(sCNT)}, 1")
e("s_waitcnt lgkmcnt(0)")
e(f"v_readfirstlane_b32 {s(sT3)}, {v(T+13)}")
e(f"s_cmp_ge_u32 {s(sCNT)}, {SPIN_MAX}")
e("s_cbranch_scc1 L_WQD")
e(f"s_and_b32 {s(sT3)}, {s(sT3)}, 0xff")
e(f"s_cmp_lt_u32 {s(sT3)}, 7")
e("s_cbranch_scc1 L_WQW")
lab("L_WQD")
stamp(1)
def WQ5(ct, ks): return (VT + 16*ct + 4*ks) if ct < 2 else (WA + 16*(ct-2) + 4*ks)
def rd5(ct):
    for ks in range(4):
        r = WQ5(ct, ks)
        e(f"ds_read_b64_tr_b16 {v(r,2)}, {v(T+12)} offset:{L_WQ + 4096*ks + 32*ct}")
        e(f"ds_read_b64_tr_b16 {v(r+2,2)}, {v(T+12)} offset:{L_WQ + 4096*ks + 32*ct + 512}")
rd5(0)
for ct in range(4):
    e("s_waitcnt lgkmcnt(0)")
    if ct < 3: rd5(ct+1)
    for ks in range(4):
        mfma(ACC+4*ct, WQ5(ct, ks), XF+4*ks, None if ks == 0 else ACC+4*ct)
for m in ("quad_perm:[1,0,3,2]", "quad_perm:[2,3,0,1]", "row_half_mirror", "row_mirror"):
    e(f"v_add_f32_dpp {v(T+7)}, {v(T+7)}, {v(T+7)} {m} row_mask:0xf bank_mask:0xf")
    e(f"v_add_f32_dpp {v(T+8)}, {v(T+8)}, {v(T+8)} {m} row_mask:0xf bank_mask:0xf")
    nop(1)
stats_from(T+7, T+8, False, T+9)
e(f"v_sub_f32 {v(T+8)}, 0, {v(T+8)}")
e(f"v_mov_b32 {v(T+9)}, {v(T+7)}")
e(f"v_lshlrev_b32 {v(T+6)}, 3, {v(kg)}")
e(f"ds_write_b64 {v(T+6)}, {v(T+8,2)} offset:{L_G1}")
e(f"v_lshlrev_b32 {v(T+6)}, 3, {v(l3)}")
e("s_waitcnt lgkmcnt(0)")
e(f"ds_read_b64 {v(T+8,2)}, {v(T+6)} offset:{L_G1}")
for r in range(16):
    e(f"v_mov_b32_dpp {v(VT+r)}, {v(ACC+r)} row_shl:4 row_mask:0xf bank_mask:0xf")
e("s_waitcnt lgkmcnt(0)")
for r in range(16):
    e(f"v_fmac_f32 {v(ACC+r)}, {v(VT+r)}, {v(T+8)}")
for r in range(16):
    e(f"v_mul_f32 {v(ACC+r)}, {v(ACC+r)}, {v(T+9)}")
for ct in range(4):
    e(f"v_cvt_pk_bf16_f32 {v(VT+4*ct)}, {v(ACC+4*ct)}, {v(ACC+4*ct+1)}")
    e(f"v_cvt_pk_bf16_f32 {v(VT+4*ct+2)}, {v(ACC+4*ct+2)}, {v(ACC+4*ct+3)}")
e(f"v_lshlrev_b32 {v(T+6)}, 6, {v(l3)}")
e(f"v_lshl_add_u32 {v(T+6)}, {v(kg)}, 4, {v(T+6)}")
e(f"s_lshl_b32 {s(sT1)}, {s(sI)}, 10")
e(f"s_add_u32 {s(sT1)}, {s(sT1)}, {s(sTB)}")
e(f"s_mov_b32 {s(sCNT)}, 0")
e("s_waitcnt vmcnt(0)")
e(f"v_or_b32 {v(T+13)}, {v(ONE)}, {v(ONE+1)}")
lab("L_NONCE")
nop(1)
e(f"v_readfirstlane_b32 {s(sNONCE)}, {v(T+13)}")
e(f"s_add_u32 {s(sCNT)}, {s(sCNT)}, 1")
e(f"s_cmp_ge_u32 {s(sCNT)}, {SPIN_MAX}")
e("s_cbranch_scc1 L_NONCE_D")
e(f"s_cmp_lg_u32 {s(sNONCE)}, 0")
e("s_cbranch_scc1 L_NONCE_D")
e(f"buffer_load_dword {v(T+13)}, {v(T+14)}, {s(sDBG,4)}, 0 offen sc1")
e("s_waitcnt vmcnt(0)")
e("s_branch L_NONCE")
lab("L_NONCE_D")
e(f"s_mov_b32 {s(sCNT)}, 0")
lab("L_ACKW")
e(f"ds_read_b32 {v(T+13)}, {v(T+11)}")
e(f"s_add_u32 {s(sCNT)}, {s(sCNT)}, 1")
e("s_waitcnt lgkmcnt(0)")
e(f"v_readfirstlane_b32 {s(sT3)}, {v(T+13)}")
e(f"s_cmp_ge_u32 {s(sCNT)}, {SPIN_MAX}")
e("s_cbranch_scc1 L_ACKD")
e(f"s_cmp_lt_u32 {s(sT3)}, 0x700")
e("s_cbranch_scc1 L_ACKW")
lab("L_ACKD")
e(f"s_or_b32 {s(sT3)}, {s(sNONCE)}, {s(sXCC)}")
for ct in range(4):
    e(f"v_mov_b32 {v(VT+4*ct+1)}, {s(sT3)}")
    e(f"v_mov_b32 {v(VT+4*ct+3)}, {s(sT3)}")
e(f"s_mov_b64 exec, {s(sMA[0],2)}")
for ct in range(4):
    e(f"buffer_store_dwordx4 {v(VT+4*ct,4)}, {v(T+6)}, {s(sWS,4)}, {s(sT1)} offen offset:{256*ct} sc1")
e("s_mov_b64 exec, -1")
stamp(3)
e("s_branch L_FREE")
lab("L_QT0")
c("---------------- wave 5: tagged q messages: 32 x 256 B of this batch; load (kq, half): lane -> cbk = 4*half + (l>>4)")
e(f"s_mov_b32 {s(sCNT)}, 0")
e(f"s_or_b32 {s(sT3)}, {s(sNONCE)}, {s(sXCC)}")
e(f"v_mov_b32 {v(QF+10)}, {s(sT3)}")
lab("L_QT")
if OPT["qs"]:
    e(f"s_sleep {OPT['qs']}")
issue_qt()
e("s_waitcnt vmcnt(0)")
lab("L_QT_CHK")
e(f"v_mov_b32 {v(QF+11)}, 0")
for k in range(8):
    e(f"v_xor_b32 {v(QF+12)}, {v(QF+10)}, {v(QT+4*k+1)}")
    e(f"v_xor_b32 {v(QF+13)}, {v(QF+10)}, {v(QT+4*k+3)}")
    e(f"v_or3_b32 {v(QF+11)}, {v(QF+11)}, {v(QF+12)}, {v(QF+13)}")
e(f"v_cmp_lt_u32 vcc, 15, {v(QF+11)}")
e(f"s_add_u32 {s(sCNT)}, {s(sCNT)}, 1")
e(f"s_cmp_ge_u32 {s(sCNT)}, {SPIN_MAX}")
e("s_cbranch_scc1 L_QT_DONE")
e("s_cbranch_vccnz L_QT")
lab("L_QT_DONE")
stamp(4)
k_fixup()
for j in range(4):
    d0 = QT + 2*j
    e(f"v_lshlrev_b32 {v(ACC)}, 16, {v(d0)}")
    e(f"v_and_b32 {v(ACC+1)}, 0xffff0000, {v(d0)}")
    for k in range(1, 4):
        e(f"v_lshlrev_b32 {v(ACC+2)}, 16, {v(d0+8*k)}")
        e(f"v_and_b32 {v(ACC+3)}, 0xffff0000, {v(d0+8*k)}")
        e(f"v_pk_add_f32 {v(ACC,2)}, {v(ACC,2)}, {v(ACC+2,2)}")
    e(f"v_cvt_pk_bf16_f32 {v(QF+j)}, {v(ACC)}, {v(ACC+1)}")
e(f"v_lshrrev_b32 {v(T+11)}, 5, {v(vL)}")
e(f"v_mul_u32_u24 {v(T+11)}, 272, {v(T+11)}")
e(f"v_and_b32 {v(T+12)}, 31, {v(vL)}")
e(f"v_lshl_add_u32 {v(T+11)}, {v(T+12)}, 3, {v(T+11)}")
e(f"ds_write_b64 {v(T+11)}, {v(QF,2)} offset:{L_Q}")
e(f"ds_write_b64 {v(T+11)}, {v(QF+2,2)} offset:{L_Q+544}")
e(f"v_cmp_ne_u32 vcc, 0, {v(QF+11)}")
e(f"s_cmp_eq_u64 vcc, 0")
e(f"s_cselect_b32 {s(sFAST)}, 1, 0")
e(f"v_mov_b32 {v(T+12)}, {s(sFAST)}")
e(f"v_mov_b32 {v(T+13)}, {L_Q + 256}")
e(f"ds_write_b32 {v(T+13)}, {v(T+12)}")
e(f"s_cmp_lg_u32 {s(sI)}, 0")
e("s_cbranch_scc1 L_NOLEAD")
c("group leader announces 'group g has pre-filled' to the other groups")
e(f"s_lshl_b32 {s(sT3)}, {s(sG)}, 2")
e(f"v_mov_b32 {v(T+12)}, 1")
e(f"v_mov_b32 {v(T+13)}, {s(sT3)}")
e("s_mov_b64 exec, 1")
e(f"buffer_store_dword {v(T+12)}, {v(T+13)}, {s(sDBG,4)}, 0 offen offset:128 sc1")
e("s_mov_b64 exec, -1")
lab("L_NOLEAD")
if OPT["touch"]:
    e(f"s_mul_i32 {s(sT0)}, {s(sI)}, {PF}")
    e(f"s_add_u32 {s(sT0)}, {s(sT0)}, {s(sGB)}")
    e(f"v_lshlrev_b32 {v(T+12)}, 7, {v(vL)}")
    e(f"buffer_load_dword {v(WB)}, {v(T+12)}, {s(sWS,4)}, {s(sT0)} offen sc1")
    e(f"s_add_u32 {s(sT0)}, {s(sT0)}, 8192")
    e("s_mov_b64 exec, 3")
    e(f"buffer_load_dword {v(WB+1)}, {v(T+12)}, {s(sWS,4)}, {s(sT0)} offen sc1")
    e("s_mov_b64 exec, -1")
e("s_waitcnt lgkmcnt(0)")
lab("L_QBAR0")
stamp(31)
e("s_barrier")
e(f"v_mov_b32 {v(T+13)}, {L_Q + 256}")
e(f"ds_read_b32 {v(T+12)}, {v(T+13)}")
e("s_waitcnt lgkmcnt(0)")
e(f"v_readfirstlane_b32 {s(sFAST)}, {v(T+12)}")
if OPT["diag"] == 3:
    e(f"s_mov_b32 {s(sFAST)}, 0")
stamp(2)
if OPT["diag"] == 4:
    e(f"s_memrealtime {s(sTM,2)}")
    e("s_waitcnt lgkmcnt(0)")
    e(f"s_mov_b32 {s(sD1)}, {s(sTM)}")

lab("L_LOOP")
c("---------------- P2: attention over this wave's 32 keys")
e(f"v_add_u32 {v(T)}, {s(sROTH)}, {v(aQR)}")
e(f"v_subrev_u32 {v(T+1)}, {s(sROTH)}, {v(aQR)}")
e(f"ds_read_b128 {v(QF,4)}, {v(T)}")
e(f"ds_read_b128 {v(QF+4,4)}, {v(T)} offset:16")
e(f"ds_read_b128 {v(QF+8,4)}, {v(T+1)} offset:128")
e(f"ds_read_b128 {v(QF+12,4)}, {v(T+1)} offset:144")
ST = ACC
for sl in range(4):
    e(f"s_waitcnt lgkmcnt({3-sl})")
    for t in range(2):
        mfma(ST+4*t, KF + 4*(t*4+sl), QF + 4*sl, None if sl == 0 else ST+4*t)
stamp(16)
nop(8)
e(f"v_max3_f32 {v(T)}, {v(ST)}, {v(ST+1)}, {v(ST+2)}")
e(f"v_max3_f32 {v(T+1)}, {v(ST+3)}, {v(ST+4)}, {v(ST+5)}")
e(f"v_max3_f32 {v(T)}, {v(T)}, {v(ST+6)}, {v(ST+7)}")
e(f"v_max_f32 {v(T)}, {v(T)}, {v(T+1)}")
e(f"v_mov_b32 {v(T+1)}, {v(T)}")
nop(2)
e(f"v_permlane16_swap_b32 {v(T)}, {v(T+1)}")
nop(1)
e(f"v_max_f32 {v(T)}, {v(T)}, {v(T+1)}")
e(f"v_mov_b32 {v(T+1)}, {v(T)}")
nop(2)
e(f"v_permlane32_swap_b32 {v(T)}, {v(T+1)}")
nop(1)
e(f"v_max_f32 {v(T)}, {v(T)}, {v(T+1)}")
e(f"v_mul_f32 {v(vMW)}, {s(sC)}, {v(T)}")
stamp(17)
e(f"ds_write_b32 {v(aMXW)}, {v(vMW)}")
for r in range(8):
    e(f"v_fma_f32 {v(ST+r)}, {v(ST+r)}, {s(sC)}, -{v(vMW)}")
for r in range(8):
    e(f"v_exp_f32 {v(ST+r)}, {v(ST+r)}")
nop(1)
for a in range(4):
    e(f"s_mov_b64 exec, {s(sMA[a],2)}")
    for j in range(4):
        e(f"v_cvt_pk_bf16_f32 {v(PB+4*a+j)}, {v(ST+2*j)}, {v(ST+2*j+1)}")
e("s_mov_b64 exec, -1")
e(f"s_cmp_lg_u32 {s(sLAYER)}, 0")
e("s_cbranch_scc1 L_PV")
c("first layer only: V has to land, then transpose it in registers")
e("s_waitcnt vmcnt(4)")
stamp(14)
for p in range(4):
    for cc in range(4):
        a = VR + 4*(2*p) + cc; b = VR + 4*(2*p+1) + cc
        e(f"v_perm_b32 {v(VT+4*(2*cc)+p)}, {v(b)}, {v(a)}, {s(sPLO)}")
        e(f"v_perm_b32 {v(VT+4*(2*cc+1)+p)}, {v(b)}, {v(a)}, {s(sPHI)}")
e("s_branch L_PV2")
lab("L_PV")
e("s_waitcnt vmcnt(0)")
lab("L_PV2")
stamp(18)
nop(2)
OT = ACC + 8
LT = ACC
for a in range(4):
    for u in range(2):
        mfma(OT+4*u, VT + 4*(4*u+a), PB + 4*a, None if a == 0 else OT+4*u)
mfma(LT, ONE, PB, None)
stamp(19)
nop(6)
e(f"ds_write_b128 {v(aOW)}, {v(OT,4)}")
e(f"ds_write_b128 {v(aOW)}, {v(OT+4,4)} offset:1088")
e("s_mov_b64 exec, 15")
e(f"ds_write_b32 {v(aMXW)}, {v(LT)} offset:128")
e("s_mov_b64 exec, -1")
stamp(21)
e("s_waitcnt vmcnt(2) lgkmcnt(0)")
e("s_barrier")
stamp(5)
e(f"s_cmp_gt_u32 {s(sW)}, 4")
e("s_cbranch_scc1 L_P2_B2")
e(f"ds_read_b128 {v(T,4)}, {v(aMX)}")
e(f"ds_read_b128 {v(T+4,4)}, {v(aMX)} offset:16")
e(f"s_cmp_eq_u32 {s(sW)}, 4")
e("s_cbranch_scc1 L_P2_B")
for k in range(4):
    e(f"ds_read2st64_b64 {v(VR+4*k,4)}, {v(aOR)} offset0:{10*k} offset1:{10*k+5}")
e("s_waitcnt lgkmcnt(4)")
def factors():
    e(f"v_max3_f32 {v(T+8)}, {v(T)}, {v(T+1)}, {v(T+2)}")
    e(f"v_max3_f32 {v(T+9)}, {v(T+3)}, {v(T+4)}, {v(T+5)}")
    e(f"v_max3_f32 {v(T+8)}, {v(T+8)}, {v(T+6)}, {v(T+7)}")
    e(f"v_max_f32 {v(T+8)}, {v(T+8)}, {v(T+9)}")
    for k in range(8):
        e(f"v_sub_f32 {v(T+k)}, {v(T+k)}, {v(T+8)}")
    for k in range(8):
        e(f"v_exp_f32 {v(T+k)}, {v(T+k)}")
factors()
e("s_waitcnt lgkmcnt(0)")
e(f"v_mul_f32 {v(VR)}, {v(VR)}, {v(T)}")
e(f"v_mul_f32 {v(VR+1)}, {v(VR+1)}, {v(T)}")
for k in range(1, 8):
    e(f"v_fmac_f32 {v(VR)}, {v(VR+2*k)}, {v(T+k)}")
    e(f"v_fmac_f32 {v(VR+1)}, {v(VR+2*k+1)}, {v(T+k)}")
e(f"v_cvt_pk_bf16_f32 {v(T+9)}, {v(VR)}, {v(VR+1)}")
e(f"v_min_u32 {v(T+9)}, -2, {v(T+9)}")
store_intra("buffer_store_dword", v(T+9), aOST, sLB, 0)
e(f"s_cmp_lg_u32 {s(sLAYER)}, 0")
e("s_cbranch_scc1 L_P3")
c("first layer only: wo and wq fragments out of LDS")
e(f"v_lshrrev_b32 {v(T+4)}, 5, {v(vL)}")
e(f"v_lshlrev_b32 {v(T+4)}, 12, {v(T+4)}")
e(f"v_bfe_u32 {v(T+5)}, {v(vL)}, 4, 1")
e(f"v_lshl_add_u32 {v(T+4)}, {v(T+5)}, 8, {v(T+4)}")
e(f"v_bfe_u32 {v(T+5)}, {v(vL)}, 2, 2")
e(f"v_lshl_add_u32 {v(T+4)}, {v(T+5)}, 10, {v(T+4)}")
e(f"v_and_b32 {v(T+5)}, 3, {v(vL)}")
e(f"v_lshlrev_b32 {v(T+5)}, 3, {v(T+5)}")
e(f"s_lshl_b32 {s(sT3)}, {s(sW)}, 5")
e(f"v_add_u32 {v(T+5)}, {s(sT3)}, {v(T+5)}")
e(f"v_add_u32 {v(T+4)}, {v(T+4)}, {v(T+5)}")
for ks in range(4):
    o = L_WO + (64*(ks & 1) + 4*(ks >> 1)) * 128
    e(f"ds_read_b64_tr_b16 {v(WB+4*ks,2)}, {v(T+4)} offset:{o}")
    e(f"ds_read_b64_tr_b16 {v(WB+4*ks+2,2)}, {v(T+4)} offset:{o+128}")
e(f"v_and_b32 {v(BIA+1)}, 0xffff0000, {v(BIA)}")
e(f"v_lshlrev_b32 {v(BIA)}, 16, {v(BIA)}")
e(f"v_and_b32 {v(RES+1)}, 0xffff0000, {v(RES)}")
e(f"v_lshlrev_b32 {v(RES)}, 16, {v(RES)}")
e("s_branch L_P3")
lab("L_P2_B")
e(f"ds_read_b128 {v(VR,4)}, {v(aMX)} offset:128")
e(f"ds_read_b128 {v(VR+4,4)}, {v(aMX)} offset:144")
e("s_waitcnt lgkmcnt(2)")
factors()
e("s_waitcnt lgkmcnt(0)")
e(f"v_mul_f32 {v(T+9)}, {v(VR)}, {v(T)}")
for k in range(1, 8):
    e(f"v_fmac_f32 {v(T+9)}, {v(VR+k)}, {v(T+k)}")
e("s_mov_b64 exec, 15")
store_intra("buffer_store_dwordx2", v(T+8,2), aOST, sLB, 0)
e("s_mov_b64 exec, -1")
lab("L_P2_B2")

lab("L_P3")
c("---------------- P3: split-softmax combine folded into o @ wo")
stamp(6)
e(f"s_lshl_b32 {s(sT0)}, {s(sB)}, 13")
e(f"s_lshl_b32 {s(sT1)}, {s(sW)}, 10")
e(f"s_add_u32 {s(sT0)}, {s(sT0)}, {s(sT1)}")
e(f"s_add_u32 {s(sT0)}, {s(sT0)}, {s(sLB)}")
e(f"s_add_u32 {s(sT0)}, {s(sT0)}, {OB_OFF}")
e(f"s_cmp_eq_u32 {s(sW)}, 7")
e("s_cbranch_scc1 L_P3_W7")
poll2(lambda R: e(f"buffer_load_dwordx4 {v(R,4)}, {v(aL16)}, {s(sWS,4)}, {s(sT0)} offen sc1"), QF, QF+4, 4, 1, T+4)
stamp(22)
e(f"ds_write_b128 {v(aAFW)}, {v(QF,4)}")
e("s_branch L_P3_BAR")
lab("L_P3_W7")
e(f"s_lshl_b32 {s(sT1)}, {s(sB)}, 8")
e(f"s_add_u32 {s(sT1)}, {s(sT1)}, {s(sLB)}")
e(f"s_add_u32 {s(sT1)}, {s(sT1)}, {ML_OFF}")
e(f"v_and_b32 {v(T+9)}, 0xff, {v(aL16)}")
def issue_oml(R):
    e(f"buffer_load_dwordx4 {v(R,4)}, {v(aL16)}, {s(sWS,4)}, {s(sT0)} offen sc1")
    e(f"buffer_load_dwordx4 {v(R+4,4)}, {v(T+9)}, {s(sWS,4)}, {s(sT1)} offen sc1")
poll2(issue_oml, QF, QF+8, 8, 2, T+8)
stamp(22)
e(f"ds_write_b128 {v(aAFW)}, {v(QF,4)}")
e(f"ds_write_b128 {v(T+9)}, {v(QF+4,4)} offset:{L_ML}")
lab("L_P3_BAR")
stamp(23)
e("s_waitcnt lgkmcnt(0)")
e("s_barrier")
stamp(24)
e(f"s_cmp_ge_u32 {s(sW)}, 4")
e("s_cbranch_scc1 L_P5")
e(f"ds_read2_b64 {v(T,4)}, {v(aMLR)} offset0:0 offset1:4")
for ks in range(4):
    for sh in range(2):
        e(f"ds_read_b128 {v(VR+4*(sh*4+ks),4)}, {v(aAFR)} offset:{sh*16*272 + ks*64}")
e("s_waitcnt lgkmcnt(8)")
e(f"v_max_f32 {v(T+4)}, {v(T)}, {v(T+2)}")
nop(2)
e(f"v_max_f32_dpp {v(T+4)}, {v(T+4)}, {v(T+4)} quad_perm:[1,0,3,2] row_mask:0xf bank_mask:0xf")
nop(2)
e(f"v_max_f32_dpp {v(T+4)}, {v(T+4)}, {v(T+4)} quad_perm:[2,3,0,1] row_mask:0xf bank_mask:0xf")
e(f"v_sub_f32 {v(T)}, {v(T)}, {v(T+4)}")
e(f"v_sub_f32 {v(T+2)}, {v(T+2)}, {v(T+4)}")
e(f"v_exp_f32 {v(T)}, {v(T)}")
e(f"v_exp_f32 {v(T+2)}, {v(T+2)}")
for ks in range(4):
    e(f"s_waitcnt lgkmcnt({6-2*ks})")
    for sh in range(2):
        mfma(ACC+4*sh, WB + 4*ks, VR + 4*(sh*4+ks), None if ks == 0 else ACC+4*sh)
e(f"v_mul_f32 {v(T+4)}, {v(T)}, {v(T+1)}")
e(f"v_fmac_f32 {v(T+4)}, {v(T+2)}, {v(T+3)}")
nop(2)
e(f"v_add_f32_dpp {v(T+4)}, {v(T+4)}, {v(T+4)} quad_perm:[1,0,3,2] row_mask:0xf bank_mask:0xf")
nop(2)
e(f"v_add_f32_dpp {v(T+4)}, {v(T+4)}, {v(T+4)} quad_perm:[2,3,0,1] row_mask:0xf bank_mask:0xf")
e(f"v_rcp_f32 {v(T+4)}, {v(T+4)}")
nop(1)
e(f"v_mul_f32 {v(T)}, {v(T)}, {v(T+4)}")
e(f"v_mul_f32 {v(T+2)}, {v(T+2)}, {v(T+4)}")
for r in range(4):
    e(f"v_mul_f32 {v(ACC+r)}, {v(ACC+r)}, {v(T)}")
for r in range(4):
    e(f"v_fmac_f32 {v(ACC+r)}, {v(ACC+4+r)}, {v(T+2)}")
for r in range(4):
    e(f"v_add_f32_dpp {v(ACC+r)}, {v(ACC+r)}, {v(ACC+r)} quad_perm:[1,0,3,2] row_mask:0xf bank_mask:0xf")
for r in range(4):
    e(f"v_add_f32_dpp {v(ACC+r)}, {v(ACC+r)}, {v(ACC+r)} quad_perm:[2,3,0,1] row_mask:0xf bank_mask:0xf")
set_exec(0x11111111, 0x11111111)
e(f"buffer_store_dwordx4 {v(ACC,4)}, {v(aP3S)}, {s(sWS,4)}, {s(sLB)} offen sc1")
e("s_mov_b64 exec, -1")
stamp(7)
e(f"s_cmp_lg_u32 {s(sW)}, 3")
e("s_cbranch_scc1 L_G5")
c("---------------- P4 (wave 3): x1 slice = x + sum over 32 heads")
e(f"v_lshlrev_b32 {v(T+6)}, 3, {v(vL)}")
e(f"s_cmp_lg_u32 {s(sLAYER)}, 0")
e("s_cbranch_scc1 L_P4_L1")
e(f"v_and_b32 {v(T+4)}, 7, {v(vL)}")
e(f"v_lshlrev_b32 {v(T+4)}, 2, {v(T+4)}")
e(f"s_mov_b32 {s(sCNT)}, 0")
lab("L_GFLAG")
e(f"buffer_load_dword {v(T+5)}, {v(T+4)}, {s(sDBG,4)}, 0 offen offset:128 sc1")
e("s_waitcnt vmcnt(0)")
e(f"v_cmp_eq_u32 vcc, 0, {v(T+5)}")
e("s_cbranch_vccz L_P4_GO")
e(f"s_add_u32 {s(sCNT)}, {s(sCNT)}, 1")
e(f"s_cmp_lt_u32 {s(sCNT)}, {SPIN_MAX}")
e("s_cbranch_scc1 L_GFLAG")
e("s_branch L_P4_GO")
lab("L_P4_L1")
e(f"ds_read_b64 {v(RES,2)}, {v(T+6)} offset:{L_RES}")
if OPT["d4"]:
    e(f"s_sleep {OPT['d4']}")
lab("L_P4_GO")
reduce_slice(8, X1P_OFF, GSZ, False)
set_exec(0xffff, 0xffff)
store_intra("buffer_store_dword", v(T), aXS, sLB, X1_OFF)
e("s_mov_b64 exec, -1")
e(f"ds_write_b64 {v(T+6)}, {v(RES,2)} offset:{L_RES}")
stamp(8)
lab("L_G5")
if OPT["xb"]: e("s_barrier")
e(f"s_cmp_lg_u32 {s(sLAYER)}, 0")
e("s_cbranch_scc1 L_G5b")
c("first layer only: waves 0-3 publish the column sums of their wq tile and fetch those of w1")
e(f"v_and_b32 {v(T+5)}, 3, {v(vL)}")
e(f"v_lshlrev_b32 {v(T+5)}, 3, {v(T+5)}")
e(f"s_lshl_b32 {s(sT3)}, {s(sW)}, 5")
e(f"v_add_u32 {v(T+5)}, {s(sT3)}, {v(T+5)}")
e(f"v_lshl_add_u32 {v(T+4)}, {v(TRR)}, 7, {v(T+5)}")
for ks in range(4):
    e(f"ds_read_b64_tr_b16 {v(WA+4*ks,2)}, {v(T+4)} offset:{L_WQ + 4096*ks}")
    e(f"ds_read_b64_tr_b16 {v(WA+4*ks+2,2)}, {v(T+4)} offset:{L_WQ + 4096*ks + 512}")
e(f"s_add_u32 {s(sT0)}, {s(sGB)}, {QP_OFF}")
colsum_store(sT0)
e(f"s_add_u32 {s(sT0)}, {s(sLB)}, {HP_OFF}")
e(f"s_lshl_b32 {s(sT3)}, {s(sW)}, 10")
e(f"s_sub_u32 {s(sT3)}, 4096, {s(sT3)}")
e(f"v_add_u32 {v(T+3)}, {s(sT3)}, {v(aSG)}")
colsum_fetch(sT0, 5120, T+3)
lab("L_G5b")
e("s_waitcnt lgkmcnt(0)")
e("s_branch L_BAR5")
lab("L_P5")
e(f"s_cmp_lg_u32 {s(sLAYER)}, 0")
e("s_cbranch_scc1 L_P5b")
c("first layer only: w1 (waves 4,5) / w2 (waves 6,7) fragments: rows of 64 B, ct = w&1")
e(f"v_and_b32 {v(T+5)}, 3, {v(vL)}")
e(f"v_lshlrev_b32 {v(T+5)}, 3, {v(T+5)}")
e(f"v_lshl_add_u32 {v(T+4)}, {v(TRR)}, 6, {v(T+5)}")
e(f"s_and_b32 {s(sT3)}, {s(sW)}, 1")
e(f"s_lshl_b32 {s(sT3)}, {s(sT3)}, 5")
e(f"s_and_b32 {s(sT0)}, {s(sW)}, 2")
e(f"s_lshl_b32 {s(sT0)}, {s(sT0)}, 12")
e(f"s_add_u32 {s(sT3)}, {s(sT3)}, {s(sT0)}")
e(f"v_add_u32 {v(T+4)}, {s(sT3)}, {v(T+4)}")
for ks in range(4):
    e(f"ds_read_b64_tr_b16 {v(WA+4*ks,2)}, {v(T+4)} offset:{L_W1 + 2048*ks}")
    e(f"ds_read_b64_tr_b16 {v(WA+4*ks+2,2)}, {v(T+4)} offset:{L_W1 + 2048*ks + 256}")
e(f"v_and_b32 {v(BIA+1)}, 0xffff0000, {v(BIA)}")
e(f"v_lshlrev_b32 {v(BIA)}, 16, {v(BIA)}")
e(f"s_cmp_ge_u32 {s(sW)}, 6")
e("s_cbranch_scc1 L_P5b")
e(f"s_cmp_ge_u32 {s(sI)}, 28")
e("s_cbranch_scc1 L_P5b")
colsum_store(sLB)

lab("L_P5b")
if OPT["xb"]: e("s_barrier")
c("---------------- waves 4-7: x1 image -> LDS")
e(f"s_lshl_b32 {s(sT0)}, {s(sWV)}, 10")
e(f"s_add_u32 {s(sT0)}, {s(sT0)}, {s(sLB)}")
poll_x(sT0)
stamp(27)
lab("L_BAR5")
e("s_barrier")
stamp(9)
e(f"s_cmp_lt_u32 {s(sW)}, 4")
e("s_cbranch_scc1 L_HSUM")
e(f"s_cmp_ge_u32 {s(sW)}, 6")
e("s_cbranch_scc1 L_CSQ")
e(f"s_cmp_ge_u32 {s(sI)}, 28")
e("s_cbranch_scc1 L_CSQ")
c("---------------- P5 (waves 4,5): raw x1 @ w1 partial of this tile")
gemv_mma_store(sLB)
stamp(10)
lab("L_CSQ")
e(f"s_cmp_lg_u32 {s(sLAYER)}, 0")
e("s_cbranch_scc1 L_BARH")
c("first layer only: waves 4-7 fetch the column sums of wq")
e(f"s_add_u32 {s(sT0)}, {s(sGB)}, {QP_OFF}")
e(f"s_lshl_b32 {s(sT3)}, {s(sB)}, 11")
e(f"s_sub_u32 {s(sT3)}, 8192, {s(sT3)}")
e(f"v_add_u32 {v(T+3)}, {s(sT3)}, {v(aSG)}")
colsum_fetch(sT0, 10240, T+3)
e("s_branch L_BARH")
lab("L_HSUM")
c("---------------- waves 0-3: h = gelu(LN(LN(x1)) @ w1 + b1) for 128 units x batch w")
e(f"s_add_u32 {s(sT0)}, {s(sLB)}, {HP_OFF}")
sum_partials(sT0, 5120, True)
stamp(28)
K0 = -2.0 * math.log2(math.e) * math.sqrt(2.0 / math.pi)
for r in range(2):
    e(f"v_add_f32 {v(T+r)}, {v(T+r)}, {v(BIA+r)}")
for r in range(2):
    e(f"v_mul_f32 {v(T+2+r)}, {v(T+r)}, {v(T+r)}")
for r in range(2):
    e(f"v_mov_b32 {v(T+4+r)}, {f32(K0)}")
    e(f"v_fmac_f32 {v(T+4+r)}, {f32(K0*0.044715)}, {v(T+2+r)}")
for r in range(2):
    e(f"v_mul_f32 {v(T+4+r)}, {v(T+4+r)}, {v(T+r)}")
for r in range(2):
    e(f"v_exp_f32 {v(T+4+r)}, {v(T+4+r)}")
nop(1)
for r in range(2):
    e(f"v_add_f32 {v(T+4+r)}, 1.0, {v(T+4+r)}")
for r in range(2):
    e(f"v_rcp_f32 {v(T+4+r)}, {v(T+4+r)}")
nop(1)
for r in range(2):
    e(f"v_mul_f32 {v(T+r)}, {v(T+r)}, {v(T+4+r)}")
e(f"v_cvt_pk_bf16_f32 {v(T)}, {v(T)}, {v(T+1)}")
e(f"ds_write_b32 {v(aSW)}, {v(T)}")
e("s_waitcnt lgkmcnt(0)")
lab("L_BARH")
e("s_barrier")
stamp(20)
e(f"s_cmp_lt_u32 {s(sW)}, 6")
e("s_cbranch_scc1 L_NEXT")
c("---------------- P6 (waves 6,7): h[128 units] @ w2 tile -> partial x2")
for ks in range(4):
    e(f"ds_read_b128 {v(VR+4*ks,4)}, {v(aHR)} offset:{64*ks}")
e("s_waitcnt lgkmcnt(2)")
mfma(ACC, WA+4, VR+4, None)
e("s_waitcnt lgkmcnt(1)")
mfma(ACC, WA+8, VR+8, ACC)
e("s_waitcnt lgkmcnt(0)")
mfma(ACC, WA+12, VR+12, ACC)
e(f"s_cmp_lg_u32 {s(sKH)}, 0")
e("s_cbranch_scc1 L_P6_S")
mfma(ACC, WA, VR, ACC)
lab("L_P6_S")
nop(8)
e(f"s_mov_b64 exec, {s(sMA[0],2)}")
e(f"buffer_store_dwordx4 {v(ACC,4)}, {v(aPS)}, {s(sWS,4)}, {s(sLB)} offen sc1")
e("s_mov_b64 exec, -1")
stamp(11)
e(f"s_cmp_lg_u32 {s(sW)}, 6")
e("s_cbranch_scc1 L_NEXT")
c("---------------- P7 (wave 6): x2 slice = x1 + b2 + sum over 16 partials")
e(f"v_lshlrev_b32 {v(T+6)}, 3, {v(vL)}")
e(f"ds_read_b64 {v(RES,2)}, {v(T+6)} offset:{L_RES}")
e(f"s_cmp_eq_u32 {s(sLAYER)}, 0")
e("s_cbranch_scc1 L_P7_GO")
e(f"s_cmp_lg_u32 {s(sS)}, {s(sG)}")
e("s_cbranch_scc1 L_END")
lab("L_P7_GO")
if OPT["d7"]:
    e(f"s_sleep {OPT['d7']}")
reduce_slice(4, X2P_OFF, 2*GSZ, True)
set_exec(0xffff, 0xffff)
e(f"s_cmp_eq_u32 {s(sLAYER)}, 0")
e("s_cbranch_scc1 L_P7_MID")
if OPT["diag"] == 1:
    e(f"s_cmp_lg_u32 {s(sFAST)}, 0")
    e("s_cbranch_scc1 L_DIAG")
    for _ in range(16): e("s_sleep 127")
    lab("L_DIAG")
if OPT["diag"] == 2:
    for _ in range(4): e("s_sleep 127")
e(f"buffer_store_dword {v(T)}, {v(aXN)}, {s(sOUT,4)}, 0 offen")
e("s_cmp_lg_u32 s2, 0")
e("s_cbranch_scc1 L_NOCLEAN")
c("WG 0: every workgroup is past the nonce / flag words by now; leave d_debug zero again")
e("s_mov_b64 exec, -1")
e(f"v_mov_b32 {v(T+1)}, 0")
if OPT["diag"] == 4:
    e(f"s_memrealtime {s(sTM,2)}")
    e("s_waitcnt lgkmcnt(0)")
    e(f"s_sub_u32 {s(sD3)}, {s(sTM)}, {s(sD0)}")
    e(f"s_sub_u32 {s(sD1)}, {s(sD1)}, {s(sD0)}")
    e(f"s_sub_u32 {s(sD2)}, {s(sD2)}, {s(sD0)}")
    e(f"v_writelane_b32 {v(T+1)}, {s(sD1)}, 2")
    e(f"v_writelane_b32 {v(T+1)}, {s(sD2)}, 3")
    e(f"v_writelane_b32 {v(T+1)}, {s(sD3)}, 4")
e(f"buffer_store_dword {v(T+1)}, {v(aL4)}, {s(sDBG,4)}, 0 offen sc1")
lab("L_NOCLEAN")
stamp(12)
e("s_branch L_END")
lab("L_P7_MID")
if OPT["diag"] == 4:
    e(f"s_memrealtime {s(sTM,2)}")
    e("s_waitcnt lgkmcnt(0)")
    e(f"s_mov_b32 {s(sD2)}, {s(sTM)}")
e(f"s_add_u32 {s(sT0)}, {s(sLB)}, {X2_OFF}")
store_intra("buffer_store_dword", v(T), aXS, sT0, 0)
e("s_mov_b64 exec, -1")
e(f"ds_write_b64 {v(T+6)}, {v(RES,2)} offset:{L_RES}")
stamp(12)
lab("L_NEXT")
e(f"s_cmp_lg_u32 {s(sLAYER)}, 0")
e("s_cbranch_scc1 L_END")
if OPT["xb"]: e("s_barrier")
e(f"s_cmp_ge_u32 {s(sW)}, 4")
e("s_cbranch_scc1 L_BAR1")
c("---------------- waves 0-3: x2 image -> LDS")
e(f"s_lshl_b32 {s(sT0)}, {s(sWV)}, 10")
e(f"s_add_u32 {s(sT0)}, {s(sT0)}, {s(sLB)}")
e(f"s_add_u32 {s(sT0)}, {s(sT0)}, {X2_OFF}")
poll_x(sT0)
stamp(29)
lab("L_BAR1")
e(f"s_mov_b32 {s(sLAYER)}, 1")
e(f"s_add_u32 {s(sLB)}, {s(sLB)}, {LSZ}")
e(f"s_mov_b32 {s(sLO)}, {LSZ}")
if OPT["stamps"]:
    e(f"v_mov_b32 {v(vSTAMP0)}, {v(vSTAMP)}")
    e(f"v_mov_b32 {v(vSTAMP)}, 0")
e("s_waitcnt lgkmcnt(0)")
e("s_barrier")
stamp(1)
e(f"s_add_u32 {s(sT0)}, {s(sGB)}, {QP_OFF}")
e(f"s_cmp_ge_u32 {s(sW)}, 4")
e("s_cbranch_scc1 L_QSUM")
c("---------------- P1 (waves 0-3): raw x2 @ wq partial of this tile")
gemv_mma_store(sT0)
stamp(3)
e("s_branch L_QBAR")
lab("L_QSUM")
c("---------------- waves 4-7: q = LN(x2) @ wq for head w-4 of this batch")
sum_partials(sT0, 10240, False)
stamp(4)
e(f"v_cvt_pk_bf16_f32 {v(T)}, {v(T)}, {v(T+1)}")
e(f"ds_write_b32 {v(aSW)}, {v(T)}")
e("s_waitcnt lgkmcnt(0)")
lab("L_QBAR")
e("s_barrier")
stamp(2)
e("s_branch L_LOOP")
lab("L_END")
if OPT["stamps"]:
    e("s_mov_b64 exec, -1")
    e("s_cmp_ge_u32 s2, 256")
    e("s_cbranch_scc1 L_END2")
    stamp(13)
    set_exec(0xffffffff, 0)
    e(f"buffer_store_dword {v(vSTAMP0)}, {v(aL4)}, {s(sWS,4)}, {s(sSTB)} offen")
    e(f"buffer_store_dword {v(vSTAMP)}, {v(aL4)}, {s(sWS,4)}, {s(sSTB)} offen offset:128")
    lab("L_END2")
e("s_endpgm")
out.append(f".fill (16384 - (. - {KNAME})) / 4, 4, 0xbf800000")

nv = (NVGPR + 7) // 8 * 8
out.append('.section .rodata,"a"')
out.append(".p2align 6")
out.append(f".amdhsa_kernel {KNAME}")
out.append(f"  .amdhsa_next_free_vgpr {nv}")
out.append(f"  .amdhsa_next_free_sgpr 102")
out.append(f"  .amdhsa_accum_offset {nv}")
out.append("  .amdhsa_group_segment_fixed_size 0")
out.append("  .amdhsa_kernarg_size 104")
out.append("  .amdhsa_user_sgpr_count 2")
out.append("  .amdhsa_user_sgpr_kernarg_segment_ptr 1")
out.append("  .amdhsa_system_sgpr_workgroup_id_x 1")
out.append(".end_amdhsa_kernel")
open(sys.argv[1], "w").write("\n".join(out) + "\n")
print("vgprs", NVGPR, "sgprs", S.n, "lds", LDS_BYTES, "lines", len(out))
```

```python
import sys, struct, math

NAME = "interleave_layers__sliding_block_cached__mixer_channel_mlp__decode"
KNAME = NAME + "_kernel"

OPT = dict(stamps=0, D=4, touch=1, d4=9, d7=9, diag=0, cpf=1, K0=4, ns=12, qs=16, DV=0, DW=0, nopf=0, pp=0, gap=2, xb=0, da=0, db=0)
for a in sys.argv[2:]:
    k, v_ = a.split("=")
    OPT[k] = int(v_)

def f32(x):
    return "0x%08x" % struct.unpack("<I", struct.pack("<f", x))[0]

X1_OFF = 0x0000
X2_OFF = 0x1000
ML_OFF = 0x2000
HP_OFF = 0x3000
OB_OFF = 0x8000
X1P_OFF = 0x10000
X2P_OFF = 0x18000
LSZ = 0x1C000
QP_OFF = 2 * LSZ
GSZ = QP_OFF + 0xA000
PF = GSZ // 32
TAG_BASE = 8 * GSZ
STAMP_BASE = 0x400000
assert TAG_BASE + 8 * 0x10000 <= STAMP_BASE and PF == 8448

L_WQ = 0
L_WO = 16384
L_W1 = 32768
L_W2 = 40960
L_G1 = 49152
L_G5 = 53248
L_CNT = L_G5
L_H = 57344
L_Q = L_H + 1088
L_MX = L_Q + 1088
L_LS = L_MX + 128
L_ML = L_LS + 128
L_RES = L_ML + 256
L_X0 = L_RES + 512
L_XI = L_X0
assert L_X0 % 16 == 0 and L_X0 + 4096 <= 65536
L_OB = 65536
OSTR = 2560
L_AF = L_OB + 8 * OSTR
LDS_BYTES = L_AF + 32 * 272

SPIN_MAX = 0x20000

class Regs:
    def __init__(self, start, limit, p):
        self.n = start; self.limit = limit; self.p = p
    def alloc(self, cnt=1, align=1):
        self.n = (self.n + align - 1) // align * align
        r = self.n; self.n += cnt
        assert self.n <= self.limit, (self.p, self.n)
        return r

S = Regs(4, 100, "s")
V = Regs(1, 256, "v")
def s(r, n=1): return f"s{r}" if n == 1 else f"s[{r}:{r+n-1}]"
def v(r, n=1): return f"v{r}" if n == 1 else f"v[{r}:{r+n-1}]"

sX, sK, sV, sWQ, sWO, sW1, sB1, sW2, sB2, sOUT, sDBG, sWS = [S.alloc(4, 4) for _ in range(12)]
sW = S.alloc(); sG = S.alloc(); sI = S.alloc(); sB = S.alloc(); sS = S.alloc()
sGB = S.alloc()
sLB = S.alloc()
sLO = S.alloc()
sLAYER = S.alloc(); sFAST = S.alloc(); sNONCE = S.alloc(); sCNT = S.alloc()
sT0 = S.alloc(); sT1 = S.alloc(); sT2 = S.alloc(); sT3 = S.alloc()
sROT = S.alloc(); sROTH = S.alloc(); sKVB = S.alloc()
sC = S.alloc(); sPLO = S.alloc(); sPHI = S.alloc(); sXCC = S.alloc(); sTB = S.alloc()
sKQ = S.alloc(); sWV = S.alloc(); sKH = S.alloc()
sMA = [S.alloc(2, 2) for _ in range(4)]
sM5 = S.alloc(2, 2)
sTM = S.alloc(2, 2); sSTB = S.alloc()
sPC = S.alloc(2, 2)
sD0 = S.alloc(); sD1 = S.alloc(); sD2 = S.alloc(); sD3 = S.alloc()

vL = V.alloc(); vMW = V.alloc(); aL4 = V.alloc()
KF = V.alloc(32, 4)
VT = V.alloc(32, 4)
VR = V.alloc(32, 4)
WA = V.alloc(16, 4)
WB = V.alloc(16, 4)
XF = V.alloc(16, 4)
QF = V.alloc(16, 4)
PB = V.alloc(16, 4)
ONE = V.alloc(4, 4)
ACC = V.alloc(16, 4)
T = V.alloc(16, 4)
aQR = V.alloc()
aXF = V.alloc()
aOST = V.alloc()
aAFW = V.alloc(); aAFR = V.alloc(); aMLR = V.alloc()
aP3S = V.alloc()
aRG = V.alloc()
aXN = V.alloc(); aXS = V.alloc()
aPS = V.alloc()
aSG = V.alloc()
aSW = V.alloc()
aXR = V.alloc()
aHR = V.alloc()
aL16 = V.alloc(); aGW = V.alloc()
aOW = V.alloc(); aOR = V.alloc(); aMX = V.alloc(); aMXW = V.alloc()
aTG = V.alloc()
RES = V.alloc(2, 2); BIA = V.alloc(2, 2); CS = V.alloc(2, 2)
vSTAMP = V.alloc(); vSTAMP0 = V.alloc()
NVGPR = V.n

out = []
def e(x): out.append("    " + x)
def lab(x): out.append(x + ":")
def c(x): out.append("    ; " + x)
def nop(n):
    while n > 0:
        k = min(n, 16); e(f"s_nop {k-1}"); n -= k
_uid = [0]
def uid(p="L"):
    _uid[0] += 1
    return f"{p}_{_uid[0]}"

def stamp(idx):
    if not OPT["stamps"]: return
    if idx >= 16 and OPT["stamps"] < 2: return
    if idx in (0, 13):
        e(f"s_memrealtime {s(sTM,2)}")
        e("s_waitcnt lgkmcnt(0)")
        e(f"v_writelane_b32 {v(vSTAMP)}, {s(sTM)}, 15")
    e(f"s_memtime {s(sTM,2)}")
    e("s_waitcnt lgkmcnt(0)")
    e(f"v_writelane_b32 {v(vSTAMP)}, {s(sTM)}, {idx}")

def dpoint(k):
    if OPT["diag"] != 8: return
    for key, reg in (("da", sD1), ("db", sD2)):
        if OPT[key] == k:
            e(f"s_memrealtime {s(sTM,2)}")
            e("s_waitcnt lgkmcnt(0)")
            e(f"s_mov_b32 {s(reg)}, {s(sTM)}")

def mfma(d, a, b, cc):
    cs = "0" if cc is None else v(cc, 4)
    e(f"v_mfma_f32_16x16x32_bf16 {v(d,4)}, {v(a,4)}, {v(b,4)}, {cs}")

def set_exec(lo, hi):
    e(f"s_mov_b32 exec_lo, {hex(lo)}")
    e(f"s_mov_b32 exec_hi, {hex(hi)}")

def check_sentinel(regs, tmp):
    regs = list(regs)
    e(f"v_max3_u32 {v(tmp)}, {v(regs[0])}, {v(regs[1])}, {v(regs[2])}")
    rest = regs[3:]
    while len(rest) >= 2:
        e(f"v_max3_u32 {v(tmp)}, {v(tmp)}, {v(rest[0])}, {v(rest[1])}")
        rest = rest[2:]
    if rest:
        e(f"v_max_u32 {v(tmp)}, {v(tmp)}, {v(rest[0])}")
    e(f"v_cmp_eq_u32 vcc, -1, {v(tmp)}")

def poll(issue, regs, tmp):
    top = uid("POLL"); done = uid("POLLD")
    e(f"s_mov_b32 {s(sCNT)}, 0")
    lab(top)
    issue()
    e("s_waitcnt vmcnt(0)")
    check_sentinel(regs, tmp)
    e(f"s_cbranch_vccz {done}")
    e(f"s_add_u32 {s(sCNT)}, {s(sCNT)}, 1")
    e(f"s_cmp_lt_u32 {s(sCNT)}, {SPIN_MAX}")
    e(f"s_cbranch_scc1 {top}")
    lab(done)

def poll2(issue, A, B, n, nloads, tmp):
    if not OPT["pp"]:
        poll(lambda: issue(A), range(A, A+n), tmp); return
    top = uid("PP"); dA = uid("PPA"); dB = uid("PPB")
    e(f"s_mov_b32 {s(sCNT)}, 0")
    issue(A)
    e(f"s_sleep {OPT['gap']}")
    lab(top)
    issue(B)
    e(f"s_waitcnt vmcnt({nloads})")
    check_sentinel(range(A, A+n), tmp)
    e(f"s_cbranch_vccz {dA}")
    issue(A)
    e(f"s_waitcnt vmcnt({nloads})")
    check_sentinel(range(B, B+n), tmp)
    e(f"s_cbranch_vccz {dB}")
    e(f"s_add_u32 {s(sCNT)}, {s(sCNT)}, 1")
    e(f"s_cmp_lt_u32 {s(sCNT)}, {SPIN_MAX}")
    e(f"s_cbranch_scc1 {top}")
    lab(dB)
    for k in range(n):
        e(f"v_mov_b32 {v(A+k)}, {v(B+k)}")
    lab(dA)

def store_intra(op, data, addr, soff, off):
    slow = uid("STS"); done = uid("STD")
    e(f"s_cmp_eq_u32 {s(sFAST)}, 0")
    e(f"s_cbranch_scc1 {slow}")
    e(f"{op} {data}, {v(addr)}, {s(sWS,4)}, {s(soff)} offen offset:{off}")
    e(f"s_branch {done}")
    lab(slow)
    e(f"{op} {data}, {v(addr)}, {s(sWS,4)}, {s(soff)} offen offset:{off} sc1")
    lab(done)

def poll_x(soff):
    e(f"s_lshl_b32 {s(sT3)}, {s(sWV)}, 10")
    e(f"v_add_u32 {v(T+2)}, {s(sT3)}, {v(aL16)}")
    poll2(lambda R: e(f"buffer_load_dwordx4 {v(R,4)}, {v(aL16)}, {s(sWS,4)}, {s(soff)} offen sc1"), QF, QF+4, 4, 1, T+1)
    e(f"ds_write_b128 {v(T+2)}, {v(QF,4)} offset:{L_XI}")
    e("s_waitcnt lgkmcnt(0)")

def gemv_mma_store(soff):
    for ks in range(4):
        e(f"ds_read_b128 {v(XF+4*ks,4)}, {v(aXF)} offset:{L_XI + 256*ks}")
    for ks in range(4):
        e(f"s_waitcnt lgkmcnt({3-ks})")
        mfma(ACC, WA + 4*ks, XF + 4*ks, None if ks == 0 else ACC)
    nop(6)
    e(f"s_mov_b64 exec, {s(sMA[0],2)}")
    store_intra("buffer_store_dwordx4", v(ACC,4), aPS, soff, 0)
    e("s_mov_b64 exec, -1")
    e("s_waitcnt vmcnt(0)")

def colsum_store(soff):
    e("s_waitcnt lgkmcnt(0)")
    for ks in range(4):
        mfma(ACC, WA + 4*ks, ONE, None if ks == 0 else ACC)
    nop(6)
    set_exec(0x00100010, 0x00100010)
    store_intra("buffer_store_dwordx4", v(ACC,4), aPS, soff, 0)
    e("s_mov_b64 exec, -1")

def colsum_fetch(soff, kq_stride, addr):
    def issue():
        e(f"s_mov_b32 {s(sT1)}, {s(soff)}")
        for k in range(4):
            e(f"buffer_load_dwordx2 {v(VR+2*k,2)}, {v(addr)}, {s(sWS,4)}, {s(sT1)} offen sc1")
            if k < 3: e(f"s_add_u32 {s(sT1)}, {s(sT1)}, {kq_stride}")
    poll(issue, range(VR, VR+8), T+2)
    e(f"v_pk_add_f32 {v(VR,2)}, {v(VR,2)}, {v(VR+2,2)}")
    e(f"v_pk_add_f32 {v(VR+4,2)}, {v(VR+4,2)}, {v(VR+6,2)}")
    e(f"v_pk_add_f32 {v(CS,2)}, {v(VR,2)}, {v(VR+4,2)}")

def wave_sum(r, tmp):
    for m in ("quad_perm:[1,0,3,2]", "quad_perm:[2,3,0,1]", "row_half_mirror", "row_mirror"):
        nop(2)
        e(f"v_add_f32_dpp {v(r)}, {v(r)}, {v(r)} {m} row_mask:0xf bank_mask:0xf")
    for sw in ("v_permlane16_swap_b32", "v_permlane32_swap_b32"):
        e(f"v_mov_b32 {v(tmp)}, {v(r)}")
        nop(2)
        e(f"{sw} {v(r)}, {v(tmp)}")
        nop(1)
        e(f"v_add_f32 {v(r)}, {v(r)}, {v(tmp)}")

def row_stats(double_ln):
    X = QF
    e("s_waitcnt vmcnt(0)")
    e(f"ds_read_b128 {v(X,4)}, {v(aXR)}")
    e("s_waitcnt lgkmcnt(0)")
    for k in range(4):
        e(f"v_and_b32 {v(X+4+2*k+1)}, 0xffff0000, {v(X+k)}")
        e(f"v_lshlrev_b32 {v(X+4+2*k)}, 16, {v(X+k)}")
    e(f"v_pk_add_f32 {v(X,2)}, {v(X+4,2)}, {v(X+6,2)}")
    e(f"v_pk_add_f32 {v(X+2,2)}, {v(X+8,2)}, {v(X+10,2)}")
    e(f"v_pk_add_f32 {v(X,2)}, {v(X,2)}, {v(X+2,2)}")
    e(f"v_add_f32 {v(T+8)}, {v(X)}, {v(X+1)}")
    wave_sum(T+8, T+5)
    e(f"v_mul_f32 {v(T+8)}, {f32(1/512)}, {v(T+8)}")
    for k in range(8):
        e(f"v_sub_f32 {v(X+4+k)}, {v(X+4+k)}, {v(T+8)}")
    e(f"v_mul_f32 {v(T+4)}, {v(X+4)}, {v(X+4)}")
    for k in range(1, 8):
        e(f"v_fmac_f32 {v(T+4)}, {v(X+4+k)}, {v(X+4+k)}")
    wave_sum(T+4, T+5)
    e(f"v_mul_f32 {v(T+4)}, {f32(1/512)}, {v(T+4)}")
    scale_from_var(T+4, double_ln, T+5)

def scale_from_var(s2, double_ln, tmp):
    e(f"v_add_f32 {v(tmp)}, {f32(1e-5)}, {v(s2)}")
    e(f"v_rsq_f32 {v(tmp)}, {v(tmp)}")
    nop(1)
    if double_ln:
        e(f"v_mul_f32 {v(s2)}, {v(s2)}, {v(tmp)}")
        e(f"v_mul_f32 {v(s2)}, {v(s2)}, {v(tmp)}")
        e(f"v_add_f32 {v(s2)}, {f32(1e-5)}, {v(s2)}")
        e(f"v_rsq_f32 {v(s2)}, {v(s2)}")
        nop(1)
        e(f"v_mul_f32 {v(s2)}, {v(s2)}, {v(tmp)}")
    else:
        e(f"v_mov_b32 {v(s2)}, {v(tmp)}")

def stats_from(s2, s1, double_ln, tmp):
    e(f"v_mul_f32 {v(s1)}, {f32(1/512)}, {v(s1)}")
    e(f"v_mul_f32 {v(s2)}, {f32(1/512)}, {v(s2)}")
    e(f"v_fma_f32 {v(s2)}, -{v(s1)}, {v(s1)}, {v(s2)}")
    e(f"v_max_f32 {v(s2)}, 0, {v(s2)}")
    scale_from_var(s2, double_ln, tmp)

def sum_partials(soff, kq_stride, double_ln):
    row_stats(double_ln)
    e(f"v_mul_f32 {v(T+6)}, {v(T+8)}, {v(CS)}")
    e(f"v_mul_f32 {v(T+7)}, {v(T+8)}, {v(CS+1)}")
    def issue(R):
        e(f"s_mov_b32 {s(sT1)}, {s(soff)}")
        for k in range(4):
            e(f"buffer_load_dwordx2 {v(R+2*k,2)}, {v(aSG)}, {s(sWS,4)}, {s(sT1)} offen sc1")
            if k < 3: e(f"s_add_u32 {s(sT1)}, {s(sT1)}, {kq_stride}")
    poll2(issue, VR, VR+8, 8, 4, T+2)
    e(f"v_pk_add_f32 {v(VR+16,2)}, {v(VR,2)}, {v(VR+2,2)}")
    e(f"v_pk_add_f32 {v(VR+18,2)}, {v(VR+4,2)}, {v(VR+6,2)}")
    e(f"v_pk_add_f32 {v(VR+16,2)}, {v(VR+16,2)}, {v(T+6,2)} neg_lo:[0,1] neg_hi:[0,1]")
    e(f"v_pk_add_f32 {v(VR+16,2)}, {v(VR+16,2)}, {v(VR+18,2)}")
    e(f"v_mul_f32 {v(T)}, {v(VR+16)}, {v(T+4)}")
    e(f"v_mul_f32 {v(T+1)}, {v(VR+17)}, {v(T+4)}")

def reduce_slice(nload, base_off, step, extra_bias):
    def issue():
        e(f"s_add_u32 {s(sT0)}, {s(sLO)}, {base_off}")
        for t in range(nload):
            e(f"buffer_load_dwordx4 {v(VR+4*t,4)}, {v(aRG)}, {s(sWS,4)}, {s(sT0)} offen sc1")
            if t + 1 < nload:
                e(f"s_add_u32 {s(sT0)}, {s(sT0)}, {step}")
    poll(issue, range(VR, VR + 4*nload), T)
    stamp(25 if nload == 8 else 26)
    n = nload
    while n > 1:
        h = n // 2
        for t in range(h):
            e(f"v_pk_add_f32 {v(VR+4*t,2)}, {v(VR+4*t,2)}, {v(VR+4*(t+h),2)}")
            e(f"v_pk_add_f32 {v(VR+4*t+2,2)}, {v(VR+4*t+2,2)}, {v(VR+4*(t+h)+2,2)}")
        n = h
    nop(2)
    e(f"v_permlane32_swap_b32 {v(VR)}, {v(VR+2)}")
    e(f"v_permlane32_swap_b32 {v(VR+1)}, {v(VR+3)}")
    nop(1)
    e(f"v_add_f32 {v(VR)}, {v(VR)}, {v(VR+2)}")
    e(f"v_add_f32 {v(VR+1)}, {v(VR+1)}, {v(VR+3)}")
    e(f"v_mov_b32 {v(VR+2)}, {v(VR)}")
    e(f"v_mov_b32 {v(VR+3)}, {v(VR+1)}")
    nop(2)
    e(f"v_permlane16_swap_b32 {v(VR)}, {v(VR+2)}")
    e(f"v_permlane16_swap_b32 {v(VR+1)}, {v(VR+3)}")
    nop(1)
    e(f"v_add_f32 {v(VR)}, {v(VR)}, {v(VR+2)}")
    e(f"v_add_f32 {v(VR+1)}, {v(VR+1)}, {v(VR+3)}")
    if extra_bias:
        e(f"v_add_f32 {v(VR)}, {v(VR)}, {v(BIA)}")
        e(f"v_add_f32 {v(VR+1)}, {v(VR+1)}, {v(BIA+1)}")
    e(f"v_cvt_pk_bf16_f32 {v(T)}, {v(VR)}, {v(VR+1)}")
    e(f"v_lshlrev_b32 {v(VR)}, 16, {v(T)}")
    e(f"v_and_b32 {v(VR+1)}, 0xffff0000, {v(T)}")
    e("s_waitcnt lgkmcnt(0)")
    e(f"v_add_f32 {v(VR)}, {v(VR)}, {v(RES)}")
    e(f"v_add_f32 {v(VR+1)}, {v(VR+1)}, {v(RES+1)}")
    e(f"v_cvt_pk_bf16_f32 {v(T)}, {v(VR)}, {v(VR+1)}")
    e(f"v_min_u32 {v(T)}, -2, {v(T)}")
    e(f"v_lshlrev_b32 {v(RES)}, 16, {v(T)}")
    e(f"v_and_b32 {v(RES+1)}, 0xffff0000, {v(T)}")

D = OPT["D"]
DV = OPT["DV"] or D
DW = OPT["DW"] or DV

hdr = open("cdna_kernels/" + NAME + ".s.ref").read().split("\n")
head = [l for l in hdr if l.startswith(";") and "@launch" not in l and "Override launch" not in l and "grid=ceil" not in l]
out.extend(head)
out.append(f"; @launch grid=(256,1,1) block=(512,1,1) lds={LDS_BYTES}")
out.append('.amdgcn_target "amdgcn-amd-amdhsa--gfx950"')
out.append(".text")
out.append(f".globl {KNAME}")
out.append(".p2align 8")
out.append(f".type {KNAME},@function")
lab(KNAME)

e("s_cmp_ge_u32 s2, 256")
e("s_cbranch_scc1 L_END")
for reg, off in ((sWQ,24),(sK,8),(sV,16),(sWS,96),(sX,0),(sWO,32),(sW1,48),(sB1,56),(sW2,64),(sB2,72),(sOUT,80),(sDBG,88)):
    e(f"s_load_dwordx2 {s(reg,2)}, s[0:1], {off}")
for reg, nb in ((sX,4096),(sK,0x4000000),(sV,0x4000000),(sWQ,512*4096*2),(sWO,4096*512*2),(sW1,512*1792*2),(sB1,1792*2),
                (sW2,1792*512*2),(sB2,1024),(sOUT,4096),(sDBG,256),(sWS,0x10000000)):
    e(f"s_mov_b32 {s(reg+2)}, {hex(nb)}")
    e(f"s_mov_b32 {s(reg+3)}, 0x00020000")
e(f"v_lshrrev_b32 {v(T)}, 6, v0")
e(f"v_and_b32 {v(vL)}, 63, v0")
e(f"v_readfirstlane_b32 {s(sW)}, {v(T)}")
e(f"s_and_b32 {s(sG)}, s2, 7")
e(f"s_lshr_b32 {s(sI)}, s2, 3")
e(f"s_lshr_b32 {s(sB)}, {s(sI)}, 3")
e(f"s_and_b32 {s(sS)}, {s(sI)}, 7")
e(f"s_and_b32 {s(sKQ)}, {s(sI)}, 3")
e(f"s_and_b32 {s(sKH)}, {s(sI)}, 1")
e(f"s_and_b32 {s(sWV)}, {s(sW)}, 3")
e(f"v_lshlrev_b32 {v(aL16)}, 4, {v(vL)}")
e(f"s_add_u32 {s(sROT)}, {s(sW)}, s2")
e(f"s_add_u32 {s(sROT)}, {s(sROT)}, {s(sI)}")
e(f"s_and_b32 {s(sROT)}, {s(sROT)}, 7")
e(f"s_lshr_b32 {s(sROTH)}, {s(sW)}, 1")
e(f"s_add_u32 {s(sROTH)}, {s(sROTH)}, {s(sB)}")
e(f"s_and_b32 {s(sROTH)}, {s(sROTH)}, 1")
e(f"s_lshl_b32 {s(sROTH)}, {s(sROTH)}, 7")
e(f"s_lshl_b32 {s(sKVB)}, {s(sB)}, 3")
e(f"s_add_u32 {s(sKVB)}, {s(sKVB)}, {s(sG)}")
e(f"s_lshl_b32 {s(sKVB)}, {s(sKVB)}, 21")
e(f"s_lshl_b32 {s(sT3)}, {s(sS)}, 16")
e(f"s_add_u32 {s(sKVB)}, {s(sKVB)}, {s(sT3)}")
e(f"s_lshl_b32 {s(sT3)}, {s(sW)}, 13")
e(f"s_add_u32 {s(sKVB)}, {s(sKVB)}, {s(sT3)}")
e(f"s_add_u32 {s(sKVB)}, {s(sKVB)}, {6144*256}")
kA = [PB, PB+1]; kAh = [PB+2, PB+3]
e(f"v_and_b32 {v(T+6)}, 3, {v(vL)}")
e(f"v_add_u32 {v(T+6)}, {s(sROT)}, {v(T+6)}")
e(f"v_bfe_u32 {v(T+7)}, {v(vL)}, 2, 1")
e(f"v_lshrrev_b32 {v(T+8)}, 3, {v(vL)}")
e(f"v_lshlrev_b32 {v(T+9)}, 4, {v(T+8)}")
e(f"v_lshl_add_u32 {v(T+9)}, {v(T+7)}, 8, {v(T+9)}")
e(f"v_add_u32 {v(T+9)}, {s(sROTH)}, {v(T+9)}")
for t in range(2):
    e(f"v_add_u32 {v(T+10)}, {4*t}, {v(T+6)}")
    e(f"v_and_b32 {v(T+10)}, 7, {v(T+10)}")
    e(f"v_lshl_add_u32 {v(kA[t])}, {v(T+10)}, 10, {v(T+9)}")
    e(f"v_xor_b32 {v(kAh[t])}, 0x80, {v(kA[t])}")
if OPT["stamps"]:
    e(f"v_mov_b32 {v(vSTAMP)}, 0")
    e(f"v_mov_b32 {v(vSTAMP0)}, 0")

def kslot(t, hf, mh): return KF + 4*(t*4 + hf*2 + mh)
def issue_k(n):
    t, hf, mh = n >> 2, (n >> 1) & 1, n & 1
    a = kA[t] if hf == 0 else kAh[t]
    e(f"buffer_load_dwordx4 {v(kslot(t,hf,mh),4)}, {v(a)}, {s(sK,4)}, {s(sKVB)} offen offset:{512*mh} nt")
def issue_v(i):
    e(f"s_add_u32 {s(sT3)}, {s(sROT)}, {i}")
    e(f"s_and_b32 {s(sT3)}, {s(sT3)}, 7")
    e(f"s_lshl_b32 {s(sT3)}, {s(sT3)}, 10")
    e(f"s_add_u32 {s(sT3)}, {s(sT3)}, {s(sKVB)}")
    e(f"buffer_load_dwordx4 {v(VR+4*i,4)}, {v(aL16)}, {s(sV,4)}, {s(sT3)} offen nt")

e(f"v_and_b32 {v(T+7)}, 7, {v(vL)}")
e(f"v_lshlrev_b32 {v(T+7)}, 4, {v(T+7)}")
e(f"v_lshl_add_u32 {v(T+7)}, {v(T+8)}, 13, {v(T+7)}")
e(f"s_lshl_b32 {s(sT3)}, {s(sG)}, 10")
e(f"s_lshr_b32 {s(sT0)}, {s(sI)}, 2")
e(f"s_lshl_b32 {s(sT0)}, {s(sT0)}, 7")
e(f"s_add_u32 {s(sT3)}, {s(sT3)}, {s(sT0)}")
e(f"s_lshl_b32 {s(sT0)}, {s(sKQ)}, 20")
e(f"s_add_u32 {s(sT3)}, {s(sT3)}, {s(sT0)}")
e(f"s_lshl_b32 {s(sT0)}, {s(sW)}, 17")
e(f"s_add_u32 {s(sT3)}, {s(sT3)}, {s(sT0)}")
e(f"s_lshl_b32 {s(sT0)}, {s(sW)}, 11")
e(f"s_add_u32 {s(sT0)}, {s(sT0)}, {L_WQ}")
e(f"s_mov_b32 m0, {s(sT0)}")
e(f"v_mov_b32 {v(T+11)}, {L_CNT}")
e(f"v_mov_b32 {v(T+12)}, 0")
e(f"ds_write_b32 {v(T+11)}, {v(T+12)}")
e("s_waitcnt lgkmcnt(0)")
stamp(0)
if 4 <= OPT["diag"] <= 7:
    e(f"s_memrealtime {s(sTM,2)}")
    e("s_waitcnt lgkmcnt(0)")
    e(f"s_mov_b32 {s(sD0)}, {s(sTM)}")
e(f"s_cmp_lg_u32 {s(sW)}, 7")
e("s_cbranch_scc1 L_SETUP3")
e("s_cmp_lg_u32 s2, 0")
e("s_cbranch_scc1 L_SETUP3")
c("WG 0 wave 7 publishes the launch nonce (tells this launch's first hand-off from stale words)")
e(f"s_memrealtime {s(sTM,2)}")
e("s_waitcnt lgkmcnt(0)")
e(f"s_lshl_b32 {s(sNONCE)}, {s(sTM)}, 4")
e(f"s_or_b32 {s(sNONCE)}, {s(sNONCE)}, 0x80000000")
e(f"v_mov_b32 {v(ACC+4)}, {s(sNONCE)}")
e(f"v_mov_b32 {v(ACC+5)}, 0")
e("s_mov_b64 exec, 1")
e(f"buffer_store_dword {v(ACC+4)}, {v(ACC+5)}, {s(sDBG,4)}, 0 offen sc1")
e("s_mov_b64 exec, -1")
lab("L_SETUP3")
e(f"buffer_load_dwordx4 {v(T+7)}, {s(sWQ,4)}, {s(sT3)} offen nt lds")
e(f"s_add_u32 {s(sT0)}, {s(sT0)}, 1024")
e(f"s_mov_b32 m0, {s(sT0)}")
e(f"s_add_u32 {s(sT3)}, {s(sT3)}, {8*8192}")
e(f"buffer_load_dwordx4 {v(T+7)}, {s(sWQ,4)}, {s(sT3)} offen nt lds")
e(f"s_cmp_lg_u32 {s(sW)}, 1")
e("s_cbranch_scc1 L_NOCPF")
c("wave 1: pull 1 KB of the kernel's own code into L2 (loads only)")
e(f"s_getpc_b64 {s(sPC,2)}")
lab("L_PCREF")
e(f"s_sub_u32 {s(sPC)}, {s(sPC)}, L_PCREF-{KNAME}")
e(f"s_subb_u32 {s(sPC+1)}, {s(sPC+1)}, 0")
e(f"s_and_b32 {s(sT1)}, {s(sI)}, 15")
e(f"s_lshl_b32 {s(sT1)}, {s(sT1)}, 10")
e(f"v_add_u32 {v(T+9)}, {s(sT1)}, {v(aL16)}")
e(f"global_load_dwordx4 {v(PB+4,4)}, {v(T+9)}, {s(sPC,2)}")
lab("L_NOCPF")
e(f"s_cmp_lg_u32 {s(sW)}, 5")
e("s_cbranch_scc1 L_NOX5")
for r in range(16):
    e(f"v_mov_b32 {v(XF+r)}, 0x3f803f80")
e(f"v_and_b32 {v(T+9)}, 3, {v(vL)}")
e(f"v_lshlrev_b32 {v(T+9)}, 10, {v(T+9)}")
e(f"v_lshrrev_b32 {v(T+10)}, 4, {v(vL)}")
e(f"v_lshl_add_u32 {v(T+9)}, {v(T+10)}, 4, {v(T+9)}")
e(f"s_lshl_b32 {s(sT0)}, {s(sKQ)}, 8")
set_exec(0x000f000f, 0x000f000f)
for ks in range(4):
    e(f"buffer_load_dwordx4 {v(XF+4*ks,4)}, {v(T+9)}, {s(sX,4)}, {s(sT0)} offen offset:{64*ks}")
e("s_mov_b64 exec, -1")
e(f"v_lshlrev_b32 {v(T+9)}, 10, {v(T+10)}")
e(f"v_and_b32 {v(T+10)}, 15, {v(vL)}")
e(f"v_lshl_add_u32 {v(T+9)}, {v(T+10)}, 4, {v(T+9)}")
for k in range(4):
    e(f"buffer_load_dwordx4 {v(QF+4*k,4)}, {v(T+9)}, {s(sX,4)}, 0 offen offset:{256*k}")
lab("L_NOX5")
e("s_barrier")
e(f"s_mul_i32 {s(sGB)}, {s(sG)}, {GSZ}")
e(f"s_lshl_b32 {s(sTB)}, {s(sG)}, 16")
e(f"s_add_u32 {s(sTB)}, {s(sTB)}, {TAG_BASE}")
c("sentinel pre-fill of this member's share of the group's hand-off region: 1 KB per wave (+ one extra store each)")
for r in range(4):
    e(f"v_mov_b32 {v(ACC+r)}, -1")
    e(f"v_mov_b32 {v(ACC+4+r)}, 0")
e(f"s_mul_i32 {s(sT1)}, {s(sI)}, {PF}")
e(f"s_add_u32 {s(sT1)}, {s(sT1)}, {s(sGB)}")
e(f"s_lshl_b32 {s(sT0)}, {s(sW)}, 10")
e(f"s_add_u32 {s(sT0)}, {s(sT0)}, {s(sT1)}")
if OPT["nopf"]:
    e("s_mov_b64 exec, 1")
e(f"buffer_store_dwordx4 {v(ACC,4)}, {v(aL16)}, {s(sWS,4)}, {s(sT0)} offen sc1")
e("s_mov_b64 exec, -1")
e(f"s_cmp_lg_u32 {s(sW)}, 0")
e("s_cbranch_scc1 L_PF1")
e(f"s_add_u32 {s(sT1)}, {s(sT1)}, 8192")
e("s_mov_b64 exec, 0xffff")
e(f"buffer_store_dwordx4 {v(ACC,4)}, {v(aL16)}, {s(sWS,4)}, {s(sT1)} offen sc1")
e("s_mov_b64 exec, -1")
lab("L_PF1")
e(f"s_cmp_lg_u32 {s(sW)}, 5")
e("s_cbranch_scc1 L_NOPF")
c("wave 5: clear own tagged message; x fragments of k-quarter kq (lanes n>=4 keep bf16 ones) and x rows for the statistics")
e(f"s_lshl_b32 {s(sT1)}, {s(sI)}, 10")
e(f"s_add_u32 {s(sT1)}, {s(sT1)}, {s(sTB)}")
e(f"buffer_store_dwordx4 {v(ACC+4,4)}, {v(aL16)}, {s(sWS,4)}, {s(sT1)} offen sc1")
e("s_branch L_NOK")
lab("L_NOPF")
K0N = OPT["K0"]
for n in range(K0N):
    issue_k(n)
lab("L_NOK")

e(f"s_mov_b32 {s(sLB)}, {s(sGB)}")
e(f"s_mov_b32 {s(sLO)}, 0")
e(f"s_mov_b32 {s(sLAYER)}, 0")
e(f"s_mov_b32 {s(sFAST)}, 0")
for a in range(4):
    m = 0
    for l in range(64):
        if ((l & 15) >> 2) == a: m |= 1 << l
    e(f"s_mov_b32 {s(sMA[a])}, {hex(m & 0xffffffff)}")
    e(f"s_mov_b32 {s(sMA[a]+1)}, {hex(m >> 32)}")
e(f"s_mov_b32 {s(sM5)}, 0x001f001f")
e(f"s_mov_b32 {s(sM5+1)}, 0x001f001f")
n15, kg, l3, n2 = T+1, T+2, T+3, T+4
e(f"v_and_b32 {v(n15)}, 15, {v(vL)}")
e(f"v_lshrrev_b32 {v(kg)}, 4, {v(vL)}")
e(f"v_and_b32 {v(l3)}, 3, {v(vL)}")
e(f"v_bfe_u32 {v(n2)}, {v(vL)}, 2, 2")
e(f"s_getreg_b32 {s(sXCC)}, hwreg(HW_REG_XCC_ID)")
e(f"s_and_b32 {s(sXCC)}, {s(sXCC)}, 15")
e(f"s_lshl_b32 {s(sT3)}, {s(sWV)}, 10")
e(f"v_lshlrev_b32 {v(aGW)}, 6, {v(n15)}")
e(f"v_lshl_add_u32 {v(aGW)}, {v(kg)}, 4, {v(aGW)}")
e(f"v_add_u32 {v(aGW)}, {s(sT3)}, {v(aGW)}")
TRR = V.alloc(); NVGPR = V.n
e(f"v_lshl_add_u32 {v(TRR)}, {v(kg)}, 3, {v(n2)}")
e("s_mov_b64 vcc, -1")
e(f"s_cmp_eq_u32 {s(sW)}, 5")
e("s_cbranch_scc1 L_Q1")
e("s_branch L_V")
lab("L_FREE")
e("s_mov_b64 vcc, 0")
for n in range(8):
    issue_k(n)
for i in range(8):
    issue_v(i)
lab("L_V")
def throttle(n=None):
    sk = uid("TH")
    e(f"s_cbranch_vccz {sk}")
    e(f"s_waitcnt vmcnt({DW-1 if n is None else n})")
    lab(sk)
e(f"v_and_b32 {v(n15)}, 15, {v(vL)}")
e(f"v_lshrrev_b32 {v(kg)}, 4, {v(vL)}")
e(f"v_and_b32 {v(l3)}, 3, {v(vL)}")
e(f"v_bfe_u32 {v(n2)}, {v(vL)}, 2, 2")
QT = VT
def issue_qt():
    e(f"s_lshl_b32 {s(sT0)}, {s(sB)}, 6")
    e(f"s_add_u32 {s(sT0)}, {s(sT0)}, {s(sTB)}")
    e(f"s_add_u32 {s(sT1)}, {s(sT0)}, 16384")
    for k in range(4):
        e(f"buffer_load_dwordx4 {v(QT+8*k,4)}, {v(aTG)}, {s(sWS,4)}, {s(sT0)} offen offset:{1024*k} sc1")
        e(f"buffer_load_dwordx4 {v(QT+8*k+4,4)}, {v(aTG)}, {s(sWS,4)}, {s(sT1)} offen offset:{1024*k} sc1")
e(f"v_lshlrev_b32 {v(aTG)}, 12, {v(kg)}")
e(f"v_lshl_add_u32 {v(aTG)}, {v(n2)}, 8, {v(aTG)}")
e(f"v_lshl_add_u32 {v(aTG)}, {v(l3)}, 4, {v(aTG)}")
_vnext = [0]
def vslot():
    if _vnext[0] < 8:
        sk = uid("VS")
        e(f"s_cbranch_vccz {sk}")
        e(f"s_waitcnt vmcnt({DV-1})")
        issue_v(_vnext[0]); _vnext[0] += 1
        lab(sk)
e(f"s_lshl_b32 {s(sSTB)}, s2, 3")
e(f"s_add_u32 {s(sSTB)}, {s(sSTB)}, {s(sW)}")
e(f"s_lshl_b32 {s(sSTB)}, {s(sSTB)}, 8")
e(f"s_add_u32 {s(sSTB)}, {s(sSTB)}, {STAMP_BASE}")
e(f"s_mov_b32 {s(sC)}, {f32(128**-0.5 * math.log2(math.e))}")
e(f"s_mov_b32 {s(sPLO)}, 0x05040100")
e(f"s_mov_b32 {s(sPHI)}, 0x07060302")
e(f"v_lshlrev_b32 {v(aL4)}, 2, {v(vL)}")
for r in range(4):
    e(f"v_mov_b32 {v(ONE+r)}, 0x3f803f80")
e(f"v_lshlrev_b32 {v(aXF)}, 6, {v(kg)}")
e(f"v_lshl_add_u32 {v(aXF)}, {v(l3)}, 4, {v(aXF)}")
e(f"s_lshl_b32 {s(sT3)}, {s(sKQ)}, 10")
e(f"v_add_u32 {v(aXF)}, {s(sT3)}, {v(aXF)}")
e(f"v_mul_u32_u24 {v(T+7)}, 272, {v(l3)}")
e(f"v_lshl_add_u32 {v(aQR)}, {v(kg)}, 5, {v(T+7)}")
e(f"v_add_u32 {v(aQR)}, {L_Q}, {v(aQR)}")
e(f"v_lshl_add_u32 {v(aHR)}, {v(kg)}, 4, {v(T+7)}")
e(f"v_add_u32 {v(aHR)}, {L_H}, {v(aHR)}")
e(f"s_lshl_b32 {s(sT3)}, {s(sW)}, 13")
e(f"s_lshl_b32 {s(sT0)}, {s(sI)}, 8")
e(f"s_add_u32 {s(sT3)}, {s(sT3)}, {s(sT0)}")
e(f"s_add_u32 {s(sT3)}, {s(sT3)}, {OB_OFF}")
e(f"v_add_u32 {v(aOST)}, {s(sT3)}, {v(aL4)}")
e(f"s_cmp_lg_u32 {s(sW)}, 4")
e("s_cbranch_scc1 L_A1")
e(f"s_lshl_b32 {s(sT3)}, {s(sI)}, 3")
e(f"s_add_u32 {s(sT3)}, {s(sT3)}, {ML_OFF}")
e(f"v_lshlrev_b32 {v(aOST)}, 8, {v(l3)}")
e(f"v_add_u32 {v(aOST)}, {s(sT3)}, {v(aOST)}")
lab("L_A1")
e(f"s_and_b32 {s(sT3)}, {s(sW)}, 1")
e(f"s_lshl_b32 {s(sT3)}, {s(sT3)}, 4")
e(f"s_lshr_b32 {s(sT0)}, {s(sW)}, 1")
e(f"s_lshl_b32 {s(sT0)}, {s(sT0)}, 2")
e(f"s_add_u32 {s(sT3)}, {s(sT3)}, {s(sT0)}")
e(f"v_add_u32 {v(T+7)}, {s(sT3)}, {v(kg)}")
e(f"v_mul_u32_u24 {v(aAFW)}, 272, {v(T+7)}")
e(f"v_lshl_add_u32 {v(aAFW)}, {v(n15)}, 4, {v(aAFW)}")
e(f"v_add_u32 {v(aAFW)}, {L_AF}, {v(aAFW)}")
e(f"v_mul_u32_u24 {v(aAFR)}, 272, {v(n15)}")
e(f"v_lshl_add_u32 {v(aAFR)}, {v(kg)}, 4, {v(aAFR)}")
e(f"v_add_u32 {v(aAFR)}, {L_AF}, {v(aAFR)}")
e(f"v_lshlrev_b32 {v(aMLR)}, 6, {v(n2)}")
e(f"v_lshl_add_u32 {v(aMLR)}, {v(l3)}, 3, {v(aMLR)}")
e(f"v_add_u32 {v(aMLR)}, {L_ML}, {v(aMLR)}")
e(f"s_lshl_b32 {s(sT3)}, {s(sB)}, 13")
e(f"s_lshl_b32 {s(sT0)}, {s(sS)}, 10")
e(f"s_add_u32 {s(sT3)}, {s(sT3)}, {s(sT0)}")
e(f"s_lshl_b32 {s(sT0)}, {s(sWV)}, 8")
e(f"s_add_u32 {s(sT3)}, {s(sT3)}, {s(sT0)}")
e(f"s_add_u32 {s(sT3)}, {s(sT3)}, {X1P_OFF}")
e(f"v_lshlrev_b32 {v(aP3S)}, 6, {v(n2)}")
e(f"v_lshl_add_u32 {v(aP3S)}, {v(kg)}, 4, {v(aP3S)}")
e(f"v_add_u32 {v(aP3S)}, {s(sT3)}, {v(aP3S)}")
e(f"v_lshlrev_b32 {v(aRG)}, 13, {v(kg)}")
e(f"s_cmp_lt_u32 {s(sW)}, 4")
e("s_cbranch_scc1 L_A2")
e(f"v_lshrrev_b32 {v(T+7)}, 1, {v(kg)}")
e(f"s_mov_b32 {s(sT0)}, {GSZ}")
e(f"v_mul_lo_u32 {v(T+7)}, {s(sT0)}, {v(T+7)}")
e(f"v_and_b32 {v(aRG)}, 0x2000, {v(aRG)}")
e(f"v_add_u32 {v(aRG)}, {v(aRG)}, {v(T+7)}")
lab("L_A2")
e(f"v_lshl_add_u32 {v(aRG)}, {v(n15)}, 4, {v(aRG)}")
e(f"s_lshl_b32 {s(sT3)}, {s(sI)}, 8")
e(f"v_add_u32 {v(aRG)}, {s(sT3)}, {v(aRG)}")
e(f"v_lshrrev_b32 {v(T+7)}, 5, {v(vL)}")
e(f"v_lshlrev_b32 {v(aXN)}, 10, {v(n2)}")
e(f"v_lshl_add_u32 {v(aXN)}, {v(l3)}, 3, {v(aXN)}")
e(f"v_lshl_add_u32 {v(aXN)}, {v(T+7)}, 2, {v(aXN)}")
e(f"s_lshl_b32 {s(sT3)}, {s(sI)}, 5")
e(f"v_add_u32 {v(aXN)}, {s(sT3)}, {v(aXN)}")
e(f"v_bfe_u32 {v(T+8)}, {v(vL)}, 1, 1")
e(f"v_lshlrev_b32 {v(aXS)}, 6, {v(T+8)}")
e(f"v_lshl_add_u32 {v(aXS)}, {v(n2)}, 4, {v(aXS)}")
e(f"v_and_b32 {v(T+8)}, 1, {v(vL)}")
e(f"v_lshl_add_u32 {v(aXS)}, {v(T+8)}, 3, {v(aXS)}")
e(f"v_lshl_add_u32 {v(aXS)}, {v(T+7)}, 2, {v(aXS)}")
e(f"s_lshl_b32 {s(sT3)}, {s(sI)}, 7")
e(f"v_add_u32 {v(aXS)}, {s(sT3)}, {v(aXS)}")
e(f"s_lshr_b32 {s(sT2)}, {s(sI)}, 2")
e(f"s_cmp_ge_u32 {s(sW)}, 4")
e("s_cbranch_scc1 L_A3")
c("waves 0-3: QP store ; HP gather (batch = w, units kh*96 + 2l) ; h write")
e(f"s_mul_i32 {s(sT3)}, {s(sKQ)}, 10240")
e(f"s_lshl_b32 {s(sT0)}, {s(sT2)}, 8")
e(f"s_add_u32 {s(sT3)}, {s(sT3)}, {s(sT0)}")
e(f"s_lshl_b32 {s(sT0)}, {s(sW)}, 6")
e(f"s_add_u32 {s(sT3)}, {s(sT3)}, {s(sT0)}")
e(f"v_lshlrev_b32 {v(aPS)}, 11, {v(n15)}")
e(f"v_lshl_add_u32 {v(aPS)}, {v(kg)}, 4, {v(aPS)}")
e(f"v_add_u32 {v(aPS)}, {s(sT3)}, {v(aPS)}")
e(f"s_mul_i32 {s(sT3)}, {s(sKH)}, 384")
e(f"s_lshl_b32 {s(sT0)}, {s(sW)}, 10")
e(f"s_add_u32 {s(sT3)}, {s(sT3)}, {s(sT0)}")
e(f"v_lshlrev_b32 {v(aSG)}, 3, {v(vL)}")
e(f"v_add_u32 {v(aSG)}, {s(sT3)}, {v(aSG)}")
e(f"s_mul_i32 {s(sT3)}, {s(sW)}, 272")
e(f"s_add_u32 {s(sT3)}, {s(sT3)}, {L_H}")
e(f"v_add_u32 {v(aSW)}, {s(sT3)}, {v(aL4)}")
e(f"s_mov_b32 {s(sT1)}, {s(sW)}")
e("s_branch L_A4")
lab("L_A3")
c("waves 4,5: HP store ; waves 6,7: X2P store ; 4-7: QP gather (batch b, head = wv, cols 2l) ; q write")
e(f"s_mul_i32 {s(sT3)}, {s(sKQ)}, 5120")
e(f"s_lshl_b32 {s(sT0)}, {s(sT2)}, 7")
e(f"s_add_u32 {s(sT3)}, {s(sT3)}, {s(sT0)}")
e(f"s_and_b32 {s(sT0)}, {s(sW)}, 1")
e(f"s_lshl_b32 {s(sT0)}, {s(sT0)}, 6")
e(f"s_add_u32 {s(sT3)}, {s(sT3)}, {s(sT0)}")
e(f"s_add_u32 {s(sT3)}, {s(sT3)}, {HP_OFF}")
e(f"v_lshlrev_b32 {v(aPS)}, 10, {v(n15)}")
e(f"v_lshl_add_u32 {v(aPS)}, {v(kg)}, 4, {v(aPS)}")
e(f"v_add_u32 {v(aPS)}, {s(sT3)}, {v(aPS)}")
e(f"s_cmp_lt_u32 {s(sW)}, 6")
e("s_cbranch_scc1 L_A3b")
e(f"s_lshl_b32 {s(sT3)}, {s(sKH)}, 13")
e(f"s_lshr_b32 {s(sT0)}, {s(sI)}, 1")
e(f"s_lshl_b32 {s(sT0)}, {s(sT0)}, 9")
e(f"s_add_u32 {s(sT3)}, {s(sT3)}, {s(sT0)}")
e(f"s_and_b32 {s(sT0)}, {s(sW)}, 1")
e(f"s_lshl_b32 {s(sT0)}, {s(sT0)}, 8")
e(f"s_add_u32 {s(sT3)}, {s(sT3)}, {s(sT0)}")
e(f"s_add_u32 {s(sT3)}, {s(sT3)}, {X2P_OFF}")
e(f"v_and_b32 {v(aPS)}, 0x3ff, {v(aGW)}")
e(f"v_add_u32 {v(aPS)}, {s(sT3)}, {v(aPS)}")
lab("L_A3b")
e(f"s_lshl_b32 {s(sT3)}, {s(sB)}, 11")
e(f"s_lshl_b32 {s(sT0)}, {s(sWV)}, 9")
e(f"s_add_u32 {s(sT3)}, {s(sT3)}, {s(sT0)}")
e(f"v_lshlrev_b32 {v(aSG)}, 3, {v(vL)}")
e(f"v_add_u32 {v(aSG)}, {s(sT3)}, {v(aSG)}")
e(f"s_mul_i32 {s(sT3)}, {s(sWV)}, 272")
e(f"s_add_u32 {s(sT3)}, {s(sT3)}, {L_Q}")
e(f"v_add_u32 {v(aSW)}, {s(sT3)}, {v(aL4)}")
e(f"s_mov_b32 {s(sT1)}, {s(sB)}")
lab("L_A4")
e(f"s_lshl_b32 {s(sT3)}, {s(sT1)}, 4")
e(f"s_add_u32 {s(sT3)}, {s(sT3)}, {L_XI}")
e(f"v_lshlrev_b32 {v(aXR)}, 6, {v(vL)}")
e(f"v_add_u32 {v(aXR)}, {s(sT3)}, {v(aXR)}")
e(f"s_mul_i32 {s(sT3)}, {s(sW)}, {OSTR}")
e(f"s_add_u32 {s(sT3)}, {s(sT3)}, {L_OB}")
e(f"v_mul_u32_u24 {v(aOW)}, 272, {v(kg)}")
e(f"v_lshl_add_u32 {v(aOW)}, {v(n15)}, 4, {v(aOW)}")
e(f"v_add_u32 {v(aOW)}, {s(sT3)}, {v(aOW)}")
e(f"v_mul_u32_u24 {v(aOR)}, 1088, {v(T+7)}")
e(f"v_bfe_u32 {v(T+9)}, {v(vL)}, 3, 2")
e(f"v_mul_u32_u24 {v(T+9)}, 272, {v(T+9)}")
e(f"v_add_u32 {v(aOR)}, {v(aOR)}, {v(T+9)}")
e(f"v_bfe_u32 {v(T+9)}, {v(vL)}, 1, 2")
e(f"v_lshl_add_u32 {v(aOR)}, {v(T+9)}, 6, {v(aOR)}")
e(f"v_lshl_add_u32 {v(aOR)}, {v(T+8)}, 3, {v(aOR)}")
e(f"s_lshl_b32 {s(sT3)}, {s(sWV)}, 4")
e(f"s_add_u32 {s(sT3)}, {s(sT3)}, {L_OB}")
e(f"v_add_u32 {v(aOR)}, {s(sT3)}, {v(aOR)}")
e(f"v_lshlrev_b32 {v(aMX)}, 5, {v(l3)}")
e(f"v_add_u32 {v(aMX)}, {L_MX}, {v(aMX)}")
e(f"s_lshl_b32 {s(sT3)}, {s(sW)}, 2")
e(f"v_add_u32 {v(aMXW)}, {s(sT3)}, {v(aMX)}")
e(f"s_cmp_ge_u32 {s(sW)}, 4")
e("s_cbranch_scc1 L_A5")
e(f"s_lshl_b32 {s(sT3)}, {s(sW)}, 5")
e(f"s_add_u32 {s(sT3)}, {s(sT3)}, {L_MX}")
e(f"v_mov_b32 {v(aMX)}, {s(sT3)}")
lab("L_A5")

e("s_cbranch_vccz L_NOKT")
e(f"v_mov_b32 {v(T+11)}, {L_CNT}")
e(f"v_mov_b32 {v(T+12)}, 1")
e(f"v_mov_b32 {v(T+13)}, 0x100")
e("s_mov_b64 exec, 1")
e(f"s_waitcnt vmcnt({K0N+1})")
e(f"ds_add_u32 {v(T+11)}, {v(T+12)}")
e(f"s_waitcnt vmcnt({K0N})")
e(f"ds_add_u32 {v(T+11)}, {v(T+13)}")
e("s_mov_b64 exec, -1")
for n in range(K0N, 8):
    if n >= D: e(f"s_waitcnt vmcnt({D-1})")
    issue_k(n)
lab("L_NOKT")
for _ in range(8):
    vslot()
e(f"s_cmp_ge_u32 {s(sW)}, 4")
e("s_cbranch_scc1 L_SM2")
e(f"s_mul_i32 {s(sT1)}, {s(sG)}, 448")
e(f"s_mul_i32 {s(sT2)}, {s(sKH)}, 192")
e(f"s_add_u32 {s(sT1)}, {s(sT1)}, {s(sT2)}")
e(f"buffer_load_dword {v(BIA)}, {v(aL4)}, {s(sB1,4)}, {s(sT1)} offen")
e(f"buffer_load_dword {v(RES)}, {v(aXN)}, {s(sX,4)}, 0 offen")
e("s_branch L_WEIGHTS")
lab("L_SM2")
e(f"v_and_b32 {v(T+11)}, 0x3ff, {v(aXN)}")
e(f"buffer_load_dword {v(BIA)}, {v(T+11)}, {s(sB2,4)}, 0 offen")
lab("L_WEIGHTS")
e(f"v_lshrrev_b32 {v(T+11)}, 3, {v(vL)}")
e(f"v_lshlrev_b32 {v(T+11)}, 10, {v(T+11)}")
e(f"v_and_b32 {v(T+12)}, 7, {v(vL)}")
e(f"v_lshl_add_u32 {v(T+11)}, {v(T+12)}, 4, {v(T+11)}")
e(f"s_lshl_b32 {s(sT3)}, {s(sG)}, 2")
e(f"s_add_u32 {s(sT3)}, {s(sT3)}, {s(sB)}")
e(f"s_lshl_b32 {s(sT3)}, {s(sT3)}, 17")
e(f"s_lshl_b32 {s(sT0)}, {s(sW)}, 14")
e(f"s_add_u32 {s(sT3)}, {s(sT3)}, {s(sT0)}")
e(f"s_lshl_b32 {s(sT0)}, {s(sS)}, 7")
e(f"s_add_u32 {s(sT3)}, {s(sT3)}, {s(sT0)}")
e(f"s_lshl_b32 {s(sT0)}, {s(sW)}, 11")
e(f"s_add_u32 {s(sT0)}, {s(sT0)}, {L_WO}")
for n in range(2):
    throttle()
    e(f"s_mov_b32 m0, {s(sT0)}")
    e(f"s_add_u32 {s(sT0)}, {s(sT0)}, 1024")
    e(f"buffer_load_dwordx4 {v(T+11)}, {s(sWO,4)}, {s(sT3)} offen nt lds")
    e(f"s_add_u32 {s(sT3)}, {s(sT3)}, 8192")
def k_fixup():
    for t in range(2):
        for hf in range(2):
            X = kslot(t, hf, 0); Y = kslot(t, hf, 1)
            for r in range(4):
                e(f"v_mov_b32 {v(ACC+r)}, {v(X+r)}")
            for r in range(4):
                e(f"v_mov_b32_dpp {v(X+r)}, {v(Y+r)} row_ror:8 row_mask:0xf bank_mask:0xc")
            for r in range(4):
                e(f"v_mov_b32_dpp {v(Y+r)}, {v(ACC+r)} row_ror:8 row_mask:0xf bank_mask:0x3")
for r in range(16):
    e(f"v_mov_b32 {v(PB+r)}, 0")
e("s_cbranch_vccz L_NOFIX")
e("s_waitcnt vmcnt(10)")
k_fixup()
lab("L_NOFIX")
e(f"v_lshrrev_b32 {v(T+11)}, 2, {v(vL)}")
e(f"v_and_b32 {v(T+12)}, 3, {v(vL)}")
e(f"v_lshlrev_b32 {v(T+12)}, 4, {v(T+12)}")
e(f"v_mul_u32_u24 {v(T+13)}, 3584, {v(T+11)}")
e(f"v_add_u32 {v(T+13)}, {v(T+13)}, {v(T+12)}")
e(f"s_lshl_b32 {s(sT3)}, {s(sKQ)}, 3")
e(f"s_add_u32 {s(sT3)}, {s(sT3)}, {s(sW)}")
e(f"s_mul_i32 {s(sT3)}, {s(sT3)}, {16*3584}")
e(f"s_mul_i32 {s(sT1)}, {s(sG)}, 448")
e(f"s_add_u32 {s(sT3)}, {s(sT3)}, {s(sT1)}")
e(f"s_lshr_b32 {s(sT0)}, {s(sI)}, 2")
e(f"s_min_u32 {s(sT0)}, {s(sT0)}, 6")
e(f"s_lshl_b32 {s(sT0)}, {s(sT0)}, 6")
e(f"s_add_u32 {s(sT3)}, {s(sT3)}, {s(sT0)}")
e(f"s_lshl_b32 {s(sT0)}, {s(sW)}, 10")
e(f"s_add_u32 {s(sT2)}, {s(sT0)}, {L_W1}")
e(f"s_mov_b32 m0, {s(sT2)}")
throttle()
e(f"buffer_load_dwordx4 {v(T+13)}, {s(sW1,4)}, {s(sT3)} offen nt lds")
e(f"v_lshl_add_u32 {v(T+13)}, {v(T+11)}, 10, {v(T+12)}")
e(f"s_mul_i32 {s(sT3)}, {s(sG)}, {224*1024}")
e(f"s_mul_i32 {s(sT2)}, {s(sKH)}, {96*1024}")
e(f"s_add_u32 {s(sT3)}, {s(sT3)}, {s(sT2)}")
e(f"s_lshl_b32 {s(sT2)}, {s(sW)}, 14")
e(f"s_add_u32 {s(sT3)}, {s(sT3)}, {s(sT2)}")
e(f"s_lshr_b32 {s(sT2)}, {s(sI)}, 1")
e(f"s_lshl_b32 {s(sT2)}, {s(sT2)}, 6")
e(f"s_add_u32 {s(sT3)}, {s(sT3)}, {s(sT2)}")
e(f"s_add_u32 {s(sT2)}, {s(sT0)}, {L_W2}")
e(f"s_mov_b32 m0, {s(sT2)}")
throttle()
e(f"buffer_load_dwordx4 {v(T+13)}, {s(sW2,4)}, {s(sT3)} offen nt lds")
e(f"s_cmp_lg_u32 {s(sW)}, 5")
e("s_cbranch_scc1 L_QBAR0")
e("s_branch L_QT0")
lab("L_Q1")
c("---------------- wave 5: this tile's share of q of layer 0 (x is an input: statistics computed locally)")
e(f"v_mov_b32 {v(T+5)}, 0x3f803f80")
e(f"v_mov_b32 {v(T+7)}, 0")
e(f"v_mov_b32 {v(T+8)}, 0")
e(f"v_mov_b32 {v(T+14)}, 0")
e(f"v_lshlrev_b32 {v(T+12)}, 7, {v(TRR)}")
e(f"v_lshl_add_u32 {v(T+12)}, {v(l3)}, 3, {v(T+12)}")
e(f"buffer_load_dword {v(ONE)}, {v(T+14)}, {s(sDBG,4)}, 0 offen sc1")
e("s_waitcnt vmcnt(3)")
e(f"buffer_load_dword {v(ONE+1)}, {v(T+14)}, {s(sDBG,4)}, 0 offen sc1")
for k in range(16):
    e(f"v_dot2c_f32_bf16 {v(T+7)}, {v(QF+k)}, {v(QF+k)}")
    e(f"v_dot2c_f32_bf16 {v(T+8)}, {v(QF+k)}, {v(T+5)}")
e(f"v_mov_b32 {v(T+11)}, {L_CNT}")
e(f"s_mov_b32 {s(sCNT)}, 0")
lab("L_WQW")
e(f"ds_read_b32 {v(T+13)}, {v(T+11)}")
e(f"s_add_u32 {s(sCNT)}, {s(sCNT)}, 1")
e("s_waitcnt lgkmcnt(0)")
e(f"v_readfirstlane_b32 {s(sT3)}, {v(T+13)}")
e(f"s_cmp_ge_u32 {s(sCNT)}, {SPIN_MAX}")
e("s_cbranch_scc1 L_WQD")
e(f"s_and_b32 {s(sT3)}, {s(sT3)}, 0xff")
e(f"s_cmp_lt_u32 {s(sT3)}, 7")
e("s_cbranch_scc1 L_WQW")
lab("L_WQD")
stamp(1)
def WQ5(ct, ks): return (VT + 16*ct + 4*ks) if ct < 2 else (WA + 16*(ct-2) + 4*ks)
def rd5(ct):
    for ks in range(4):
        r = WQ5(ct, ks)
        e(f"ds_read_b64_tr_b16 {v(r,2)}, {v(T+12)} offset:{L_WQ + 4096*ks + 32*ct}")
        e(f"ds_read_b64_tr_b16 {v(r+2,2)}, {v(T+12)} offset:{L_WQ + 4096*ks + 32*ct + 512}")
rd5(0)
for ct in range(4):
    e("s_waitcnt lgkmcnt(0)")
    if ct < 3: rd5(ct+1)
    for ks in range(4):
        mfma(ACC+4*ct, WQ5(ct, ks), XF+4*ks, None if ks == 0 else ACC+4*ct)
for m in ("quad_perm:[1,0,3,2]", "quad_perm:[2,3,0,1]", "row_half_mirror", "row_mirror"):
    e(f"v_add_f32_dpp {v(T+7)}, {v(T+7)}, {v(T+7)} {m} row_mask:0xf bank_mask:0xf")
    e(f"v_add_f32_dpp {v(T+8)}, {v(T+8)}, {v(T+8)} {m} row_mask:0xf bank_mask:0xf")
    nop(1)
stats_from(T+7, T+8, False, T+9)
e(f"v_sub_f32 {v(T+8)}, 0, {v(T+8)}")
e(f"v_mov_b32 {v(T+9)}, {v(T+7)}")
e(f"v_lshlrev_b32 {v(T+6)}, 3, {v(kg)}")
e(f"ds_write_b64 {v(T+6)}, {v(T+8,2)} offset:{L_G1}")
e(f"v_lshlrev_b32 {v(T+6)}, 3, {v(l3)}")
e("s_waitcnt lgkmcnt(0)")
e(f"ds_read_b64 {v(T+8,2)}, {v(T+6)} offset:{L_G1}")
for r in range(16):
    e(f"v_mov_b32_dpp {v(VT+r)}, {v(ACC+r)} row_shl:4 row_mask:0xf bank_mask:0xf")
e("s_waitcnt lgkmcnt(0)")
for r in range(16):
    e(f"v_fmac_f32 {v(ACC+r)}, {v(VT+r)}, {v(T+8)}")
for r in range(16):
    e(f"v_mul_f32 {v(ACC+r)}, {v(ACC+r)}, {v(T+9)}")
for ct in range(4):
    e(f"v_cvt_pk_bf16_f32 {v(VT+4*ct)}, {v(ACC+4*ct)}, {v(ACC+4*ct+1)}")
    e(f"v_cvt_pk_bf16_f32 {v(VT+4*ct+2)}, {v(ACC+4*ct+2)}, {v(ACC+4*ct+3)}")
e(f"v_lshlrev_b32 {v(T+6)}, 6, {v(l3)}")
e(f"v_lshl_add_u32 {v(T+6)}, {v(kg)}, 4, {v(T+6)}")
e(f"s_lshl_b32 {s(sT1)}, {s(sI)}, 10")
e(f"s_add_u32 {s(sT1)}, {s(sT1)}, {s(sTB)}")
e(f"s_mov_b32 {s(sCNT)}, 0")
e("s_waitcnt vmcnt(0)")
e(f"v_or_b32 {v(T+13)}, {v(ONE)}, {v(ONE+1)}")
lab("L_NONCE")
nop(1)
e(f"v_readfirstlane_b32 {s(sNONCE)}, {v(T+13)}")
e(f"s_add_u32 {s(sCNT)}, {s(sCNT)}, 1")
e(f"s_cmp_ge_u32 {s(sCNT)}, {SPIN_MAX}")
e("s_cbranch_scc1 L_NONCE_D")
e(f"s_cmp_lg_u32 {s(sNONCE)}, 0")
e("s_cbranch_scc1 L_NONCE_D")
e(f"buffer_load_dword {v(T+13)}, {v(T+14)}, {s(sDBG,4)}, 0 offen sc1")
e("s_waitcnt vmcnt(0)")
e("s_branch L_NONCE")
lab("L_NONCE_D")
e(f"s_mov_b32 {s(sCNT)}, 0")
lab("L_ACKW")
e(f"ds_read_b32 {v(T+13)}, {v(T+11)}")
e(f"s_add_u32 {s(sCNT)}, {s(sCNT)}, 1")
e("s_waitcnt lgkmcnt(0)")
e(f"v_readfirstlane_b32 {s(sT3)}, {v(T+13)}")
e(f"s_cmp_ge_u32 {s(sCNT)}, {SPIN_MAX}")
e("s_cbranch_scc1 L_ACKD")
e(f"s_cmp_lt_u32 {s(sT3)}, 0x700")
e("s_cbranch_scc1 L_ACKW")
lab("L_ACKD")
e(f"s_or_b32 {s(sT3)}, {s(sNONCE)}, {s(sXCC)}")
for ct in range(4):
    e(f"v_mov_b32 {v(VT+4*ct+1)}, {s(sT3)}")
    e(f"v_mov_b32 {v(VT+4*ct+3)}, {s(sT3)}")
e(f"s_mov_b64 exec, {s(sMA[0],2)}")
for ct in range(4):
    e(f"buffer_store_dwordx4 {v(VT+4*ct,4)}, {v(T+6)}, {s(sWS,4)}, {s(sT1)} offen offset:{256*ct} sc1")
e("s_mov_b64 exec, -1")
stamp(3)
e("s_branch L_FREE")
lab("L_QT0")
c("---------------- wave 5: tagged q messages: 32 x 256 B of this batch; load (kq, half): lane -> cbk = 4*half + (l>>4)")
e(f"s_mov_b32 {s(sCNT)}, 0")
e(f"s_or_b32 {s(sT3)}, {s(sNONCE)}, {s(sXCC)}")
e(f"v_mov_b32 {v(QF+10)}, {s(sT3)}")
lab("L_QT")
if OPT["qs"]:
    e(f"s_sleep {OPT['qs']}")
issue_qt()
e("s_waitcnt vmcnt(0)")
lab("L_QT_CHK")
e(f"v_mov_b32 {v(QF+11)}, 0")
for k in range(8):
    e(f"v_xor_b32 {v(QF+12)}, {v(QF+10)}, {v(QT+4*k+1)}")
    e(f"v_xor_b32 {v(QF+13)}, {v(QF+10)}, {v(QT+4*k+3)}")
    e(f"v_or3_b32 {v(QF+11)}, {v(QF+11)}, {v(QF+12)}, {v(QF+13)}")
e(f"v_cmp_lt_u32 vcc, 15, {v(QF+11)}")
e(f"s_add_u32 {s(sCNT)}, {s(sCNT)}, 1")
e(f"s_cmp_ge_u32 {s(sCNT)}, {SPIN_MAX}")
e("s_cbranch_scc1 L_QT_DONE")
e("s_cbranch_vccnz L_QT")
lab("L_QT_DONE")
stamp(4)
k_fixup()
for j in range(4):
    d0 = QT + 2*j
    e(f"v_lshlrev_b32 {v(ACC)}, 16, {v(d0)}")
    e(f"v_and_b32 {v(ACC+1)}, 0xffff0000, {v(d0)}")
    for k in range(1, 4):
        e(f"v_lshlrev_b32 {v(ACC+2)}, 16, {v(d0+8*k)}")
        e(f"v_and_b32 {v(ACC+3)}, 0xffff0000, {v(d0+8*k)}")
        e(f"v_pk_add_f32 {v(ACC,2)}, {v(ACC,2)}, {v(ACC+2,2)}")
    e(f"v_cvt_pk_bf16_f32 {v(QF+j)}, {v(ACC)}, {v(ACC+1)}")
e(f"v_lshrrev_b32 {v(T+11)}, 5, {v(vL)}")
e(f"v_mul_u32_u24 {v(T+11)}, 272, {v(T+11)}")
e(f"v_and_b32 {v(T+12)}, 31, {v(vL)}")
e(f"v_lshl_add_u32 {v(T+11)}, {v(T+12)}, 3, {v(T+11)}")
e(f"ds_write_b64 {v(T+11)}, {v(QF,2)} offset:{L_Q}")
e(f"ds_write_b64 {v(T+11)}, {v(QF+2,2)} offset:{L_Q+544}")
e(f"v_cmp_ne_u32 vcc, 0, {v(QF+11)}")
e(f"s_cmp_eq_u64 vcc, 0")
e(f"s_cselect_b32 {s(sFAST)}, 1, 0")
e(f"v_mov_b32 {v(T+12)}, {s(sFAST)}")
e(f"v_mov_b32 {v(T+13)}, {L_Q + 256}")
e(f"ds_write_b32 {v(T+13)}, {v(T+12)}")
e(f"s_cmp_lg_u32 {s(sI)}, 0")
e("s_cbranch_scc1 L_NOLEAD")
c("group leader announces 'group g has pre-filled' to the other groups")
e(f"s_lshl_b32 {s(sT3)}, {s(sG)}, 2")
e(f"v_mov_b32 {v(T+12)}, 1")
e(f"v_mov_b32 {v(T+13)}, {s(sT3)}")
e("s_mov_b64 exec, 1")
e(f"buffer_store_dword {v(T+12)}, {v(T+13)}, {s(sDBG,4)}, 0 offen offset:128 sc1")
e("s_mov_b64 exec, -1")
lab("L_NOLEAD")
if OPT["touch"]:
    e(f"s_mul_i32 {s(sT0)}, {s(sI)}, {PF}")
    e(f"s_add_u32 {s(sT0)}, {s(sT0)}, {s(sGB)}")
    e(f"v_lshlrev_b32 {v(T+12)}, 7, {v(vL)}")
    e(f"buffer_load_dword {v(WB)}, {v(T+12)}, {s(sWS,4)}, {s(sT0)} offen sc1")
    e(f"s_add_u32 {s(sT0)}, {s(sT0)}, 8192")
    e("s_mov_b64 exec, 3")
    e(f"buffer_load_dword {v(WB+1)}, {v(T+12)}, {s(sWS,4)}, {s(sT0)} offen sc1")
    e("s_mov_b64 exec, -1")
e("s_waitcnt lgkmcnt(0)")
lab("L_QBAR0")
stamp(31)
e("s_barrier")
e(f"v_mov_b32 {v(T+13)}, {L_Q + 256}")
e(f"ds_read_b32 {v(T+12)}, {v(T+13)}")
e("s_waitcnt lgkmcnt(0)")
e(f"v_readfirstlane_b32 {s(sFAST)}, {v(T+12)}")
if OPT["diag"] == 3:
    e(f"s_mov_b32 {s(sFAST)}, 0")
stamp(2)
if 4 <= OPT["diag"] <= 7:
    e(f"s_memrealtime {s(sTM,2)}")
    e("s_waitcnt lgkmcnt(0)")
    e(f"s_mov_b32 {s(sD1)}, {s(sTM)}")

lab("L_LOOP")
dpoint(3)
c("---------------- P2: attention over this wave's 32 keys")
e(f"v_add_u32 {v(T)}, {s(sROTH)}, {v(aQR)}")
e(f"v_subrev_u32 {v(T+1)}, {s(sROTH)}, {v(aQR)}")
e(f"ds_read_b128 {v(QF,4)}, {v(T)}")
e(f"ds_read_b128 {v(QF+4,4)}, {v(T)} offset:16")
e(f"ds_read_b128 {v(QF+8,4)}, {v(T+1)} offset:128")
e(f"ds_read_b128 {v(QF+12,4)}, {v(T+1)} offset:144")
ST = ACC
for sl in range(4):
    e(f"s_waitcnt lgkmcnt({3-sl})")
    for t in range(2):
        mfma(ST+4*t, KF + 4*(t*4+sl), QF + 4*sl, None if sl == 0 else ST+4*t)
stamp(16)
nop(8)
e(f"v_max3_f32 {v(T)}, {v(ST)}, {v(ST+1)}, {v(ST+2)}")
e(f"v_max3_f32 {v(T+1)}, {v(ST+3)}, {v(ST+4)}, {v(ST+5)}")
e(f"v_max3_f32 {v(T)}, {v(T)}, {v(ST+6)}, {v(ST+7)}")
e(f"v_max_f32 {v(T)}, {v(T)}, {v(T+1)}")
e(f"v_mov_b32 {v(T+1)}, {v(T)}")
nop(2)
e(f"v_permlane16_swap_b32 {v(T)}, {v(T+1)}")
nop(1)
e(f"v_max_f32 {v(T)}, {v(T)}, {v(T+1)}")
e(f"v_mov_b32 {v(T+1)}, {v(T)}")
nop(2)
e(f"v_permlane32_swap_b32 {v(T)}, {v(T+1)}")
nop(1)
e(f"v_max_f32 {v(T)}, {v(T)}, {v(T+1)}")
e(f"v_mul_f32 {v(vMW)}, {s(sC)}, {v(T)}")
stamp(17)
e(f"ds_write_b32 {v(aMXW)}, {v(vMW)}")
for r in range(8):
    e(f"v_fma_f32 {v(ST+r)}, {v(ST+r)}, {s(sC)}, -{v(vMW)}")
for r in range(8):
    e(f"v_exp_f32 {v(ST+r)}, {v(ST+r)}")
nop(1)
for a in range(4):
    e(f"s_mov_b64 exec, {s(sMA[a],2)}")
    for j in range(4):
        e(f"v_cvt_pk_bf16_f32 {v(PB+4*a+j)}, {v(ST+2*j)}, {v(ST+2*j+1)}")
e("s_mov_b64 exec, -1")
e(f"s_cmp_lg_u32 {s(sLAYER)}, 0")
e("s_cbranch_scc1 L_PV")
c("first layer only: V has to land, then transpose it in registers")
e("s_waitcnt vmcnt(4)")
stamp(14)
for p in range(4):
    for cc in range(4):
        a = VR + 4*(2*p) + cc; b = VR + 4*(2*p+1) + cc
        e(f"v_perm_b32 {v(VT+4*(2*cc)+p)}, {v(b)}, {v(a)}, {s(sPLO)}")
        e(f"v_perm_b32 {v(VT+4*(2*cc+1)+p)}, {v(b)}, {v(a)}, {s(sPHI)}")
e("s_branch L_PV2")
lab("L_PV")
e("s_waitcnt vmcnt(0)")
lab("L_PV2")
stamp(18)
nop(2)
OT = ACC + 8
LT = ACC
for a in range(4):
    for u in range(2):
        mfma(OT+4*u, VT + 4*(4*u+a), PB + 4*a, None if a == 0 else OT+4*u)
mfma(LT, ONE, PB, None)
stamp(19)
nop(6)
e(f"ds_write_b128 {v(aOW)}, {v(OT,4)}")
e(f"ds_write_b128 {v(aOW)}, {v(OT+4,4)} offset:1088")
e("s_mov_b64 exec, 15")
e(f"ds_write_b32 {v(aMXW)}, {v(LT)} offset:128")
e("s_mov_b64 exec, -1")
stamp(21)
e("s_waitcnt vmcnt(2) lgkmcnt(0)")
e("s_barrier")
stamp(5)
dpoint(4)
e(f"s_cmp_gt_u32 {s(sW)}, 4")
e("s_cbranch_scc1 L_P2_B2")
e(f"ds_read_b128 {v(T,4)}, {v(aMX)}")
e(f"ds_read_b128 {v(T+4,4)}, {v(aMX)} offset:16")
e(f"s_cmp_eq_u32 {s(sW)}, 4")
e("s_cbranch_scc1 L_P2_B")
for k in range(4):
    e(f"ds_read2st64_b64 {v(VR+4*k,4)}, {v(aOR)} offset0:{10*k} offset1:{10*k+5}")
e("s_waitcnt lgkmcnt(4)")
def factors():
    e(f"v_max3_f32 {v(T+8)}, {v(T)}, {v(T+1)}, {v(T+2)}")
    e(f"v_max3_f32 {v(T+9)}, {v(T+3)}, {v(T+4)}, {v(T+5)}")
    e(f"v_max3_f32 {v(T+8)}, {v(T+8)}, {v(T+6)}, {v(T+7)}")
    e(f"v_max_f32 {v(T+8)}, {v(T+8)}, {v(T+9)}")
    for k in range(8):
        e(f"v_sub_f32 {v(T+k)}, {v(T+k)}, {v(T+8)}")
    for k in range(8):
        e(f"v_exp_f32 {v(T+k)}, {v(T+k)}")
factors()
e("s_waitcnt lgkmcnt(0)")
e(f"v_mul_f32 {v(VR)}, {v(VR)}, {v(T)}")
e(f"v_mul_f32 {v(VR+1)}, {v(VR+1)}, {v(T)}")
for k in range(1, 8):
    e(f"v_fmac_f32 {v(VR)}, {v(VR+2*k)}, {v(T+k)}")
    e(f"v_fmac_f32 {v(VR+1)}, {v(VR+2*k+1)}, {v(T+k)}")
e(f"v_cvt_pk_bf16_f32 {v(T+9)}, {v(VR)}, {v(VR+1)}")
e(f"v_min_u32 {v(T+9)}, -2, {v(T+9)}")
store_intra("buffer_store_dword", v(T+9), aOST, sLB, 0)
e(f"s_cmp_lg_u32 {s(sLAYER)}, 0")
e("s_cbranch_scc1 L_P3")
c("first layer only: wo and wq fragments out of LDS")
e(f"v_lshrrev_b32 {v(T+4)}, 5, {v(vL)}")
e(f"v_lshlrev_b32 {v(T+4)}, 12, {v(T+4)}")
e(f"v_bfe_u32 {v(T+5)}, {v(vL)}, 4, 1")
e(f"v_lshl_add_u32 {v(T+4)}, {v(T+5)}, 8, {v(T+4)}")
e(f"v_bfe_u32 {v(T+5)}, {v(vL)}, 2, 2")
e(f"v_lshl_add_u32 {v(T+4)}, {v(T+5)}, 10, {v(T+4)}")
e(f"v_and_b32 {v(T+5)}, 3, {v(vL)}")
e(f"v_lshlrev_b32 {v(T+5)}, 3, {v(T+5)}")
e(f"s_lshl_b32 {s(sT3)}, {s(sW)}, 5")
e(f"v_add_u32 {v(T+5)}, {s(sT3)}, {v(T+5)}")
e(f"v_add_u32 {v(T+4)}, {v(T+4)}, {v(T+5)}")
for ks in range(4):
    o = L_WO + (64*(ks & 1) + 4*(ks >> 1)) * 128
    e(f"ds_read_b64_tr_b16 {v(WB+4*ks,2)}, {v(T+4)} offset:{o}")
    e(f"ds_read_b64_tr_b16 {v(WB+4*ks+2,2)}, {v(T+4)} offset:{o+128}")
e(f"v_and_b32 {v(BIA+1)}, 0xffff0000, {v(BIA)}")
e(f"v_lshlrev_b32 {v(BIA)}, 16, {v(BIA)}")
e(f"v_and_b32 {v(RES+1)}, 0xffff0000, {v(RES)}")
e(f"v_lshlrev_b32 {v(RES)}, 16, {v(RES)}")
e("s_branch L_P3")
lab("L_P2_B")
e(f"ds_read_b128 {v(VR,4)}, {v(aMX)} offset:128")
e(f"ds_read_b128 {v(VR+4,4)}, {v(aMX)} offset:144")
e("s_waitcnt lgkmcnt(2)")
factors()
e("s_waitcnt lgkmcnt(0)")
e(f"v_mul_f32 {v(T+9)}, {v(VR)}, {v(T)}")
for k in range(1, 8):
    e(f"v_fmac_f32 {v(T+9)}, {v(VR+k)}, {v(T+k)}")
e("s_mov_b64 exec, 15")
store_intra("buffer_store_dwordx2", v(T+8,2), aOST, sLB, 0)
e("s_mov_b64 exec, -1")
lab("L_P2_B2")

lab("L_P3")
c("---------------- P3: split-softmax combine folded into o @ wo")
stamp(6)
e(f"s_lshl_b32 {s(sT0)}, {s(sB)}, 13")
e(f"s_lshl_b32 {s(sT1)}, {s(sW)}, 10")
e(f"s_add_u32 {s(sT0)}, {s(sT0)}, {s(sT1)}")
e(f"s_add_u32 {s(sT0)}, {s(sT0)}, {s(sLB)}")
e(f"s_add_u32 {s(sT0)}, {s(sT0)}, {OB_OFF}")
e(f"s_cmp_eq_u32 {s(sW)}, 7")
e("s_cbranch_scc1 L_P3_W7")
poll2(lambda R: e(f"buffer_load_dwordx4 {v(R,4)}, {v(aL16)}, {s(sWS,4)}, {s(sT0)} offen sc1"), QF, QF+4, 4, 1, T+4)
stamp(22)
e(f"ds_write_b128 {v(aAFW)}, {v(QF,4)}")
e("s_branch L_P3_BAR")
lab("L_P3_W7")
e(f"s_lshl_b32 {s(sT1)}, {s(sB)}, 8")
e(f"s_add_u32 {s(sT1)}, {s(sT1)}, {s(sLB)}")
e(f"s_add_u32 {s(sT1)}, {s(sT1)}, {ML_OFF}")
e(f"v_and_b32 {v(T+9)}, 0xff, {v(aL16)}")
def issue_oml(R):
    e(f"buffer_load_dwordx4 {v(R,4)}, {v(aL16)}, {s(sWS,4)}, {s(sT0)} offen sc1")
    e(f"buffer_load_dwordx4 {v(R+4,4)}, {v(T+9)}, {s(sWS,4)}, {s(sT1)} offen sc1")
poll2(issue_oml, QF, QF+8, 8, 2, T+8)
stamp(22)
e(f"ds_write_b128 {v(aAFW)}, {v(QF,4)}")
e(f"ds_write_b128 {v(T+9)}, {v(QF+4,4)} offset:{L_ML}")
lab("L_P3_BAR")
stamp(23)
e("s_waitcnt lgkmcnt(0)")
e("s_barrier")
stamp(24)
dpoint(5)
e(f"s_cmp_ge_u32 {s(sW)}, 4")
e("s_cbranch_scc1 L_P5")
e(f"ds_read2_b64 {v(T,4)}, {v(aMLR)} offset0:0 offset1:4")
for ks in range(4):
    for sh in range(2):
        e(f"ds_read_b128 {v(VR+4*(sh*4+ks),4)}, {v(aAFR)} offset:{sh*16*272 + ks*64}")
e("s_waitcnt lgkmcnt(8)")
e(f"v_max_f32 {v(T+4)}, {v(T)}, {v(T+2)}")
nop(2)
e(f"v_max_f32_dpp {v(T+4)}, {v(T+4)}, {v(T+4)} quad_perm:[1,0,3,2] row_mask:0xf bank_mask:0xf")
nop(2)
e(f"v_max_f32_dpp {v(T+4)}, {v(T+4)}, {v(T+4)} quad_perm:[2,3,0,1] row_mask:0xf bank_mask:0xf")
e(f"v_sub_f32 {v(T)}, {v(T)}, {v(T+4)}")
e(f"v_sub_f32 {v(T+2)}, {v(T+2)}, {v(T+4)}")
e(f"v_exp_f32 {v(T)}, {v(T)}")
e(f"v_exp_f32 {v(T+2)}, {v(T+2)}")
for ks in range(4):
    e(f"s_waitcnt lgkmcnt({6-2*ks})")
    for sh in range(2):
        mfma(ACC+4*sh, WB + 4*ks, VR + 4*(sh*4+ks), None if ks == 0 else ACC+4*sh)
e(f"v_mul_f32 {v(T+4)}, {v(T)}, {v(T+1)}")
e(f"v_fmac_f32 {v(T+4)}, {v(T+2)}, {v(T+3)}")
nop(2)
e(f"v_add_f32_dpp {v(T+4)}, {v(T+4)}, {v(T+4)} quad_perm:[1,0,3,2] row_mask:0xf bank_mask:0xf")
nop(2)
e(f"v_add_f32_dpp {v(T+4)}, {v(T+4)}, {v(T+4)} quad_perm:[2,3,0,1] row_mask:0xf bank_mask:0xf")
e(f"v_rcp_f32 {v(T+4)}, {v(T+4)}")
nop(1)
e(f"v_mul_f32 {v(T)}, {v(T)}, {v(T+4)}")
e(f"v_mul_f32 {v(T+2)}, {v(T+2)}, {v(T+4)}")
for r in range(4):
    e(f"v_mul_f32 {v(ACC+r)}, {v(ACC+r)}, {v(T)}")
for r in range(4):
    e(f"v_fmac_f32 {v(ACC+r)}, {v(ACC+4+r)}, {v(T+2)}")
for r in range(4):
    e(f"v_add_f32_dpp {v(ACC+r)}, {v(ACC+r)}, {v(ACC+r)} quad_perm:[1,0,3,2] row_mask:0xf bank_mask:0xf")
for r in range(4):
    e(f"v_add_f32_dpp {v(ACC+r)}, {v(ACC+r)}, {v(ACC+r)} quad_perm:[2,3,0,1] row_mask:0xf bank_mask:0xf")
set_exec(0x11111111, 0x11111111)
e(f"buffer_store_dwordx4 {v(ACC,4)}, {v(aP3S)}, {s(sWS,4)}, {s(sLB)} offen sc1")
e("s_mov_b64 exec, -1")
stamp(7)
e(f"s_cmp_lg_u32 {s(sW)}, 3")
e("s_cbranch_scc1 L_G5")
c("---------------- P4 (wave 3): x1 slice = x + sum over 32 heads")
e(f"v_lshlrev_b32 {v(T+6)}, 3, {v(vL)}")
e(f"s_cmp_lg_u32 {s(sLAYER)}, 0")
e("s_cbranch_scc1 L_P4_L1")
e(f"v_and_b32 {v(T+4)}, 7, {v(vL)}")
e(f"v_lshlrev_b32 {v(T+4)}, 2, {v(T+4)}")
e(f"s_mov_b32 {s(sCNT)}, 0")
lab("L_GFLAG")
e(f"buffer_load_dword {v(T+5)}, {v(T+4)}, {s(sDBG,4)}, 0 offen offset:128 sc1")
e("s_waitcnt vmcnt(0)")
e(f"v_cmp_eq_u32 vcc, 0, {v(T+5)}")
e("s_cbranch_vccz L_P4_GO")
e(f"s_add_u32 {s(sCNT)}, {s(sCNT)}, 1")
e(f"s_cmp_lt_u32 {s(sCNT)}, {SPIN_MAX}")
e("s_cbranch_scc1 L_GFLAG")
e("s_branch L_P4_GO")
lab("L_P4_L1")
e(f"ds_read_b64 {v(RES,2)}, {v(T+6)} offset:{L_RES}")
if OPT["d4"]:
    e(f"s_sleep {OPT['d4']}")
lab("L_P4_GO")
reduce_slice(8, X1P_OFF, GSZ, False)
set_exec(0xffff, 0xffff)
store_intra("buffer_store_dword", v(T), aXS, sLB, X1_OFF)
e("s_mov_b64 exec, -1")
e(f"ds_write_b64 {v(T+6)}, {v(RES,2)} offset:{L_RES}")
stamp(8)
lab("L_G5")
if OPT["xb"]: e("s_barrier")
e(f"s_cmp_lg_u32 {s(sLAYER)}, 0")
e("s_cbranch_scc1 L_G5b")
c("first layer only: waves 0-3 publish the column sums of their wq tile and fetch those of w1")
e(f"v_and_b32 {v(T+5)}, 3, {v(vL)}")
e(f"v_lshlrev_b32 {v(T+5)}, 3, {v(T+5)}")
e(f"s_lshl_b32 {s(sT3)}, {s(sW)}, 5")
e(f"v_add_u32 {v(T+5)}, {s(sT3)}, {v(T+5)}")
e(f"v_lshl_add_u32 {v(T+4)}, {v(TRR)}, 7, {v(T+5)}")
for ks in range(4):
    e(f"ds_read_b64_tr_b16 {v(WA+4*ks,2)}, {v(T+4)} offset:{L_WQ + 4096*ks}")
    e(f"ds_read_b64_tr_b16 {v(WA+4*ks+2,2)}, {v(T+4)} offset:{L_WQ + 4096*ks + 512}")
e(f"s_add_u32 {s(sT0)}, {s(sGB)}, {QP_OFF}")
colsum_store(sT0)
e(f"s_add_u32 {s(sT0)}, {s(sLB)}, {HP_OFF}")
e(f"s_lshl_b32 {s(sT3)}, {s(sW)}, 10")
e(f"s_sub_u32 {s(sT3)}, 4096, {s(sT3)}")
e(f"v_add_u32 {v(T+3)}, {s(sT3)}, {v(aSG)}")
colsum_fetch(sT0, 5120, T+3)
lab("L_G5b")
e("s_waitcnt lgkmcnt(0)")
e("s_branch L_BAR5")
lab("L_P5")
e(f"s_cmp_lg_u32 {s(sLAYER)}, 0")
e("s_cbranch_scc1 L_P5b")
c("first layer only: w1 (waves 4,5) / w2 (waves 6,7) fragments: rows of 64 B, ct = w&1")
e(f"v_and_b32 {v(T+5)}, 3, {v(vL)}")
e(f"v_lshlrev_b32 {v(T+5)}, 3, {v(T+5)}")
e(f"v_lshl_add_u32 {v(T+4)}, {v(TRR)}, 6, {v(T+5)}")
e(f"s_and_b32 {s(sT3)}, {s(sW)}, 1")
e(f"s_lshl_b32 {s(sT3)}, {s(sT3)}, 5")
e(f"s_and_b32 {s(sT0)}, {s(sW)}, 2")
e(f"s_lshl_b32 {s(sT0)}, {s(sT0)}, 12")
e(f"s_add_u32 {s(sT3)}, {s(sT3)}, {s(sT0)}")
e(f"v_add_u32 {v(T+4)}, {s(sT3)}, {v(T+4)}")
for ks in range(4):
    e(f"ds_read_b64_tr_b16 {v(WA+4*ks,2)}, {v(T+4)} offset:{L_W1 + 2048*ks}")
    e(f"ds_read_b64_tr_b16 {v(WA+4*ks+2,2)}, {v(T+4)} offset:{L_W1 + 2048*ks + 256}")
e(f"v_and_b32 {v(BIA+1)}, 0xffff0000, {v(BIA)}")
e(f"v_lshlrev_b32 {v(BIA)}, 16, {v(BIA)}")
e(f"s_cmp_ge_u32 {s(sW)}, 6")
e("s_cbranch_scc1 L_P5b")
e(f"s_cmp_ge_u32 {s(sI)}, 28")
e("s_cbranch_scc1 L_P5b")
colsum_store(sLB)

lab("L_P5b")
if OPT["xb"]: e("s_barrier")
c("---------------- waves 4-7: x1 image -> LDS")
e(f"s_lshl_b32 {s(sT0)}, {s(sWV)}, 10")
e(f"s_add_u32 {s(sT0)}, {s(sT0)}, {s(sLB)}")
poll_x(sT0)
stamp(27)
lab("L_BAR5")
e("s_barrier")
stamp(9)
dpoint(6)
e(f"s_cmp_lt_u32 {s(sW)}, 4")
e("s_cbranch_scc1 L_HSUM")
e(f"s_cmp_ge_u32 {s(sW)}, 6")
e("s_cbranch_scc1 L_CSQ")
e(f"s_cmp_ge_u32 {s(sI)}, 28")
e("s_cbranch_scc1 L_CSQ")
c("---------------- P5 (waves 4,5): raw x1 @ w1 partial of this tile")
gemv_mma_store(sLB)
stamp(10)
lab("L_CSQ")
e(f"s_cmp_lg_u32 {s(sLAYER)}, 0")
e("s_cbranch_scc1 L_BARH")
c("first layer only: waves 4-7 fetch the column sums of wq")
e(f"s_add_u32 {s(sT0)}, {s(sGB)}, {QP_OFF}")
e(f"s_lshl_b32 {s(sT3)}, {s(sB)}, 11")
e(f"s_sub_u32 {s(sT3)}, 8192, {s(sT3)}")
e(f"v_add_u32 {v(T+3)}, {s(sT3)}, {v(aSG)}")
colsum_fetch(sT0, 10240, T+3)
e("s_branch L_BARH")
lab("L_HSUM")
c("---------------- waves 0-3: h = gelu(LN(LN(x1)) @ w1 + b1) for 128 units x batch w")
e(f"s_add_u32 {s(sT0)}, {s(sLB)}, {HP_OFF}")
sum_partials(sT0, 5120, True)
stamp(28)
K0 = -2.0 * math.log2(math.e) * math.sqrt(2.0 / math.pi)
for r in range(2):
    e(f"v_add_f32 {v(T+r)}, {v(T+r)}, {v(BIA+r)}")
for r in range(2):
    e(f"v_mul_f32 {v(T+2+r)}, {v(T+r)}, {v(T+r)}")
for r in range(2):
    e(f"v_mov_b32 {v(T+4+r)}, {f32(K0)}")
    e(f"v_fmac_f32 {v(T+4+r)}, {f32(K0*0.044715)}, {v(T+2+r)}")
for r in range(2):
    e(f"v_mul_f32 {v(T+4+r)}, {v(T+4+r)}, {v(T+r)}")
for r in range(2):
    e(f"v_exp_f32 {v(T+4+r)}, {v(T+4+r)}")
nop(1)
for r in range(2):
    e(f"v_add_f32 {v(T+4+r)}, 1.0, {v(T+4+r)}")
for r in range(2):
    e(f"v_rcp_f32 {v(T+4+r)}, {v(T+4+r)}")
nop(1)
for r in range(2):
    e(f"v_mul_f32 {v(T+r)}, {v(T+r)}, {v(T+4+r)}")
e(f"v_cvt_pk_bf16_f32 {v(T)}, {v(T)}, {v(T+1)}")
e(f"ds_write_b32 {v(aSW)}, {v(T)}")
e("s_waitcnt lgkmcnt(0)")
lab("L_BARH")
e("s_barrier")
stamp(20)
dpoint(7)
e(f"s_cmp_lt_u32 {s(sW)}, 6")
e("s_cbranch_scc1 L_NEXT")
c("---------------- P6 (waves 6,7): h[128 units] @ w2 tile -> partial x2")
for ks in range(4):
    e(f"ds_read_b128 {v(VR+4*ks,4)}, {v(aHR)} offset:{64*ks}")
e("s_waitcnt lgkmcnt(2)")
mfma(ACC, WA+4, VR+4, None)
e("s_waitcnt lgkmcnt(1)")
mfma(ACC, WA+8, VR+8, ACC)
e("s_waitcnt lgkmcnt(0)")
mfma(ACC, WA+12, VR+12, ACC)
e(f"s_cmp_lg_u32 {s(sKH)}, 0")
e("s_cbranch_scc1 L_P6_S")
mfma(ACC, WA, VR, ACC)
lab("L_P6_S")
nop(8)
e(f"s_mov_b64 exec, {s(sMA[0],2)}")
e(f"buffer_store_dwordx4 {v(ACC,4)}, {v(aPS)}, {s(sWS,4)}, {s(sLB)} offen sc1")
e("s_mov_b64 exec, -1")
stamp(11)
dpoint(8)
e(f"s_cmp_lg_u32 {s(sW)}, 6")
e("s_cbranch_scc1 L_NEXT")
c("---------------- P7 (wave 6): x2 slice = x1 + b2 + sum over 16 partials")
e(f"v_lshlrev_b32 {v(T+6)}, 3, {v(vL)}")
e(f"ds_read_b64 {v(RES,2)}, {v(T+6)} offset:{L_RES}")
e(f"s_cmp_eq_u32 {s(sLAYER)}, 0")
e("s_cbranch_scc1 L_P7_GO")
e(f"s_cmp_lg_u32 {s(sS)}, {s(sG)}")
e("s_cbranch_scc1 L_END")
lab("L_P7_GO")
if OPT["d7"]:
    e(f"s_sleep {OPT['d7']}")
reduce_slice(4, X2P_OFF, 2*GSZ, True)
set_exec(0xffff, 0xffff)
e(f"s_cmp_eq_u32 {s(sLAYER)}, 0")
e("s_cbranch_scc1 L_P7_MID")
if OPT["diag"] == 1:
    e(f"s_cmp_lg_u32 {s(sFAST)}, 0")
    e("s_cbranch_scc1 L_DIAG")
    for _ in range(16): e("s_sleep 127")
    lab("L_DIAG")
if OPT["diag"] in (5, 6, 7, 8):
    dpoint(9)
    e(f"s_memrealtime {s(sTM,2)}")
    e("s_waitcnt lgkmcnt(0)")
    if OPT["diag"] == 5: e(f"s_sub_u32 {s(sD3)}, {s(sD1)}, {s(sD0)}")
    if OPT["diag"] in (6, 8): e(f"s_sub_u32 {s(sD3)}, {s(sD2)}, {s(sD1)}")
    if OPT["diag"] == 7: e(f"s_sub_u32 {s(sD3)}, {s(sTM)}, {s(sD2)}")
    e(f"s_min_u32 {s(sD3)}, {s(sD3)}, 10000")
    e(f"s_mov_b32 {s(sD0)}, {s(sTM)}")
    lab("L_DG")
    e(f"s_memrealtime {s(sTM,2)}")
    e("s_waitcnt lgkmcnt(0)")
    e(f"s_sub_u32 {s(sD1)}, {s(sTM)}, {s(sD0)}")
    e(f"s_cmp_lt_u32 {s(sD1)}, {s(sD3)}")
    e("s_cbranch_scc1 L_DG")
if OPT["diag"] == 2:
    for _ in range(4): e("s_sleep 127")
e(f"buffer_store_dword {v(T)}, {v(aXN)}, {s(sOUT,4)}, 0 offen")
e("s_cmp_lg_u32 s2, 0")
e("s_cbranch_scc1 L_NOCLEAN")
c("WG 0: every workgroup is past the nonce / flag words by now; leave d_debug zero again")
e("s_mov_b64 exec, -1")
e(f"v_mov_b32 {v(T+1)}, 0")
if OPT["diag"] == 4:
    e(f"s_memrealtime {s(sTM,2)}")
    e("s_waitcnt lgkmcnt(0)")
    e(f"s_sub_u32 {s(sD3)}, {s(sTM)}, {s(sD0)}")
    e(f"s_sub_u32 {s(sD1)}, {s(sD1)}, {s(sD0)}")
    e(f"s_sub_u32 {s(sD2)}, {s(sD2)}, {s(sD0)}")
    e(f"v_writelane_b32 {v(T+1)}, {s(sD1)}, 2")
    e(f"v_writelane_b32 {v(T+1)}, {s(sD2)}, 3")
    e(f"v_writelane_b32 {v(T+1)}, {s(sD3)}, 4")
e(f"buffer_store_dword {v(T+1)}, {v(aL4)}, {s(sDBG,4)}, 0 offen sc1")
lab("L_NOCLEAN")
stamp(12)
e("s_branch L_END")
lab("L_P7_MID")
dpoint(1)
if 4 <= OPT["diag"] <= 7:
    e(f"s_memrealtime {s(sTM,2)}")
    e("s_waitcnt lgkmcnt(0)")
    e(f"s_mov_b32 {s(sD2)}, {s(sTM)}")
e(f"s_add_u32 {s(sT0)}, {s(sLB)}, {X2_OFF}")
store_intra("buffer_store_dword", v(T), aXS, sT0, 0)
e("s_mov_b64 exec, -1")
e(f"ds_write_b64 {v(T+6)}, {v(RES,2)} offset:{L_RES}")
stamp(12)
lab("L_NEXT")
e(f"s_cmp_lg_u32 {s(sLAYER)}, 0")
e("s_cbranch_scc1 L_END")
if OPT["xb"]: e("s_barrier")
e(f"s_cmp_ge_u32 {s(sW)}, 4")
e("s_cbranch_scc1 L_BAR1")
c("---------------- waves 0-3: x2 image -> LDS")
e(f"s_lshl_b32 {s(sT0)}, {s(sWV)}, 10")
e(f"s_add_u32 {s(sT0)}, {s(sT0)}, {s(sLB)}")
e(f"s_add_u32 {s(sT0)}, {s(sT0)}, {X2_OFF}")
poll_x(sT0)
stamp(29)
lab("L_BAR1")
e(f"s_mov_b32 {s(sLAYER)}, 1")
e(f"s_add_u32 {s(sLB)}, {s(sLB)}, {LSZ}")
e(f"s_mov_b32 {s(sLO)}, {LSZ}")
if OPT["stamps"]:
    e(f"v_mov_b32 {v(vSTAMP0)}, {v(vSTAMP)}")
    e(f"v_mov_b32 {v(vSTAMP)}, 0")
e("s_waitcnt lgkmcnt(0)")
e("s_barrier")
stamp(1)
dpoint(2)
e(f"s_add_u32 {s(sT0)}, {s(sGB)}, {QP_OFF}")
e(f"s_cmp_ge_u32 {s(sW)}, 4")
e("s_cbranch_scc1 L_QSUM")
c("---------------- P1 (waves 0-3): raw x2 @ wq partial of this tile")
gemv_mma_store(sT0)
stamp(3)
e("s_branch L_QBAR")
lab("L_QSUM")
c("---------------- waves 4-7: q = LN(x2) @ wq for head w-4 of this batch")
sum_partials(sT0, 10240, False)
stamp(4)
e(f"v_cvt_pk_bf16_f32 {v(T)}, {v(T)}, {v(T+1)}")
e(f"ds_write_b32 {v(aSW)}, {v(T)}")
e("s_waitcnt lgkmcnt(0)")
lab("L_QBAR")
e("s_barrier")
stamp(2)
e("s_branch L_LOOP")
lab("L_END")
if OPT["stamps"]:
    e("s_mov_b64 exec, -1")
    e("s_cmp_ge_u32 s2, 256")
    e("s_cbranch_scc1 L_END2")
    stamp(13)
    set_exec(0xffffffff, 0)
    e(f"buffer_store_dword {v(vSTAMP0)}, {v(aL4)}, {s(sWS,4)}, {s(sSTB)} offen")
    e(f"buffer_store_dword {v(vSTAMP)}, {v(aL4)}, {s(sWS,4)}, {s(sSTB)} offen offset:128")
    lab("L_END2")
e("s_endpgm")
out.append(f".fill (16384 - (. - {KNAME})) / 4, 4, 0xbf800000")

nv = (NVGPR + 7) // 8 * 8
out.append('.section .rodata,"a"')
out.append(".p2align 6")
out.append(f".amdhsa_kernel {KNAME}")
out.append(f"  .amdhsa_next_free_vgpr {nv}")
out.append(f"  .amdhsa_next_free_sgpr 102")
out.append(f"  .amdhsa_accum_offset {nv}")
out.append("  .amdhsa_group_segment_fixed_size 0")
out.append("  .amdhsa_kernarg_size 104")
out.append("  .amdhsa_user_sgpr_count 2")
out.append("  .amdhsa_user_sgpr_kernarg_segment_ptr 1")
out.append("  .amdhsa_system_sgpr_workgroup_id_x 1")
out.append(".end_amdhsa_kernel")
open(sys.argv[1], "w").write("\n".join(out) + "\n")
print("vgprs", NVGPR, "sgprs", S.n, "lds", LDS_BYTES, "lines", len(out))
```

```python
import sys, struct, math

NAME = "interleave_layers__sliding_block_cached__mixer_channel_mlp__decode"
KNAME = NAME + "_kernel"

OPT = dict(stamps=0, D=4, touch=1, d4=7, d7=7, diag=0, cpf=1, K0=4, ns=12, qs=0, DV=5, DW=8, nopf=0, pp=0, gap=2, xb=0, da=0, db=0, w12=1, qpos=9, late=0, tlbw=0)
for a in sys.argv[2:]:
    k, v_ = a.split("=")
    OPT[k] = int(v_)

def f32(x):
    return "0x%08x" % struct.unpack("<I", struct.pack("<f", x))[0]

X1_OFF = 0x0000
X2_OFF = 0x1000
ML_OFF = 0x2000
HP_OFF = 0x3000
OB_OFF = 0x8000
X1P_OFF = 0x10000
X2P_OFF = 0x14000
LSZ = 0x16000
QP_OFF = 2 * LSZ
GSZ = QP_OFF + 0xA000
PF = GSZ // 32
TAG_BASE = 8 * GSZ
STAMP_BASE = 0x400000
assert TAG_BASE + 8 * 0x10000 <= STAMP_BASE and PF == 6912

L_WQ = 0
L_WO = 16384
L_W1 = 32768
L_W2 = 40960
L_G1 = 49152
L_G5 = 53248
L_CNT = L_G5
L_H = 57344
L_Q = L_H + 1088
L_MX = L_Q + 1088
L_LS = L_MX + 128
L_ML = L_LS + 128
L_RES = L_ML + 256
L_X0 = L_RES + 1024
L_XI = L_X0
assert L_X0 % 16 == 0 and L_X0 + 4096 <= 65536, L_X0
L_OB = 65536
OSTR = 2560
L_AF = L_OB + 8 * OSTR
LDS_BYTES = L_AF + 32 * 272

SPIN_MAX = 0x20000

class Regs:
    def __init__(self, start, limit, p):
        self.n = start; self.limit = limit; self.p = p
    def alloc(self, cnt=1, align=1):
        self.n = (self.n + align - 1) // align * align
        r = self.n; self.n += cnt
        assert self.n <= self.limit, (self.p, self.n)
        return r

S = Regs(4, 100, "s")
V = Regs(1, 256, "v")
def s(r, n=1): return f"s{r}" if n == 1 else f"s[{r}:{r+n-1}]"
def v(r, n=1): return f"v{r}" if n == 1 else f"v[{r}:{r+n-1}]"

sX, sK, sV, sWQ, sWO, sW1, sB1, sW2, sB2, sOUT, sDBG, sWS = [S.alloc(4, 4) for _ in range(12)]
sW = S.alloc(); sG = S.alloc(); sI = S.alloc(); sB = S.alloc(); sS = S.alloc()
sGB = S.alloc()
sLB = S.alloc()
sLO = S.alloc()
sLAYER = S.alloc(); sFAST = S.alloc(); sNONCE = S.alloc(); sCNT = S.alloc()
sT0 = S.alloc(); sT1 = S.alloc(); sT2 = S.alloc(); sT3 = S.alloc()
sROT = S.alloc(); sROTH = S.alloc(); sKVB = S.alloc()
sC = S.alloc(); sPLO = S.alloc(); sPHI = S.alloc(); sXCC = S.alloc(); sTB = S.alloc()
sKQ = S.alloc(); sWV = S.alloc(); sKH = S.alloc()
sMA = [S.alloc(2, 2) for _ in range(4)]
sM5 = S.alloc(2, 2)
sTM = S.alloc(2, 2); sSTB = S.alloc()
sPC = S.alloc(2, 2)
sD0 = S.alloc(); sD1 = S.alloc(); sD2 = S.alloc(); sD3 = S.alloc()

vL = V.alloc(); vMW = V.alloc(); aL4 = V.alloc()
KF = V.alloc(32, 4)
VT = V.alloc(32, 4)
VR = V.alloc(32, 4)
WA = V.alloc(16, 4)
WB = V.alloc(16, 4)
XF = V.alloc(16, 4)
QF = V.alloc(16, 4)
PB = V.alloc(16, 4)
ONE = V.alloc(4, 4)
ACC = V.alloc(16, 4)
T = V.alloc(16, 4)
aQR = V.alloc()
aXF = V.alloc()
aOST = V.alloc()
aAFW = V.alloc(); aAFR = V.alloc(); aMLR = V.alloc()
aP3S = V.alloc()
aRG = V.alloc()
aXN = V.alloc(); aXS = V.alloc()
aPS = V.alloc()
aSG = V.alloc()
aSW = V.alloc()
aXR = V.alloc()
aHR = V.alloc()
aL16 = V.alloc(); aGW = V.alloc()
aOW = V.alloc(); aOR = V.alloc(); aMX = V.alloc(); aMXW = V.alloc()
aTG = V.alloc()
RES = V.alloc(4, 4); BIA = V.alloc(4, 4); CS = V.alloc(2, 2)
vSTAMP = V.alloc(); vSTAMP0 = V.alloc()
NVGPR = V.n

out = []
def e(x): out.append("    " + x)
def lab(x): out.append(x + ":")
def c(x): out.append("    ; " + x)
def nop(n):
    while n > 0:
        k = min(n, 16); e(f"s_nop {k-1}"); n -= k
_uid = [0]
def uid(p="L"):
    _uid[0] += 1
    return f"{p}_{_uid[0]}"

def stamp(idx):
    if not OPT["stamps"]: return
    if idx >= 16 and OPT["stamps"] < 2: return
    if idx in (0, 13):
        e(f"s_memrealtime {s(sTM,2)}")
        e("s_waitcnt lgkmcnt(0)")
        e(f"v_writelane_b32 {v(vSTAMP)}, {s(sTM)}, 15")
    e(f"s_memtime {s(sTM,2)}")
    e("s_waitcnt lgkmcnt(0)")
    e(f"v_writelane_b32 {v(vSTAMP)}, {s(sTM)}, {idx}")

def dpoint(k):
    if OPT["diag"] != 8: return
    for key, reg in (("da", sD1), ("db", sD2)):
        if OPT[key] == k:
            e(f"s_memrealtime {s(sTM,2)}")
            e("s_waitcnt lgkmcnt(0)")
            e(f"s_mov_b32 {s(reg)}, {s(sTM)}")

def mfma(d, a, b, cc):
    cs = "0" if cc is None else v(cc, 4)
    e(f"v_mfma_f32_16x16x32_bf16 {v(d,4)}, {v(a,4)}, {v(b,4)}, {cs}")

def set_exec(lo, hi):
    e(f"s_mov_b32 exec_lo, {hex(lo)}")
    e(f"s_mov_b32 exec_hi, {hex(hi)}")

def check_sentinel(regs, tmp):
    regs = list(regs)
    e(f"v_max3_u32 {v(tmp)}, {v(regs[0])}, {v(regs[1])}, {v(regs[2])}")
    rest = regs[3:]
    while len(rest) >= 2:
        e(f"v_max3_u32 {v(tmp)}, {v(tmp)}, {v(rest[0])}, {v(rest[1])}")
        rest = rest[2:]
    if rest:
        e(f"v_max_u32 {v(tmp)}, {v(tmp)}, {v(rest[0])}")
    e(f"v_cmp_eq_u32 vcc, -1, {v(tmp)}")

def poll(issue, regs, tmp):
    top = uid("POLL"); done = uid("POLLD")
    e(f"s_mov_b32 {s(sCNT)}, 0")
    lab(top)
    issue()
    e("s_waitcnt vmcnt(0)")
    check_sentinel(regs, tmp)
    e(f"s_cbranch_vccz {done}")
    e(f"s_add_u32 {s(sCNT)}, {s(sCNT)}, 1")
    e(f"s_cmp_lt_u32 {s(sCNT)}, {SPIN_MAX}")
    e(f"s_cbranch_scc1 {top}")
    lab(done)

def poll2(issue, A, B, n, nloads, tmp):
    if not OPT["pp"]:
        poll(lambda: issue(A), range(A, A+n), tmp); return
    top = uid("PP"); dA = uid("PPA"); dB = uid("PPB")
    e(f"s_mov_b32 {s(sCNT)}, 0")
    issue(A)
    e(f"s_sleep {OPT['gap']}")
    lab(top)
    issue(B)
    e(f"s_waitcnt vmcnt({nloads})")
    check_sentinel(range(A, A+n), tmp)
    e(f"s_cbranch_vccz {dA}")
    issue(A)
    e(f"s_waitcnt vmcnt({nloads})")
    check_sentinel(range(B, B+n), tmp)
    e(f"s_cbranch_vccz {dB}")
    e(f"s_add_u32 {s(sCNT)}, {s(sCNT)}, 1")
    e(f"s_cmp_lt_u32 {s(sCNT)}, {SPIN_MAX}")
    e(f"s_cbranch_scc1 {top}")
    lab(dB)
    for k in range(n):
        e(f"v_mov_b32 {v(A+k)}, {v(B+k)}")
    lab(dA)

def store_intra(op, data, addr, soff, off):
    slow = uid("STS"); done = uid("STD")
    e(f"s_cmp_eq_u32 {s(sFAST)}, 0")
    e(f"s_cbranch_scc1 {slow}")
    e(f"{op} {data}, {v(addr)}, {s(sWS,4)}, {s(soff)} offen offset:{off}")
    e(f"s_branch {done}")
    lab(slow)
    e(f"{op} {data}, {v(addr)}, {s(sWS,4)}, {s(soff)} offen offset:{off} sc1")
    lab(done)

def poll_x(soff):
    e(f"s_lshl_b32 {s(sT3)}, {s(sWV)}, 10")
    e(f"v_add_u32 {v(T+2)}, {s(sT3)}, {v(aL16)}")
    poll2(lambda R: e(f"buffer_load_dwordx4 {v(R,4)}, {v(aL16)}, {s(sWS,4)}, {s(soff)} offen sc1"), QF, QF+4, 4, 1, T+1)
    e(f"ds_write_b128 {v(T+2)}, {v(QF,4)} offset:{L_XI}")
    e("s_waitcnt lgkmcnt(0)")

def gemv_mma_store(soff, drain=True, with_cs=False):
    if with_cs: e(f"s_mov_b64 exec, {s(sMA[0],2)}")
    for ks in range(4):
        e(f"ds_read_b128 {v(XF+4*ks,4)}, {v(aXF)} offset:{L_XI + 256*ks}")
    if with_cs: e("s_mov_b64 exec, -1")
    for ks in range(4):
        e(f"s_waitcnt lgkmcnt({3-ks})")
        mfma(ACC, WA + 4*ks, XF + 4*ks, None if ks == 0 else ACC)
    nop(6)
    e(f"s_mov_b64 exec, {s(sM5 if with_cs else sMA[0],2)}")
    store_intra("buffer_store_dwordx4", v(ACC,4), aPS, soff, 0)
    e("s_mov_b64 exec, -1")
    if drain: e("s_waitcnt vmcnt(0)")

def colsum_store(soff):
    e("s_waitcnt lgkmcnt(0)")
    for ks in range(4):
        mfma(ACC, WA + 4*ks, ONE, None if ks == 0 else ACC)
    nop(6)
    set_exec(0x00100010, 0x00100010)
    store_intra("buffer_store_dwordx4", v(ACC,4), aPS, soff, 0)
    e("s_mov_b64 exec, -1")

def colsum_fetch(soff, kq_stride, addr):
    def issue():
        e(f"s_mov_b32 {s(sT1)}, {s(soff)}")
        for k in range(4):
            e(f"buffer_load_dwordx2 {v(VR+2*k,2)}, {v(addr)}, {s(sWS,4)}, {s(sT1)} offen sc1")
            if k < 3: e(f"s_add_u32 {s(sT1)}, {s(sT1)}, {kq_stride}")
    poll(issue, range(VR, VR+8), T+2)
    e(f"v_pk_add_f32 {v(VR,2)}, {v(VR,2)}, {v(VR+2,2)}")
    e(f"v_pk_add_f32 {v(VR+4,2)}, {v(VR+4,2)}, {v(VR+6,2)}")
    e(f"v_pk_add_f32 {v(CS,2)}, {v(VR,2)}, {v(VR+4,2)}")

def wave_sum(r, tmp):
    for m in ("quad_perm:[1,0,3,2]", "quad_perm:[2,3,0,1]", "row_half_mirror", "row_mirror"):
        nop(2)
        e(f"v_add_f32_dpp {v(r)}, {v(r)}, {v(r)} {m} row_mask:0xf bank_mask:0xf")
    for sw in ("v_permlane16_swap_b32", "v_permlane32_swap_b32"):
        e(f"v_mov_b32 {v(tmp)}, {v(r)}")
        nop(2)
        e(f"{sw} {v(r)}, {v(tmp)}")
        nop(1)
        e(f"v_add_f32 {v(r)}, {v(r)}, {v(tmp)}")

def row_stats(double_ln):
    X = QF
    e("s_waitcnt vmcnt(0)")
    e(f"ds_read_b128 {v(X,4)}, {v(aXR)}")
    e("s_waitcnt lgkmcnt(0)")
    for k in range(4):
        e(f"v_and_b32 {v(X+4+2*k+1)}, 0xffff0000, {v(X+k)}")
        e(f"v_lshlrev_b32 {v(X+4+2*k)}, 16, {v(X+k)}")
    e(f"v_pk_add_f32 {v(X,2)}, {v(X+4,2)}, {v(X+6,2)}")
    e(f"v_pk_add_f32 {v(X+2,2)}, {v(X+8,2)}, {v(X+10,2)}")
    e(f"v_pk_add_f32 {v(X,2)}, {v(X,2)}, {v(X+2,2)}")
    e(f"v_add_f32 {v(T+8)}, {v(X)}, {v(X+1)}")
    wave_sum(T+8, T+5)
    e(f"v_mul_f32 {v(T+8)}, {f32(1/512)}, {v(T+8)}")
    for k in range(8):
        e(f"v_sub_f32 {v(X+4+k)}, {v(X+4+k)}, {v(T+8)}")
    e(f"v_mul_f32 {v(T+4)}, {v(X+4)}, {v(X+4)}")
    for k in range(1, 8):
        e(f"v_fmac_f32 {v(T+4)}, {v(X+4+k)}, {v(X+4+k)}")
    wave_sum(T+4, T+5)
    e(f"v_mul_f32 {v(T+4)}, {f32(1/512)}, {v(T+4)}")
    scale_from_var(T+4, double_ln, T+5)

def scale_from_var(s2, double_ln, tmp):
    e(f"v_add_f32 {v(tmp)}, {f32(1e-5)}, {v(s2)}")
    e(f"v_rsq_f32 {v(tmp)}, {v(tmp)}")
    nop(1)
    if double_ln:
        e(f"v_mul_f32 {v(s2)}, {v(s2)}, {v(tmp)}")
        e(f"v_mul_f32 {v(s2)}, {v(s2)}, {v(tmp)}")
        e(f"v_add_f32 {v(s2)}, {f32(1e-5)}, {v(s2)}")
        e(f"v_rsq_f32 {v(s2)}, {v(s2)}")
        nop(1)
        e(f"v_mul_f32 {v(s2)}, {v(s2)}, {v(tmp)}")
    else:
        e(f"v_mov_b32 {v(s2)}, {v(tmp)}")

def stats_from(s2, s1, double_ln, tmp):
    e(f"v_mul_f32 {v(s1)}, {f32(1/512)}, {v(s1)}")
    e(f"v_mul_f32 {v(s2)}, {f32(1/512)}, {v(s2)}")
    e(f"v_fma_f32 {v(s2)}, -{v(s1)}, {v(s1)}, {v(s2)}")
    e(f"v_max_f32 {v(s2)}, 0, {v(s2)}")
    scale_from_var(s2, double_ln, tmp)

def sum_partials(soff, kq_stride, double_ln, cs_first=False):
    row_stats(double_ln)
    if cs_first:
        sk = uid("CSK")
        e(f"s_cmp_lg_u32 {s(sLAYER)}, 0")
        e(f"s_cbranch_scc1 {sk}")
        e(f"s_lshl_b32 {s(sT3)}, {s(sW)}, 10")
        e(f"s_sub_u32 {s(sT3)}, 4096, {s(sT3)}")
        e(f"v_add_u32 {v(T+3)}, {s(sT3)}, {v(aSG)}")
        def issue8():
            e(f"s_mov_b32 {s(sT1)}, {s(soff)}")
            for k in range(4):
                e(f"buffer_load_dwordx2 {v(VR+2*k,2)}, {v(aSG)}, {s(sWS,4)}, {s(sT1)} offen sc1")
                e(f"buffer_load_dwordx2 {v(VR+8+2*k,2)}, {v(T+3)}, {s(sWS,4)}, {s(sT1)} offen sc1")
                if k < 3: e(f"s_add_u32 {s(sT1)}, {s(sT1)}, {kq_stride}")
        poll(issue8, range(VR, VR+16), T+2)
        e(f"v_pk_add_f32 {v(VR+8,2)}, {v(VR+8,2)}, {v(VR+10,2)}")
        e(f"v_pk_add_f32 {v(VR+12,2)}, {v(VR+12,2)}, {v(VR+14,2)}")
        e(f"v_pk_add_f32 {v(CS,2)}, {v(VR+8,2)}, {v(VR+12,2)}")
        e(f"v_mul_f32 {v(T+6)}, {v(T+8)}, {v(CS)}")
        e(f"v_mul_f32 {v(T+7)}, {v(T+8)}, {v(CS+1)}")
        e(f"s_branch {sk}_J")
        lab(sk)
    e(f"v_mul_f32 {v(T+6)}, {v(T+8)}, {v(CS)}")
    e(f"v_mul_f32 {v(T+7)}, {v(T+8)}, {v(CS+1)}")
    def issue(R):
        e(f"s_mov_b32 {s(sT1)}, {s(soff)}")
        for k in range(4):
            e(f"buffer_load_dwordx2 {v(R+2*k,2)}, {v(aSG)}, {s(sWS,4)}, {s(sT1)} offen sc1")
            if k < 3: e(f"s_add_u32 {s(sT1)}, {s(sT1)}, {kq_stride}")
    poll2(issue, VR, VR+8, 8, 4, T+2)
    if cs_first: lab(sk + "_J")
    e(f"v_pk_add_f32 {v(VR+16,2)}, {v(VR,2)}, {v(VR+2,2)}")
    e(f"v_pk_add_f32 {v(VR+18,2)}, {v(VR+4,2)}, {v(VR+6,2)}")
    e(f"v_pk_add_f32 {v(VR+16,2)}, {v(VR+16,2)}, {v(T+6,2)} neg_lo:[0,1] neg_hi:[0,1]")
    e(f"v_pk_add_f32 {v(VR+16,2)}, {v(VR+16,2)}, {v(VR+18,2)}")
    e(f"v_mul_f32 {v(T)}, {v(VR+16)}, {v(T+4)}")
    e(f"v_mul_f32 {v(T+1)}, {v(VR+17)}, {v(T+4)}")

def reduce_slice(nload, base_off, step, extra_bias):
    SEL = QF
    e(f"v_and_b32 {v(T+2)}, 15, {v(vL)}")
    e(f"v_and_b32 {v(T+3)}, 1, {v(vL)}")
    e(f"v_lshlrev_b32 {v(T+3)}, 4, {v(T+3)}")
    e(f"v_mov_b32 {v(T+4)}, 0x3f80")
    e(f"v_lshlrev_b32 {v(T+4)}, {v(T+3)}, {v(T+4)}")
    e(f"v_lshrrev_b32 {v(T+2)}, 1, {v(T+2)}")
    for d in range(4):
        e(f"v_cmp_eq_u32 vcc, {d}, {v(T+2)}")
        nop(2)
        e(f"v_cndmask_b32 {v(SEL+d)}, 0, {v(T+4)}, vcc")
    def issue():
        e(f"s_add_u32 {s(sT0)}, {s(sLO)}, {base_off}")
        for t in range(nload):
            e(f"buffer_load_dwordx4 {v(VR+4*t,4)}, {v(aRG)}, {s(sWS,4)}, {s(sT0)} offen sc1")
            if t + 1 < nload:
                e(f"s_add_u32 {s(sT0)}, {s(sT0)}, {step}")
    poll(issue, range(VR, VR + 4*nload), T)
    stamp(25 if nload == 4 else 26)
    for t in range(nload):
        mfma(ACC, SEL, VR+4*t, None if t == 0 else ACC)
    nop(8)
    for r in range(4):
        e(f"v_add_f32_dpp {v(ACC+r)}, {v(ACC+r)}, {v(ACC+r)} row_ror:8 row_mask:0xf bank_mask:0xf")
    if extra_bias:
        e(f"v_pk_add_f32 {v(ACC,2)}, {v(ACC,2)}, {v(BIA,2)}")
        e(f"v_pk_add_f32 {v(ACC+2,2)}, {v(ACC+2,2)}, {v(BIA+2,2)}")
    e(f"v_cvt_pk_bf16_f32 {v(T)}, {v(ACC)}, {v(ACC+1)}")
    e(f"v_cvt_pk_bf16_f32 {v(T+1)}, {v(ACC+2)}, {v(ACC+3)}")
    e(f"v_lshlrev_b32 {v(ACC)}, 16, {v(T)}")
    e(f"v_and_b32 {v(ACC+1)}, 0xffff0000, {v(T)}")
    e(f"v_lshlrev_b32 {v(ACC+2)}, 16, {v(T+1)}")
    e(f"v_and_b32 {v(ACC+3)}, 0xffff0000, {v(T+1)}")
    e("s_waitcnt lgkmcnt(0)")
    e(f"v_pk_add_f32 {v(ACC,2)}, {v(ACC,2)}, {v(RES,2)}")
    e(f"v_pk_add_f32 {v(ACC+2,2)}, {v(ACC+2,2)}, {v(RES+2,2)}")
    e(f"v_cvt_pk_bf16_f32 {v(T)}, {v(ACC)}, {v(ACC+1)}")
    e(f"v_cvt_pk_bf16_f32 {v(T+1)}, {v(ACC+2)}, {v(ACC+3)}")
    e(f"v_min_u32 {v(T)}, -2, {v(T)}")
    e(f"v_min_u32 {v(T+1)}, -2, {v(T+1)}")

def unpack4(dst, lo, hi):
    e(f"v_and_b32 {v(dst+3)}, 0xffff0000, {v(hi)}")
    e(f"v_lshlrev_b32 {v(dst+2)}, 16, {v(hi)}")
    e(f"v_and_b32 {v(dst+1)}, 0xffff0000, {v(lo)}")
    e(f"v_lshlrev_b32 {v(dst)}, 16, {v(lo)}")

def pack_msg(R):
    e(f"v_cvt_pk_bf16_f32 {v(T+8)}, {v(R)}, {v(R+1)}")
    e(f"v_cvt_pk_bf16_f32 {v(T+9)}, {v(R+2)}, {v(R+3)}")
    e(f"v_min_u32 {v(T+8)}, -2, {v(T+8)}")
    e(f"v_min_u32 {v(T+9)}, -2, {v(T+9)}")
    e(f"v_mov_b32 {v(T+10)}, {v(T+8)}")
    e(f"v_mov_b32 {v(T+11)}, {v(T+9)}")
    nop(2)
    e(f"v_permlane16_swap_b32 {v(T+8)}, {v(T+10)}")
    e(f"v_permlane16_swap_b32 {v(T+9)}, {v(T+11)}")

D = OPT["D"]
W12 = ["", " nt", " sc1", " sc0"][OPT["w12"]]
DV = OPT["DV"] or D
DW = OPT["DW"] or DV

hdr = open("cdna_kernels/" + NAME + ".s.ref").read().split("\n")
head = [l for l in hdr if l.startswith(";") and "@launch" not in l and "Override launch" not in l and "grid=ceil" not in l]
out.extend(head)
out.append(f"; @launch grid=(256,1,1) block=(512,1,1) lds={LDS_BYTES}")
out.append('.amdgcn_target "amdgcn-amd-amdhsa--gfx950"')
out.append(".text")
out.append(f".globl {KNAME}")
out.append(".p2align 8")
out.append(f".type {KNAME},@function")
lab(KNAME)

e("s_cmp_ge_u32 s2, 256")
e("s_cbranch_scc1 L_END")
for reg, off in ((sWQ,24),(sK,8),(sV,16),(sWS,96),(sX,0),(sWO,32),(sW1,48),(sB1,56),(sW2,64),(sB2,72),(sOUT,80),(sDBG,88)):
    e(f"s_load_dwordx2 {s(reg,2)}, s[0:1], {off}")
for reg, nb in ((sX,4096),(sK,0x4000000),(sV,0x4000000),(sWQ,512*4096*2),(sWO,4096*512*2),(sW1,512*1792*2),(sB1,1792*2),
                (sW2,1792*512*2),(sB2,1024),(sOUT,4096),(sDBG,256),(sWS,0x10000000)):
    e(f"s_mov_b32 {s(reg+2)}, {hex(nb)}")
    e(f"s_mov_b32 {s(reg+3)}, 0x00020000")
e(f"v_lshrrev_b32 {v(T)}, 6, v0")
e(f"v_and_b32 {v(vL)}, 63, v0")
e(f"v_readfirstlane_b32 {s(sW)}, {v(T)}")
e(f"s_and_b32 {s(sG)}, s2, 7")
e(f"s_lshr_b32 {s(sI)}, s2, 3")
e(f"s_lshr_b32 {s(sB)}, {s(sI)}, 3")
e(f"s_and_b32 {s(sS)}, {s(sI)}, 7")
e(f"s_and_b32 {s(sKQ)}, {s(sI)}, 3")
e(f"s_and_b32 {s(sKH)}, {s(sI)}, 1")
e(f"s_and_b32 {s(sWV)}, {s(sW)}, 3")
e(f"v_lshlrev_b32 {v(aL16)}, 4, {v(vL)}")
e(f"v_mov_b32 {v(aTG)}, 0")
e(f"s_add_u32 {s(sROT)}, {s(sW)}, s2")
e(f"s_add_u32 {s(sROT)}, {s(sROT)}, {s(sI)}")
e(f"s_and_b32 {s(sROT)}, {s(sROT)}, 7")
e(f"s_lshr_b32 {s(sROTH)}, {s(sW)}, 1")
e(f"s_add_u32 {s(sROTH)}, {s(sROTH)}, {s(sB)}")
e(f"s_and_b32 {s(sROTH)}, {s(sROTH)}, 1")
e(f"s_lshl_b32 {s(sROTH)}, {s(sROTH)}, 7")
e(f"s_lshl_b32 {s(sKVB)}, {s(sB)}, 3")
e(f"s_add_u32 {s(sKVB)}, {s(sKVB)}, {s(sG)}")
e(f"s_lshl_b32 {s(sKVB)}, {s(sKVB)}, 21")
e(f"s_lshl_b32 {s(sT3)}, {s(sS)}, 16")
e(f"s_add_u32 {s(sKVB)}, {s(sKVB)}, {s(sT3)}")
e(f"s_lshl_b32 {s(sT3)}, {s(sW)}, 13")
e(f"s_add_u32 {s(sKVB)}, {s(sKVB)}, {s(sT3)}")
e(f"s_add_u32 {s(sKVB)}, {s(sKVB)}, {6144*256}")
kA = [PB, PB+1]; kAh = [PB+2, PB+3]
e(f"v_and_b32 {v(T+6)}, 3, {v(vL)}")
e(f"v_add_u32 {v(T+6)}, {s(sROT)}, {v(T+6)}")
e(f"v_bfe_u32 {v(T+7)}, {v(vL)}, 2, 1")
e(f"v_lshrrev_b32 {v(T+8)}, 3, {v(vL)}")
e(f"v_lshlrev_b32 {v(T+9)}, 4, {v(T+8)}")
e(f"v_lshl_add_u32 {v(T+9)}, {v(T+7)}, 8, {v(T+9)}")
e(f"v_add_u32 {v(T+9)}, {s(sROTH)}, {v(T+9)}")
for t in range(2):
    e(f"v_add_u32 {v(T+10)}, {4*t}, {v(T+6)}")
    e(f"v_and_b32 {v(T+10)}, 7, {v(T+10)}")
    e(f"v_lshl_add_u32 {v(kA[t])}, {v(T+10)}, 10, {v(T+9)}")
    e(f"v_xor_b32 {v(kAh[t])}, 0x80, {v(kA[t])}")
if OPT["stamps"]:
    e(f"v_mov_b32 {v(vSTAMP)}, 0")
    e(f"v_mov_b32 {v(vSTAMP0)}, 0")

def kslot(t, hf, mh): return KF + 4*(t*4 + hf*2 + mh)
def issue_k(n):
    t, hf, mh = n >> 2, (n >> 1) & 1, n & 1
    a = kA[t] if hf == 0 else kAh[t]
    e(f"buffer_load_dwordx4 {v(kslot(t,hf,mh),4)}, {v(a)}, {s(sK,4)}, {s(sKVB)} offen offset:{512*mh} nt")
def issue_v(i):
    e(f"s_add_u32 {s(sT3)}, {s(sROT)}, {i}")
    e(f"s_and_b32 {s(sT3)}, {s(sT3)}, 7")
    e(f"s_lshl_b32 {s(sT3)}, {s(sT3)}, 10")
    e(f"s_add_u32 {s(sT3)}, {s(sT3)}, {s(sKVB)}")
    e(f"buffer_load_dwordx4 {v(VR+4*i,4)}, {v(aL16)}, {s(sV,4)}, {s(sT3)} offen nt")

e(f"v_and_b32 {v(T+7)}, 7, {v(vL)}")
e(f"v_lshlrev_b32 {v(T+7)}, 4, {v(T+7)}")
e(f"v_lshl_add_u32 {v(T+7)}, {v(T+8)}, 13, {v(T+7)}")
e(f"s_lshl_b32 {s(sT3)}, {s(sG)}, 10")
e(f"s_lshr_b32 {s(sT0)}, {s(sI)}, 2")
e(f"s_lshl_b32 {s(sT0)}, {s(sT0)}, 7")
e(f"s_add_u32 {s(sT3)}, {s(sT3)}, {s(sT0)}")
e(f"s_lshl_b32 {s(sT0)}, {s(sKQ)}, 20")
e(f"s_add_u32 {s(sT3)}, {s(sT3)}, {s(sT0)}")
e(f"s_lshl_b32 {s(sT0)}, {s(sW)}, 17")
e(f"s_add_u32 {s(sT3)}, {s(sT3)}, {s(sT0)}")
e(f"s_lshl_b32 {s(sT0)}, {s(sW)}, 11")
e(f"s_add_u32 {s(sT0)}, {s(sT0)}, {L_WQ}")
e(f"s_mov_b32 m0, {s(sT0)}")
e(f"v_mov_b32 {v(T+11)}, {L_CNT}")
e(f"v_mov_b32 {v(T+12)}, 0")
e(f"ds_write_b32 {v(T+11)}, {v(T+12)}")
e("s_waitcnt lgkmcnt(0)")
stamp(0)
if 4 <= OPT["diag"] <= 7:
    e(f"s_memrealtime {s(sTM,2)}")
    e("s_waitcnt lgkmcnt(0)")
    e(f"s_mov_b32 {s(sD0)}, {s(sTM)}")
e(f"s_cmp_lg_u32 {s(sW)}, 7")
e("s_cbranch_scc1 L_SETUP3")
e("s_cmp_lg_u32 s2, 0")
e("s_cbranch_scc1 L_SETUP3")
c("WG 0 wave 7 publishes the launch nonce (tells this launch's first hand-off from stale words)")
e(f"s_memrealtime {s(sTM,2)}")
e("s_waitcnt lgkmcnt(0)")
e(f"s_lshl_b32 {s(sNONCE)}, {s(sTM)}, 4")
e(f"s_or_b32 {s(sNONCE)}, {s(sNONCE)}, 0x80000000")
e(f"v_mov_b32 {v(ACC+4)}, {s(sNONCE)}")
e(f"v_mov_b32 {v(ACC+5)}, 0")
e("s_mov_b64 exec, 1")
e(f"buffer_store_dword {v(ACC+4)}, {v(ACC+5)}, {s(sDBG,4)}, 0 offen sc1")
e("s_mov_b64 exec, -1")
lab("L_SETUP3")
e(f"buffer_load_dwordx4 {v(T+7)}, {s(sWQ,4)}, {s(sT3)} offen nt lds")
e(f"s_add_u32 {s(sT0)}, {s(sT0)}, 1024")
e(f"s_mov_b32 m0, {s(sT0)}")
e(f"s_add_u32 {s(sT3)}, {s(sT3)}, {8*8192}")
e(f"buffer_load_dwordx4 {v(T+7)}, {s(sWQ,4)}, {s(sT3)} offen nt lds")
e(f"s_cmp_lg_u32 {s(sW)}, 1")
e("s_cbranch_scc1 L_NOCPF")
c("wave 1: pull 1 KB of the kernel's own code into L2 (loads only)")
e(f"s_getpc_b64 {s(sPC,2)}")
lab("L_PCREF")
e(f"s_sub_u32 {s(sPC)}, {s(sPC)}, L_PCREF-{KNAME}")
e(f"s_subb_u32 {s(sPC+1)}, {s(sPC+1)}, 0")
e(f"s_and_b32 {s(sT1)}, {s(sI)}, 15")
e(f"s_lshl_b32 {s(sT1)}, {s(sT1)}, 10")
e(f"v_add_u32 {v(T+9)}, {s(sT1)}, {v(aL16)}")
e(f"global_load_dwordx4 {v(PB+4,4)}, {v(T+9)}, {s(sPC,2)}")
lab("L_NOCPF")
if OPT["tlbw"]:
    e(f"s_cmp_lg_u32 {s(sW)}, 2")
    e("s_cbranch_scc1 L_NOTLB")
    c("wave 2: touch the pages of the weights that are fetched late (address translation only)")
    e(f"v_lshlrev_b32 {v(T+9)}, 15, {v(vL)}")
    e(f"buffer_load_dword {v(PB+4)}, {v(T+9)}, {s(sW1,4)}, 0 offen nt")
    e(f"buffer_load_dword {v(PB+5)}, {v(T+9)}, {s(sW2,4)}, 0 offen nt")
    lab("L_NOTLB")
e(f"s_cmp_lg_u32 {s(sW)}, 5")
e("s_cbranch_scc1 L_NOX5")
for r in range(16):
    e(f"v_mov_b32 {v(XF+r)}, 0x3f803f80")
e(f"v_and_b32 {v(T+9)}, 3, {v(vL)}")
e(f"v_lshlrev_b32 {v(T+9)}, 10, {v(T+9)}")
e(f"v_lshrrev_b32 {v(T+10)}, 4, {v(vL)}")
e(f"v_lshl_add_u32 {v(T+9)}, {v(T+10)}, 4, {v(T+9)}")
e(f"s_lshl_b32 {s(sT0)}, {s(sKQ)}, 8")
set_exec(0x000f000f, 0x000f000f)
for ks in range(4):
    e(f"buffer_load_dwordx4 {v(XF+4*ks,4)}, {v(T+9)}, {s(sX,4)}, {s(sT0)} offen offset:{64*ks}")
e("s_mov_b64 exec, -1")
e(f"v_lshlrev_b32 {v(T+9)}, 10, {v(T+10)}")
e(f"v_and_b32 {v(T+10)}, 15, {v(vL)}")
e(f"v_lshl_add_u32 {v(T+9)}, {v(T+10)}, 4, {v(T+9)}")
for k in range(4):
    e(f"buffer_load_dwordx4 {v(QF+4*k,4)}, {v(T+9)}, {s(sX,4)}, 0 offen offset:{256*k}")
lab("L_NOX5")
e("s_barrier")
e(f"s_mul_i32 {s(sGB)}, {s(sG)}, {GSZ}")
e(f"s_lshl_b32 {s(sTB)}, {s(sG)}, 16")
e(f"s_add_u32 {s(sTB)}, {s(sTB)}, {TAG_BASE}")
c("sentinel pre-fill of this member's share of the group's hand-off region (waves 0-6); wave 7 clears the tagged message")
e(f"s_mul_i32 {s(sT1)}, {s(sI)}, {PF}")
e(f"s_add_u32 {s(sT1)}, {s(sT1)}, {s(sGB)}")
e(f"s_lshl_b32 {s(sT0)}, {s(sW)}, 10")
e(f"s_add_u32 {s(sT0)}, {s(sT0)}, {s(sT1)}")
e(f"s_lshl_b32 {s(sT1)}, {s(sI)}, 10")
e(f"s_add_u32 {s(sT1)}, {s(sT1)}, {s(sTB)}")
e(f"s_cmp_eq_u32 {s(sW)}, 7")
e(f"s_cselect_b32 {s(sT0)}, {s(sT1)}, {s(sT0)}")
e(f"s_cselect_b32 {s(sT1)}, 0, -1")
for r in range(4):
    e(f"v_mov_b32 {v(ACC+r)}, {s(sT1)}")
e(f"s_cmp_eq_u32 {s(sW)}, 6")
e(f"s_cselect_b32 exec_hi, 0xffff, -1")
if OPT["nopf"]:
    e("s_mov_b64 exec, 1")
e(f"buffer_store_dwordx4 {v(ACC,4)}, {v(aL16)}, {s(sWS,4)}, {s(sT0)} offen sc1")
e("s_mov_b64 exec, -1")
lab("L_NOPF")
K0N = OPT["K0"]
for n in range(K0N):
    issue_k(n)
lab("L_NOK")

e(f"s_mov_b32 {s(sLB)}, {s(sGB)}")
e(f"s_mov_b32 {s(sLO)}, 0")
e(f"s_mov_b32 {s(sLAYER)}, 0")
e(f"s_mov_b32 {s(sFAST)}, 0")
for a in range(4):
    m = 0
    for l in range(64):
        if ((l & 15) >> 2) == a: m |= 1 << l
    e(f"s_mov_b32 {s(sMA[a])}, {hex(m & 0xffffffff)}")
    e(f"s_mov_b32 {s(sMA[a]+1)}, {hex(m >> 32)}")
e(f"s_mov_b32 {s(sM5)}, 0x001f001f")
e(f"s_mov_b32 {s(sM5+1)}, 0x001f001f")
n15, kg, l3, n2 = T+1, T+2, T+3, T+4
e(f"v_and_b32 {v(n15)}, 15, {v(vL)}")
e(f"v_lshrrev_b32 {v(kg)}, 4, {v(vL)}")
e(f"v_and_b32 {v(l3)}, 3, {v(vL)}")
e(f"v_bfe_u32 {v(n2)}, {v(vL)}, 2, 2")
e(f"s_getreg_b32 {s(sXCC)}, hwreg(HW_REG_XCC_ID)")
e(f"s_and_b32 {s(sXCC)}, {s(sXCC)}, 15")
e(f"s_lshl_b32 {s(sT3)}, {s(sWV)}, 10")
e(f"v_lshlrev_b32 {v(aGW)}, 6, {v(n15)}")
e(f"v_lshl_add_u32 {v(aGW)}, {v(kg)}, 4, {v(aGW)}")
e(f"v_add_u32 {v(aGW)}, {s(sT3)}, {v(aGW)}")
TRR = V.alloc(); NVGPR = V.n
e(f"v_lshl_add_u32 {v(TRR)}, {v(kg)}, 3, {v(n2)}")
e("s_mov_b64 vcc, -1")
e(f"s_cmp_eq_u32 {s(sW)}, 5")
e("s_cbranch_scc1 L_Q1")
e("s_branch L_V")
lab("L_FREE")
e("s_mov_b64 vcc, 0")
QT = VT
def issue_qt():
    e(f"s_lshl_b32 {s(sT0)}, {s(sB)}, 6")
    e(f"s_add_u32 {s(sT0)}, {s(sT0)}, {s(sTB)}")
    e(f"s_add_u32 {s(sT1)}, {s(sT0)}, 16384")
    for k in range(4):
        e(f"buffer_load_dwordx4 {v(QT+8*k,4)}, {v(aTG)}, {s(sWS,4)}, {s(sT0)} offen offset:{1024*k} sc1")
        e(f"buffer_load_dwordx4 {v(QT+8*k+4,4)}, {v(aTG)}, {s(sWS,4)}, {s(sT1)} offen offset:{1024*k} sc1")
e(f"v_lshlrev_b32 {v(aTG)}, 12, {v(kg)}")
e(f"v_lshl_add_u32 {v(aTG)}, {v(n2)}, 8, {v(aTG)}")
e(f"v_lshl_add_u32 {v(aTG)}, {v(l3)}, 4, {v(aTG)}")
QPOS = OPT["qpos"]
for i in range(8):
    if i == QPOS: issue_qt()
    issue_v(i)
if QPOS == 8: issue_qt()
lab("L_V")
def throttle(n=None):
    sk = uid("TH")
    e(f"s_cbranch_vccz {sk}")
    e(f"s_waitcnt vmcnt({DW-1 if n is None else n})")
    lab(sk)
e(f"v_and_b32 {v(n15)}, 15, {v(vL)}")
e(f"v_lshrrev_b32 {v(kg)}, 4, {v(vL)}")
e(f"v_and_b32 {v(l3)}, 3, {v(vL)}")
e(f"v_bfe_u32 {v(n2)}, {v(vL)}, 2, 2")
_vnext = [0]
def vslot():
    if _vnext[0] < 8:
        sk = uid("VS")
        e(f"s_cbranch_vccz {sk}")
        e(f"s_waitcnt vmcnt({DV-1})")
        issue_v(_vnext[0]); _vnext[0] += 1
        lab(sk)
e(f"s_lshl_b32 {s(sSTB)}, s2, 3")
e(f"s_add_u32 {s(sSTB)}, {s(sSTB)}, {s(sW)}")
e(f"s_lshl_b32 {s(sSTB)}, {s(sSTB)}, 8")
e(f"s_add_u32 {s(sSTB)}, {s(sSTB)}, {STAMP_BASE}")
e(f"s_mov_b32 {s(sC)}, {f32(128**-0.5 * math.log2(math.e))}")
e(f"s_mov_b32 {s(sPLO)}, 0x05040100")
e(f"s_mov_b32 {s(sPHI)}, 0x07060302")
e(f"v_lshlrev_b32 {v(aL4)}, 2, {v(vL)}")
for r in range(4):
    e(f"v_mov_b32 {v(ONE+r)}, 0x3f803f80")
for r in range(16):
    e(f"v_mov_b32 {v(XF+r)}, 0x3f803f80")
e(f"v_lshlrev_b32 {v(aXF)}, 6, {v(kg)}")
e(f"v_lshl_add_u32 {v(aXF)}, {v(l3)}, 4, {v(aXF)}")
e(f"s_lshl_b32 {s(sT3)}, {s(sKQ)}, 10")
e(f"v_add_u32 {v(aXF)}, {s(sT3)}, {v(aXF)}")
e(f"v_mul_u32_u24 {v(T+7)}, 272, {v(l3)}")
e(f"v_lshl_add_u32 {v(aQR)}, {v(kg)}, 5, {v(T+7)}")
e(f"v_add_u32 {v(aQR)}, {L_Q}, {v(aQR)}")
e(f"v_lshl_add_u32 {v(aHR)}, {v(kg)}, 4, {v(T+7)}")
e(f"v_add_u32 {v(aHR)}, {L_H}, {v(aHR)}")
e(f"s_lshl_b32 {s(sT3)}, {s(sW)}, 13")
e(f"s_lshl_b32 {s(sT0)}, {s(sI)}, 8")
e(f"s_add_u32 {s(sT3)}, {s(sT3)}, {s(sT0)}")
e(f"s_add_u32 {s(sT3)}, {s(sT3)}, {OB_OFF}")
e(f"v_add_u32 {v(aOST)}, {s(sT3)}, {v(aL4)}")
e(f"s_cmp_lg_u32 {s(sW)}, 4")
e("s_cbranch_scc1 L_A1")
e(f"s_lshl_b32 {s(sT3)}, {s(sI)}, 3")
e(f"s_add_u32 {s(sT3)}, {s(sT3)}, {ML_OFF}")
e(f"v_lshlrev_b32 {v(aOST)}, 8, {v(l3)}")
e(f"v_add_u32 {v(aOST)}, {s(sT3)}, {v(aOST)}")
lab("L_A1")
e(f"s_and_b32 {s(sT3)}, {s(sW)}, 1")
e(f"s_lshl_b32 {s(sT3)}, {s(sT3)}, 4")
e(f"s_lshr_b32 {s(sT0)}, {s(sW)}, 1")
e(f"s_lshl_b32 {s(sT0)}, {s(sT0)}, 2")
e(f"s_add_u32 {s(sT3)}, {s(sT3)}, {s(sT0)}")
e(f"v_add_u32 {v(T+7)}, {s(sT3)}, {v(kg)}")
e(f"v_mul_u32_u24 {v(aAFW)}, 272, {v(T+7)}")
e(f"v_lshl_add_u32 {v(aAFW)}, {v(n15)}, 4, {v(aAFW)}")
e(f"v_add_u32 {v(aAFW)}, {L_AF}, {v(aAFW)}")
e(f"v_mul_u32_u24 {v(aAFR)}, 272, {v(n15)}")
e(f"v_lshl_add_u32 {v(aAFR)}, {v(kg)}, 4, {v(aAFR)}")
e(f"v_add_u32 {v(aAFR)}, {L_AF}, {v(aAFR)}")
e(f"v_lshlrev_b32 {v(aMLR)}, 6, {v(n2)}")
e(f"v_lshl_add_u32 {v(aMLR)}, {v(l3)}, 3, {v(aMLR)}")
e(f"v_add_u32 {v(aMLR)}, {L_ML}, {v(aMLR)}")
e(f"s_lshl_b32 {s(sT3)}, {s(sB)}, 12")
e(f"s_lshl_b32 {s(sT0)}, {s(sS)}, 9")
e(f"s_add_u32 {s(sT3)}, {s(sT3)}, {s(sT0)}")
e(f"s_lshl_b32 {s(sT0)}, {s(sWV)}, 7")
e(f"s_add_u32 {s(sT3)}, {s(sT3)}, {s(sT0)}")
e(f"s_add_u32 {s(sT3)}, {s(sT3)}, {X1P_OFF}")
e(f"v_lshrrev_b32 {v(T+7)}, 5, {v(vL)}")
e(f"v_lshlrev_b32 {v(aP3S)}, 5, {v(n2)}")
e(f"v_lshl_add_u32 {v(aP3S)}, {v(T+7)}, 4, {v(aP3S)}")
e(f"v_add_u32 {v(aP3S)}, {s(sT3)}, {v(aP3S)}")
e(f"v_bfe_u32 {v(T+8)}, {v(vL)}, 3, 1")
e(f"s_mov_b32 {s(sT0)}, {GSZ}")
e(f"v_mul_lo_u32 {v(aRG)}, {s(sT0)}, {v(T+8)}")
e(f"v_lshl_add_u32 {v(aRG)}, {v(kg)}, 12, {v(aRG)}")
e(f"s_cmp_lt_u32 {s(sW)}, 4")
e("s_cbranch_scc1 L_A2")
e(f"v_mul_lo_u32 {v(aRG)}, {s(sT0)}, {v(kg)}")
e(f"v_lshl_add_u32 {v(aRG)}, {v(T+8)}, 12, {v(aRG)}")
lab("L_A2")
e(f"v_and_b32 {v(T+9)}, 7, {v(vL)}")
e(f"v_lshl_add_u32 {v(aRG)}, {v(T+9)}, 4, {v(aRG)}")
e(f"s_lshl_b32 {s(sT3)}, {s(sI)}, 7")
e(f"v_add_u32 {v(aRG)}, {s(sT3)}, {v(aRG)}")
e(f"v_bfe_u32 {v(T+9)}, {v(vL)}, 1, 2")
e(f"v_and_b32 {v(T+8)}, 1, {v(vL)}")
e(f"v_bfe_u32 {v(T+10)}, {v(vL)}, 4, 1")
e(f"v_lshlrev_b32 {v(aXN)}, 10, {v(T+9)}")
e(f"v_lshl_add_u32 {v(aXN)}, {v(T+8)}, 4, {v(aXN)}")
e(f"v_lshl_add_u32 {v(aXN)}, {v(T+10)}, 3, {v(aXN)}")
e(f"s_lshl_b32 {s(sT3)}, {s(sI)}, 5")
e(f"v_add_u32 {v(aXN)}, {s(sT3)}, {v(aXN)}")
e(f"v_lshlrev_b32 {v(aXS)}, 6, {v(T+8)}")
e(f"v_lshl_add_u32 {v(aXS)}, {v(T+9)}, 4, {v(aXS)}")
e(f"v_lshl_add_u32 {v(aXS)}, {v(T+10)}, 3, {v(aXS)}")
e(f"s_lshl_b32 {s(sT3)}, {s(sI)}, 7")
e(f"v_add_u32 {v(aXS)}, {s(sT3)}, {v(aXS)}")
e(f"s_lshr_b32 {s(sT2)}, {s(sI)}, 2")
e(f"s_cmp_ge_u32 {s(sW)}, 4")
e("s_cbranch_scc1 L_A3")
c("waves 0-3: QP store ; HP gather (batch = w, units kh*96 + 2l) ; h write")
e(f"s_mul_i32 {s(sT3)}, {s(sKQ)}, 10240")
e(f"s_lshl_b32 {s(sT0)}, {s(sT2)}, 8")
e(f"s_add_u32 {s(sT3)}, {s(sT3)}, {s(sT0)}")
e(f"s_lshl_b32 {s(sT0)}, {s(sW)}, 6")
e(f"s_add_u32 {s(sT3)}, {s(sT3)}, {s(sT0)}")
e(f"v_lshlrev_b32 {v(aPS)}, 11, {v(n15)}")
e(f"v_lshl_add_u32 {v(aPS)}, {v(kg)}, 4, {v(aPS)}")
e(f"v_add_u32 {v(aPS)}, {s(sT3)}, {v(aPS)}")
e(f"s_mul_i32 {s(sT3)}, {s(sKH)}, 384")
e(f"s_lshl_b32 {s(sT0)}, {s(sW)}, 10")
e(f"s_add_u32 {s(sT3)}, {s(sT3)}, {s(sT0)}")
e(f"v_lshlrev_b32 {v(aSG)}, 3, {v(vL)}")
e(f"v_add_u32 {v(aSG)}, {s(sT3)}, {v(aSG)}")
e(f"s_mul_i32 {s(sT3)}, {s(sW)}, 272")
e(f"s_add_u32 {s(sT3)}, {s(sT3)}, {L_H}")
e(f"v_add_u32 {v(aSW)}, {s(sT3)}, {v(aL4)}")
e(f"s_mov_b32 {s(sT1)}, {s(sW)}")
e("s_branch L_A4")
lab("L_A3")
c("waves 4,5: HP store ; waves 6,7: X2P store ; 4-7: QP gather (batch b, head = wv, cols 2l) ; q write")
e(f"s_mul_i32 {s(sT3)}, {s(sKQ)}, 5120")
e(f"s_lshl_b32 {s(sT0)}, {s(sT2)}, 7")
e(f"s_add_u32 {s(sT3)}, {s(sT3)}, {s(sT0)}")
e(f"s_and_b32 {s(sT0)}, {s(sW)}, 1")
e(f"s_lshl_b32 {s(sT0)}, {s(sT0)}, 6")
e(f"s_add_u32 {s(sT3)}, {s(sT3)}, {s(sT0)}")
e(f"s_add_u32 {s(sT3)}, {s(sT3)}, {HP_OFF}")
e(f"v_lshlrev_b32 {v(aPS)}, 10, {v(n15)}")
e(f"v_lshl_add_u32 {v(aPS)}, {v(kg)}, 4, {v(aPS)}")
e(f"v_add_u32 {v(aPS)}, {s(sT3)}, {v(aPS)}")
e(f"s_cmp_lt_u32 {s(sW)}, 6")
e("s_cbranch_scc1 L_A3b")
e(f"s_lshl_b32 {s(sT3)}, {s(sKH)}, 12")
e(f"s_lshr_b32 {s(sT0)}, {s(sI)}, 1")
e(f"s_lshl_b32 {s(sT0)}, {s(sT0)}, 8")
e(f"s_add_u32 {s(sT3)}, {s(sT3)}, {s(sT0)}")
e(f"s_and_b32 {s(sT0)}, {s(sW)}, 1")
e(f"s_lshl_b32 {s(sT0)}, {s(sT0)}, 7")
e(f"s_add_u32 {s(sT3)}, {s(sT3)}, {s(sT0)}")
e(f"s_add_u32 {s(sT3)}, {s(sT3)}, {X2P_OFF}")
e(f"v_lshlrev_b32 {v(aPS)}, 5, {v(l3)}")
e(f"v_lshl_add_u32 {v(aPS)}, {v(T+7)}, 4, {v(aPS)}")
e(f"v_add_u32 {v(aPS)}, {s(sT3)}, {v(aPS)}")
lab("L_A3b")
e(f"s_lshl_b32 {s(sT3)}, {s(sB)}, 11")
e(f"s_lshl_b32 {s(sT0)}, {s(sWV)}, 9")
e(f"s_add_u32 {s(sT3)}, {s(sT3)}, {s(sT0)}")
e(f"v_lshlrev_b32 {v(aSG)}, 3, {v(vL)}")
e(f"v_add_u32 {v(aSG)}, {s(sT3)}, {v(aSG)}")
e(f"s_mul_i32 {s(sT3)}, {s(sWV)}, 272")
e(f"s_add_u32 {s(sT3)}, {s(sT3)}, {L_Q}")
e(f"v_add_u32 {v(aSW)}, {s(sT3)}, {v(aL4)}")
e(f"s_mov_b32 {s(sT1)}, {s(sB)}")
lab("L_A4")
e(f"s_lshl_b32 {s(sT3)}, {s(sT1)}, 4")
e(f"s_add_u32 {s(sT3)}, {s(sT3)}, {L_XI}")
e(f"v_lshlrev_b32 {v(aXR)}, 6, {v(vL)}")
e(f"v_add_u32 {v(aXR)}, {s(sT3)}, {v(aXR)}")
e(f"s_mul_i32 {s(sT3)}, {s(sW)}, {OSTR}")
e(f"s_add_u32 {s(sT3)}, {s(sT3)}, {L_OB}")
e(f"v_mul_u32_u24 {v(aOW)}, 272, {v(kg)}")
e(f"v_lshl_add_u32 {v(aOW)}, {v(n15)}, 4, {v(aOW)}")
e(f"v_add_u32 {v(aOW)}, {s(sT3)}, {v(aOW)}")
e(f"v_mul_u32_u24 {v(aOR)}, 1088, {v(T+7)}")
e(f"v_bfe_u32 {v(T+9)}, {v(vL)}, 3, 2")
e(f"v_mul_u32_u24 {v(T+9)}, 272, {v(T+9)}")
e(f"v_add_u32 {v(aOR)}, {v(aOR)}, {v(T+9)}")
e(f"v_bfe_u32 {v(T+9)}, {v(vL)}, 1, 2")
e(f"v_lshl_add_u32 {v(aOR)}, {v(T+9)}, 6, {v(aOR)}")
e(f"v_lshl_add_u32 {v(aOR)}, {v(T+8)}, 3, {v(aOR)}")
e(f"s_lshl_b32 {s(sT3)}, {s(sWV)}, 4")
e(f"s_add_u32 {s(sT3)}, {s(sT3)}, {L_OB}")
e(f"v_add_u32 {v(aOR)}, {s(sT3)}, {v(aOR)}")
e(f"v_lshlrev_b32 {v(aMX)}, 5, {v(l3)}")
e(f"v_add_u32 {v(aMX)}, {L_MX}, {v(aMX)}")
e(f"s_lshl_b32 {s(sT3)}, {s(sW)}, 2")
e(f"v_add_u32 {v(aMXW)}, {s(sT3)}, {v(aMX)}")
e(f"s_cmp_ge_u32 {s(sW)}, 4")
e("s_cbranch_scc1 L_A5")
e(f"s_lshl_b32 {s(sT3)}, {s(sW)}, 5")
e(f"s_add_u32 {s(sT3)}, {s(sT3)}, {L_MX}")
e(f"v_mov_b32 {v(aMX)}, {s(sT3)}")
lab("L_A5")

e("s_cbranch_vccz L_NOKT")
e(f"v_mov_b32 {v(T+11)}, {L_CNT}")
e(f"v_mov_b32 {v(T+12)}, 1")
e(f"v_mov_b32 {v(T+13)}, 0x100")
e("s_mov_b64 exec, 1")
e(f"s_waitcnt vmcnt({K0N+1})")
e(f"ds_add_u32 {v(T+11)}, {v(T+12)}")
e(f"s_waitcnt vmcnt({K0N})")
e(f"ds_add_u32 {v(T+11)}, {v(T+13)}")
e("s_mov_b64 exec, -1")
for n in range(K0N, 8):
    if n >= D: e(f"s_waitcnt vmcnt({D-1})")
    issue_k(n)
lab("L_NOKT")
for _ in range(8):
    vslot()
e(f"s_cmp_ge_u32 {s(sW)}, 4")
e("s_cbranch_scc1 L_SM2")
e(f"s_mul_i32 {s(sT1)}, {s(sG)}, 448")
e(f"s_mul_i32 {s(sT2)}, {s(sKH)}, 192")
e(f"s_add_u32 {s(sT1)}, {s(sT1)}, {s(sT2)}")
e(f"buffer_load_dword {v(BIA)}, {v(aL4)}, {s(sB1,4)}, {s(sT1)} offen")
e(f"buffer_load_dwordx2 {v(RES,2)}, {v(aXN)}, {s(sX,4)}, 0 offen")
e("s_branch L_WEIGHTS")
lab("L_SM2")
e(f"v_and_b32 {v(T+11)}, 0x3ff, {v(aXN)}")
e(f"buffer_load_dwordx2 {v(BIA,2)}, {v(T+11)}, {s(sB2,4)}, 0 offen")
lab("L_WEIGHTS")
e(f"v_lshrrev_b32 {v(T+11)}, 3, {v(vL)}")
e(f"v_lshlrev_b32 {v(T+11)}, 10, {v(T+11)}")
e(f"v_and_b32 {v(T+12)}, 7, {v(vL)}")
e(f"v_lshl_add_u32 {v(T+11)}, {v(T+12)}, 4, {v(T+11)}")
e(f"s_lshl_b32 {s(sT3)}, {s(sG)}, 2")
e(f"s_add_u32 {s(sT3)}, {s(sT3)}, {s(sB)}")
e(f"s_lshl_b32 {s(sT3)}, {s(sT3)}, 17")
e(f"s_lshl_b32 {s(sT0)}, {s(sW)}, 14")
e(f"s_add_u32 {s(sT3)}, {s(sT3)}, {s(sT0)}")
e(f"s_lshl_b32 {s(sT0)}, {s(sS)}, 7")
e(f"s_add_u32 {s(sT3)}, {s(sT3)}, {s(sT0)}")
e(f"s_lshl_b32 {s(sT0)}, {s(sW)}, 11")
e(f"s_add_u32 {s(sT0)}, {s(sT0)}, {L_WO}")
for n in range(2):
    throttle()
    e(f"s_mov_b32 m0, {s(sT0)}")
    e(f"s_add_u32 {s(sT0)}, {s(sT0)}, 1024")
    e(f"buffer_load_dwordx4 {v(T+11)}, {s(sWO,4)}, {s(sT3)} offen nt lds")
    e(f"s_add_u32 {s(sT3)}, {s(sT3)}, 8192")
def k_fixup():
    for t in range(2):
        for hf in range(2):
            X = kslot(t, hf, 0); Y = kslot(t, hf, 1)
            for r in range(4):
                e(f"v_mov_b32 {v(ACC+r)}, {v(X+r)}")
            for r in range(4):
                e(f"v_mov_b32_dpp {v(X+r)}, {v(Y+r)} row_ror:8 row_mask:0xf bank_mask:0xc")
            for r in range(4):
                e(f"v_mov_b32_dpp {v(Y+r)}, {v(ACC+r)} row_ror:8 row_mask:0xf bank_mask:0x3")
for r in range(16):
    e(f"v_mov_b32 {v(PB+r)}, 0")
e("s_cbranch_vccz L_NOFIX")
e("s_waitcnt vmcnt(10)")
k_fixup()
lab("L_NOFIX")
if not OPT["late"]:
    exec('# w1 tile [128 x 32]: rows 128kq + 16w + (l>>2), bytes row*3584 + g*448 + min(i>>2,6)*64 + (l&3)*16\ne(f"v_lshrrev_b32 {v(T+11)}, 2, {v(vL)}")\ne(f"v_and_b32 {v(T+12)}, 3, {v(vL)}")\ne(f"v_lshlrev_b32 {v(T+12)}, 4, {v(T+12)}")\ne(f"v_mul_u32_u24 {v(T+13)}, 3584, {v(T+11)}")\ne(f"v_add_u32 {v(T+13)}, {v(T+13)}, {v(T+12)}")\ne(f"s_lshl_b32 {s(sT3)}, {s(sKQ)}, 3")\ne(f"s_add_u32 {s(sT3)}, {s(sT3)}, {s(sW)}")\ne(f"s_mul_i32 {s(sT3)}, {s(sT3)}, {16*3584}")\ne(f"s_mul_i32 {s(sT1)}, {s(sG)}, 448")\ne(f"s_add_u32 {s(sT3)}, {s(sT3)}, {s(sT1)}")\ne(f"s_lshr_b32 {s(sT0)}, {s(sI)}, 2")\ne(f"s_min_u32 {s(sT0)}, {s(sT0)}, 6")\ne(f"s_lshl_b32 {s(sT0)}, {s(sT0)}, 6")\ne(f"s_add_u32 {s(sT3)}, {s(sT3)}, {s(sT0)}")\ne(f"s_lshl_b32 {s(sT0)}, {s(sW)}, 10")\ne(f"s_add_u32 {s(sT2)}, {s(sT0)}, {L_W1}")\ne(f"s_mov_b32 m0, {s(sT2)}")\nthrottle()\ne(f"buffer_load_dwordx4 {v(T+13)}, {s(sW1,4)}, {s(sT3)} offen{W12} lds")\n# w2 tile [128 x 32]: rows g*224 + kh*96 + 16w + (l>>2), bytes row*1024 + (i>>1)*64 + (l&3)*16\ne(f"v_lshl_add_u32 {v(T+13)}, {v(T+11)}, 10, {v(T+12)}")\ne(f"s_mul_i32 {s(sT3)}, {s(sG)}, {224*1024}")\ne(f"s_mul_i32 {s(sT2)}, {s(sKH)}, {96*1024}")\ne(f"s_add_u32 {s(sT3)}, {s(sT3)}, {s(sT2)}")\ne(f"s_lshl_b32 {s(sT2)}, {s(sW)}, 14")\ne(f"s_add_u32 {s(sT3)}, {s(sT3)}, {s(sT2)}")\ne(f"s_lshr_b32 {s(sT2)}, {s(sI)}, 1")\ne(f"s_lshl_b32 {s(sT2)}, {s(sT2)}, 6")\ne(f"s_add_u32 {s(sT3)}, {s(sT3)}, {s(sT2)}")\ne(f"s_add_u32 {s(sT2)}, {s(sT0)}, {L_W2}")\ne(f"s_mov_b32 m0, {s(sT2)}")\nthrottle()\ne(f"buffer_load_dwordx4 {v(T+13)}, {s(sW2,4)}, {s(sT3)} offen{W12} lds")\n')
e(f"s_cmp_lg_u32 {s(sW)}, 5")
e("s_cbranch_scc1 L_QBAR0")
e("s_branch L_QT0")
lab("L_Q1")
c("---------------- wave 5: this tile's share of q of layer 0 (x is an input: statistics computed locally)")
e(f"v_mov_b32 {v(T+5)}, 0x3f803f80")
e(f"v_mov_b32 {v(T+7)}, 0")
e(f"v_mov_b32 {v(T+8)}, 0")
e(f"v_mov_b32 {v(T+14)}, 0")
e(f"v_lshlrev_b32 {v(T+12)}, 7, {v(TRR)}")
e(f"v_lshl_add_u32 {v(T+12)}, {v(l3)}, 3, {v(T+12)}")
e(f"buffer_load_dword {v(ONE)}, {v(T+14)}, {s(sDBG,4)}, 0 offen sc1")
e(f"s_waitcnt vmcnt({2+K0N})")
e(f"buffer_load_dword {v(ONE+1)}, {v(T+14)}, {s(sDBG,4)}, 0 offen sc1")
for n in range(K0N, 8):
    issue_k(n)
for k in range(16):
    e(f"v_dot2c_f32_bf16 {v(T+7)}, {v(QF+k)}, {v(QF+k)}")
    e(f"v_dot2c_f32_bf16 {v(T+8)}, {v(QF+k)}, {v(T+5)}")
e(f"v_mov_b32 {v(T+11)}, {L_CNT}")
e(f"s_mov_b32 {s(sCNT)}, 0")
lab("L_WQW")
e(f"ds_read_b32 {v(T+13)}, {v(T+11)}")
e(f"s_add_u32 {s(sCNT)}, {s(sCNT)}, 1")
e("s_waitcnt lgkmcnt(0)")
e(f"v_readfirstlane_b32 {s(sT3)}, {v(T+13)}")
e(f"s_cmp_ge_u32 {s(sCNT)}, {SPIN_MAX}")
e("s_cbranch_scc1 L_WQD")
e(f"s_and_b32 {s(sT3)}, {s(sT3)}, 0xff")
e(f"s_cmp_lt_u32 {s(sT3)}, 7")
e("s_cbranch_scc1 L_WQW")
lab("L_WQD")
stamp(1)
def WQ5(ct, ks): return (VT + 16*ct + 4*ks) if ct < 2 else (WA + 16*(ct-2) + 4*ks)
def rd5(ct):
    for ks in range(4):
        r = WQ5(ct, ks)
        e(f"ds_read_b64_tr_b16 {v(r,2)}, {v(T+12)} offset:{L_WQ + 4096*ks + 32*ct}")
        e(f"ds_read_b64_tr_b16 {v(r+2,2)}, {v(T+12)} offset:{L_WQ + 4096*ks + 32*ct + 512}")
rd5(0)
for ct in range(4):
    e("s_waitcnt lgkmcnt(0)")
    if ct < 3: rd5(ct+1)
    for ks in range(4):
        mfma(ACC+4*ct, WQ5(ct, ks), XF+4*ks, None if ks == 0 else ACC+4*ct)
for m in ("quad_perm:[1,0,3,2]", "quad_perm:[2,3,0,1]", "row_half_mirror", "row_mirror"):
    e(f"v_add_f32_dpp {v(T+7)}, {v(T+7)}, {v(T+7)} {m} row_mask:0xf bank_mask:0xf")
    e(f"v_add_f32_dpp {v(T+8)}, {v(T+8)}, {v(T+8)} {m} row_mask:0xf bank_mask:0xf")
    nop(1)
stats_from(T+7, T+8, False, T+9)
e(f"v_sub_f32 {v(T+8)}, 0, {v(T+8)}")
e(f"v_mov_b32 {v(T+9)}, {v(T+7)}")
e(f"v_lshlrev_b32 {v(T+6)}, 3, {v(kg)}")
e(f"ds_write_b64 {v(T+6)}, {v(T+8,2)} offset:{L_G1}")
e(f"v_lshlrev_b32 {v(T+6)}, 3, {v(l3)}")
e("s_waitcnt lgkmcnt(0)")
e(f"ds_read_b64 {v(T+8,2)}, {v(T+6)} offset:{L_G1}")
for r in range(16):
    e(f"v_mov_b32_dpp {v(VT+r)}, {v(ACC+r)} row_shl:4 row_mask:0xf bank_mask:0xf")
e("s_waitcnt lgkmcnt(0)")
for r in range(16):
    e(f"v_fmac_f32 {v(ACC+r)}, {v(VT+r)}, {v(T+8)}")
for r in range(16):
    e(f"v_mul_f32 {v(ACC+r)}, {v(ACC+r)}, {v(T+9)}")
for ct in range(4):
    e(f"v_cvt_pk_bf16_f32 {v(VT+4*ct)}, {v(ACC+4*ct)}, {v(ACC+4*ct+1)}")
    e(f"v_cvt_pk_bf16_f32 {v(VT+4*ct+2)}, {v(ACC+4*ct+2)}, {v(ACC+4*ct+3)}")
e(f"v_lshlrev_b32 {v(T+6)}, 6, {v(l3)}")
e(f"v_lshl_add_u32 {v(T+6)}, {v(kg)}, 4, {v(T+6)}")
e(f"s_lshl_b32 {s(sT1)}, {s(sI)}, 10")
e(f"s_add_u32 {s(sT1)}, {s(sT1)}, {s(sTB)}")
e(f"s_mov_b32 {s(sCNT)}, 0")
e(f"s_waitcnt vmcnt({8-K0N})")
e(f"v_or_b32 {v(T+13)}, {v(ONE)}, {v(ONE+1)}")
lab("L_NONCE")
nop(1)
e(f"v_readfirstlane_b32 {s(sNONCE)}, {v(T+13)}")
e(f"s_add_u32 {s(sCNT)}, {s(sCNT)}, 1")
e(f"s_cmp_ge_u32 {s(sCNT)}, {SPIN_MAX}")
e("s_cbranch_scc1 L_NONCE_D")
e(f"s_cmp_lg_u32 {s(sNONCE)}, 0")
e("s_cbranch_scc1 L_NONCE_D")
e(f"buffer_load_dword {v(T+13)}, {v(T+14)}, {s(sDBG,4)}, 0 offen sc1")
e("s_waitcnt vmcnt(0)")
e("s_branch L_NONCE")
lab("L_NONCE_D")
e(f"s_mov_b32 {s(sCNT)}, 0")
lab("L_ACKW")
e(f"ds_read_b32 {v(T+13)}, {v(T+11)}")
e(f"s_add_u32 {s(sCNT)}, {s(sCNT)}, 1")
e("s_waitcnt lgkmcnt(0)")
e(f"v_readfirstlane_b32 {s(sT3)}, {v(T+13)}")
e(f"s_cmp_ge_u32 {s(sCNT)}, {SPIN_MAX}")
e("s_cbranch_scc1 L_ACKD")
e(f"s_cmp_lt_u32 {s(sT3)}, 0x700")
e("s_cbranch_scc1 L_ACKW")
lab("L_ACKD")
e(f"s_or_b32 {s(sT3)}, {s(sNONCE)}, {s(sXCC)}")
for ct in range(4):
    e(f"v_mov_b32 {v(VT+4*ct+1)}, {s(sT3)}")
    e(f"v_mov_b32 {v(VT+4*ct+3)}, {s(sT3)}")
e(f"s_mov_b64 exec, {s(sMA[0],2)}")
for ct in range(4):
    e(f"buffer_store_dwordx4 {v(VT+4*ct,4)}, {v(T+6)}, {s(sWS,4)}, {s(sT1)} offen offset:{256*ct} sc1")
e("s_mov_b64 exec, -1")
stamp(3)
e("s_branch L_FREE")
lab("L_QT0")
c("---------------- wave 5: tagged q messages: 32 x 256 B of this batch; load (kq, half): lane -> cbk = 4*half + (l>>4)")
e(f"s_mov_b32 {s(sCNT)}, 0")
e(f"s_or_b32 {s(sT3)}, {s(sNONCE)}, {s(sXCC)}")
e(f"v_mov_b32 {v(QF+10)}, {s(sT3)}")
if QPOS <= 8:
    e(f"s_waitcnt vmcnt({8 - QPOS + 5})")
    e("s_branch L_QT_CHK")
lab("L_QT")
if OPT["qs"]:
    e(f"s_sleep {OPT['qs']}")
issue_qt()
e("s_waitcnt vmcnt(0)")
lab("L_QT_CHK")
e(f"v_mov_b32 {v(QF+11)}, 0")
for k in range(8):
    e(f"v_xor_b32 {v(QF+12)}, {v(QF+10)}, {v(QT+4*k+1)}")
    e(f"v_xor_b32 {v(QF+13)}, {v(QF+10)}, {v(QT+4*k+3)}")
    e(f"v_or3_b32 {v(QF+11)}, {v(QF+11)}, {v(QF+12)}, {v(QF+13)}")
e(f"v_cmp_lt_u32 vcc, 15, {v(QF+11)}")
e(f"s_add_u32 {s(sCNT)}, {s(sCNT)}, 1")
e(f"s_cmp_ge_u32 {s(sCNT)}, {SPIN_MAX}")
e("s_cbranch_scc1 L_QT_DONE")
e("s_cbranch_vccnz L_QT")
lab("L_QT_DONE")
stamp(4)
k_fixup()
for j in range(4):
    d0 = QT + 2*j
    e(f"v_lshlrev_b32 {v(ACC)}, 16, {v(d0)}")
    e(f"v_and_b32 {v(ACC+1)}, 0xffff0000, {v(d0)}")
    for k in range(1, 4):
        e(f"v_lshlrev_b32 {v(ACC+2)}, 16, {v(d0+8*k)}")
        e(f"v_and_b32 {v(ACC+3)}, 0xffff0000, {v(d0+8*k)}")
        e(f"v_pk_add_f32 {v(ACC,2)}, {v(ACC,2)}, {v(ACC+2,2)}")
    e(f"v_cvt_pk_bf16_f32 {v(QF+j)}, {v(ACC)}, {v(ACC+1)}")
e(f"v_lshrrev_b32 {v(T+11)}, 5, {v(vL)}")
e(f"v_mul_u32_u24 {v(T+11)}, 272, {v(T+11)}")
e(f"v_and_b32 {v(T+12)}, 31, {v(vL)}")
e(f"v_lshl_add_u32 {v(T+11)}, {v(T+12)}, 3, {v(T+11)}")
e(f"ds_write_b64 {v(T+11)}, {v(QF,2)} offset:{L_Q}")
e(f"ds_write_b64 {v(T+11)}, {v(QF+2,2)} offset:{L_Q+544}")
e(f"v_cmp_ne_u32 vcc, 0, {v(QF+11)}")
e(f"s_cmp_eq_u64 vcc, 0")
e(f"s_cselect_b32 {s(sFAST)}, 1, 0")
e(f"v_mov_b32 {v(T+12)}, {s(sFAST)}")
e(f"v_mov_b32 {v(T+13)}, {L_Q + 256}")
e(f"ds_write_b32 {v(T+13)}, {v(T+12)}")
e(f"s_cmp_lg_u32 {s(sI)}, 0")
e("s_cbranch_scc1 L_NOLEAD")
c("group leader announces 'group g has pre-filled' to the other groups")
e(f"s_lshl_b32 {s(sT3)}, {s(sG)}, 2")
e(f"v_mov_b32 {v(T+12)}, 1")
e(f"v_mov_b32 {v(T+13)}, {s(sT3)}")
e("s_mov_b64 exec, 1")
e(f"buffer_store_dword {v(T+12)}, {v(T+13)}, {s(sDBG,4)}, 0 offen offset:128 sc1")
e("s_mov_b64 exec, -1")
lab("L_NOLEAD")
if OPT["touch"]:
    e(f"s_mul_i32 {s(sT0)}, {s(sI)}, {PF}")
    e(f"s_add_u32 {s(sT0)}, {s(sT0)}, {s(sGB)}")
    e(f"v_lshlrev_b32 {v(T+12)}, 7, {v(vL)}")
    set_exec(0xffffffff, 0x3fffff)
    e(f"buffer_load_dword {v(WB)}, {v(T+12)}, {s(sWS,4)}, {s(sT0)} offen sc1")
    e("s_mov_b64 exec, -1")
e("s_waitcnt lgkmcnt(0)")
lab("L_QBAR0")
stamp(31)
e("s_barrier")
e(f"v_mov_b32 {v(T+13)}, {L_Q + 256}")
e(f"ds_read_b32 {v(T+12)}, {v(T+13)}")
e("s_waitcnt lgkmcnt(0)")
e(f"v_readfirstlane_b32 {s(sFAST)}, {v(T+12)}")
if OPT["diag"] == 3:
    e(f"s_mov_b32 {s(sFAST)}, 0")
stamp(2)
if 4 <= OPT["diag"] <= 7:
    e(f"s_memrealtime {s(sTM,2)}")
    e("s_waitcnt lgkmcnt(0)")
    e(f"s_mov_b32 {s(sD1)}, {s(sTM)}")

lab("L_LOOP")
dpoint(3)
c("---------------- P2: attention over this wave's 32 keys")
e(f"v_add_u32 {v(T)}, {s(sROTH)}, {v(aQR)}")
e(f"v_subrev_u32 {v(T+1)}, {s(sROTH)}, {v(aQR)}")
e(f"ds_read_b128 {v(QF,4)}, {v(T)}")
e(f"ds_read_b128 {v(QF+4,4)}, {v(T)} offset:16")
e(f"ds_read_b128 {v(QF+8,4)}, {v(T+1)} offset:128")
e(f"ds_read_b128 {v(QF+12,4)}, {v(T+1)} offset:144")
ST = ACC
for sl in range(4):
    e(f"s_waitcnt lgkmcnt({3-sl})")
    for t in range(2):
        mfma(ST+4*t, KF + 4*(t*4+sl), QF + 4*sl, None if sl == 0 else ST+4*t)
stamp(16)
nop(8)
e(f"v_max3_f32 {v(T)}, {v(ST)}, {v(ST+1)}, {v(ST+2)}")
e(f"v_max3_f32 {v(T+1)}, {v(ST+3)}, {v(ST+4)}, {v(ST+5)}")
e(f"v_max3_f32 {v(T)}, {v(T)}, {v(ST+6)}, {v(ST+7)}")
e(f"v_max_f32 {v(T)}, {v(T)}, {v(T+1)}")
e(f"v_mov_b32 {v(T+1)}, {v(T)}")
nop(2)
e(f"v_permlane16_swap_b32 {v(T)}, {v(T+1)}")
nop(1)
e(f"v_max_f32 {v(T)}, {v(T)}, {v(T+1)}")
e(f"v_mov_b32 {v(T+1)}, {v(T)}")
nop(2)
e(f"v_permlane32_swap_b32 {v(T)}, {v(T+1)}")
nop(1)
e(f"v_max_f32 {v(T)}, {v(T)}, {v(T+1)}")
e(f"v_mul_f32 {v(vMW)}, {s(sC)}, {v(T)}")
stamp(17)
e(f"ds_write_b32 {v(aMXW)}, {v(vMW)}")
for r in range(8):
    e(f"v_fma_f32 {v(ST+r)}, {v(ST+r)}, {s(sC)}, -{v(vMW)}")
for r in range(8):
    e(f"v_exp_f32 {v(ST+r)}, {v(ST+r)}")
nop(1)
for a in range(4):
    e(f"s_mov_b64 exec, {s(sMA[a],2)}")
    for j in range(4):
        e(f"v_cvt_pk_bf16_f32 {v(PB+4*a+j)}, {v(ST+2*j)}, {v(ST+2*j+1)}")
e("s_mov_b64 exec, -1")
e(f"s_cmp_lg_u32 {s(sLAYER)}, 0")
e("s_cbranch_scc1 L_PV")
c("first layer only: V has to land, then transpose it in registers")
e(f"s_waitcnt vmcnt({2 if OPT['late'] else 4})")
stamp(14)
for p in range(4):
    for cc in range(4):
        a = VR + 4*(2*p) + cc; b = VR + 4*(2*p+1) + cc
        e(f"v_perm_b32 {v(VT+4*(2*cc)+p)}, {v(b)}, {v(a)}, {s(sPLO)}")
        e(f"v_perm_b32 {v(VT+4*(2*cc+1)+p)}, {v(b)}, {v(a)}, {s(sPHI)}")
e("s_branch L_PV2")
lab("L_PV")
e("s_waitcnt vmcnt(0)")
lab("L_PV2")
stamp(18)
nop(2)
OT = ACC + 8
LT = ACC
for a in range(4):
    for u in range(2):
        mfma(OT+4*u, VT + 4*(4*u+a), PB + 4*a, None if a == 0 else OT+4*u)
mfma(LT, ONE, PB, None)
stamp(19)
nop(6)
e(f"ds_write_b128 {v(aOW)}, {v(OT,4)}")
e(f"ds_write_b128 {v(aOW)}, {v(OT+4,4)} offset:1088")
e("s_mov_b64 exec, 15")
e(f"ds_write_b32 {v(aMXW)}, {v(LT)} offset:128")
e("s_mov_b64 exec, -1")
stamp(21)
e(f"s_waitcnt vmcnt({0 if OPT['late'] else 2}) lgkmcnt(0)")
e("s_barrier")
stamp(5)
dpoint(4)
e(f"s_cmp_gt_u32 {s(sW)}, 4")
e("s_cbranch_scc1 L_P2_B2")
e(f"ds_read_b128 {v(T,4)}, {v(aMX)}")
e(f"ds_read_b128 {v(T+4,4)}, {v(aMX)} offset:16")
e(f"s_cmp_eq_u32 {s(sW)}, 4")
e("s_cbranch_scc1 L_P2_B")
for k in range(4):
    e(f"ds_read2st64_b64 {v(VR+4*k,4)}, {v(aOR)} offset0:{10*k} offset1:{10*k+5}")
e("s_waitcnt lgkmcnt(4)")
def factors():
    e(f"v_max3_f32 {v(T+8)}, {v(T)}, {v(T+1)}, {v(T+2)}")
    e(f"v_max3_f32 {v(T+9)}, {v(T+3)}, {v(T+4)}, {v(T+5)}")
    e(f"v_max3_f32 {v(T+8)}, {v(T+8)}, {v(T+6)}, {v(T+7)}")
    e(f"v_max_f32 {v(T+8)}, {v(T+8)}, {v(T+9)}")
    for k in range(8):
        e(f"v_sub_f32 {v(T+k)}, {v(T+k)}, {v(T+8)}")
    for k in range(8):
        e(f"v_exp_f32 {v(T+k)}, {v(T+k)}")
factors()
e("s_waitcnt lgkmcnt(0)")
e(f"v_mul_f32 {v(VR)}, {v(VR)}, {v(T)}")
e(f"v_mul_f32 {v(VR+1)}, {v(VR+1)}, {v(T)}")
for k in range(1, 8):
    e(f"v_fmac_f32 {v(VR)}, {v(VR+2*k)}, {v(T+k)}")
    e(f"v_fmac_f32 {v(VR+1)}, {v(VR+2*k+1)}, {v(T+k)}")
e(f"v_cvt_pk_bf16_f32 {v(T+9)}, {v(VR)}, {v(VR+1)}")
e(f"v_min_u32 {v(T+9)}, -2, {v(T+9)}")
store_intra("buffer_store_dword", v(T+9), aOST, sLB, 0)
e(f"s_cmp_lg_u32 {s(sLAYER)}, 0")
e("s_cbranch_scc1 L_P3")
c("first layer only: wo and wq fragments out of LDS")
e(f"v_lshrrev_b32 {v(T+4)}, 5, {v(vL)}")
e(f"v_lshlrev_b32 {v(T+4)}, 12, {v(T+4)}")
e(f"v_bfe_u32 {v(T+5)}, {v(vL)}, 4, 1")
e(f"v_lshl_add_u32 {v(T+4)}, {v(T+5)}, 8, {v(T+4)}")
e(f"v_bfe_u32 {v(T+5)}, {v(vL)}, 2, 2")
e(f"v_lshl_add_u32 {v(T+4)}, {v(T+5)}, 10, {v(T+4)}")
e(f"v_and_b32 {v(T+5)}, 3, {v(vL)}")
e(f"v_lshlrev_b32 {v(T+5)}, 3, {v(T+5)}")
e(f"s_lshl_b32 {s(sT3)}, {s(sW)}, 5")
e(f"v_add_u32 {v(T+5)}, {s(sT3)}, {v(T+5)}")
e(f"v_add_u32 {v(T+4)}, {v(T+4)}, {v(T+5)}")
for ks in range(4):
    o = L_WO + (64*(ks & 1) + 4*(ks >> 1)) * 128
    e(f"ds_read_b64_tr_b16 {v(WB+4*ks,2)}, {v(T+4)} offset:{o}")
    e(f"ds_read_b64_tr_b16 {v(WB+4*ks+2,2)}, {v(T+4)} offset:{o+128}")
e(f"v_and_b32 {v(BIA+1)}, 0xffff0000, {v(BIA)}")
e(f"v_lshlrev_b32 {v(BIA)}, 16, {v(BIA)}")
unpack4(RES, RES, RES+1)
e("s_branch L_P3")
lab("L_P2_B")
e(f"ds_read_b128 {v(VR,4)}, {v(aMX)} offset:128")
e(f"ds_read_b128 {v(VR+4,4)}, {v(aMX)} offset:144")
e("s_waitcnt lgkmcnt(2)")
factors()
e("s_waitcnt lgkmcnt(0)")
e(f"v_mul_f32 {v(T+9)}, {v(VR)}, {v(T)}")
for k in range(1, 8):
    e(f"v_fmac_f32 {v(T+9)}, {v(VR+k)}, {v(T+k)}")
e("s_mov_b64 exec, 15")
store_intra("buffer_store_dwordx2", v(T+8,2), aOST, sLB, 0)
e("s_mov_b64 exec, -1")
lab("L_P2_B2")

lab("L_P3")
c("---------------- P3: split-softmax combine folded into o @ wo")
stamp(6)
e(f"s_lshl_b32 {s(sT0)}, {s(sB)}, 13")
e(f"s_lshl_b32 {s(sT1)}, {s(sW)}, 10")
e(f"s_add_u32 {s(sT0)}, {s(sT0)}, {s(sT1)}")
e(f"s_add_u32 {s(sT0)}, {s(sT0)}, {s(sLB)}")
e(f"s_add_u32 {s(sT0)}, {s(sT0)}, {OB_OFF}")
e(f"s_cmp_eq_u32 {s(sW)}, 7")
e("s_cbranch_scc1 L_P3_W7")
poll2(lambda R: e(f"buffer_load_dwordx4 {v(R,4)}, {v(aL16)}, {s(sWS,4)}, {s(sT0)} offen sc1"), QF, QF+4, 4, 1, T+4)
stamp(22)
e(f"ds_write_b128 {v(aAFW)}, {v(QF,4)}")
e("s_branch L_P3_BAR")
lab("L_P3_W7")
e(f"s_lshl_b32 {s(sT1)}, {s(sB)}, 8")
e(f"s_add_u32 {s(sT1)}, {s(sT1)}, {s(sLB)}")
e(f"s_add_u32 {s(sT1)}, {s(sT1)}, {ML_OFF}")
e(f"v_and_b32 {v(T+9)}, 0xff, {v(aL16)}")
def issue_oml(R):
    e(f"buffer_load_dwordx4 {v(R,4)}, {v(aL16)}, {s(sWS,4)}, {s(sT0)} offen sc1")
    e(f"buffer_load_dwordx4 {v(R+4,4)}, {v(T+9)}, {s(sWS,4)}, {s(sT1)} offen sc1")
poll2(issue_oml, QF, QF+8, 8, 2, T+8)
stamp(22)
e(f"ds_write_b128 {v(aAFW)}, {v(QF,4)}")
e(f"ds_write_b128 {v(T+9)}, {v(QF+4,4)} offset:{L_ML}")
lab("L_P3_BAR")
stamp(23)
e("s_waitcnt lgkmcnt(0)")
e("s_barrier")
stamp(24)
dpoint(5)
e(f"s_cmp_ge_u32 {s(sW)}, 4")
e("s_cbranch_scc1 L_P5")
e(f"ds_read2_b64 {v(T,4)}, {v(aMLR)} offset0:0 offset1:4")
for ks in range(4):
    for sh in range(2):
        e(f"ds_read_b128 {v(VR+4*(sh*4+ks),4)}, {v(aAFR)} offset:{sh*16*272 + ks*64}")
e("s_waitcnt lgkmcnt(8)")
e(f"v_max_f32 {v(T+4)}, {v(T)}, {v(T+2)}")
nop(2)
e(f"v_max_f32_dpp {v(T+4)}, {v(T+4)}, {v(T+4)} quad_perm:[1,0,3,2] row_mask:0xf bank_mask:0xf")
nop(2)
e(f"v_max_f32_dpp {v(T+4)}, {v(T+4)}, {v(T+4)} quad_perm:[2,3,0,1] row_mask:0xf bank_mask:0xf")
e(f"v_sub_f32 {v(T)}, {v(T)}, {v(T+4)}")
e(f"v_sub_f32 {v(T+2)}, {v(T+2)}, {v(T+4)}")
e(f"v_exp_f32 {v(T)}, {v(T)}")
e(f"v_exp_f32 {v(T+2)}, {v(T+2)}")
for ks in range(4):
    e(f"s_waitcnt lgkmcnt({6-2*ks})")
    for sh in range(2):
        mfma(ACC+4*sh, WB + 4*ks, VR + 4*(sh*4+ks), None if ks == 0 else ACC+4*sh)
e(f"v_mul_f32 {v(T+4)}, {v(T)}, {v(T+1)}")
e(f"v_fmac_f32 {v(T+4)}, {v(T+2)}, {v(T+3)}")
nop(2)
e(f"v_add_f32_dpp {v(T+4)}, {v(T+4)}, {v(T+4)} quad_perm:[1,0,3,2] row_mask:0xf bank_mask:0xf")
nop(2)
e(f"v_add_f32_dpp {v(T+4)}, {v(T+4)}, {v(T+4)} quad_perm:[2,3,0,1] row_mask:0xf bank_mask:0xf")
e(f"v_rcp_f32 {v(T+4)}, {v(T+4)}")
nop(1)
e(f"v_mul_f32 {v(T)}, {v(T)}, {v(T+4)}")
e(f"v_mul_f32 {v(T+2)}, {v(T+2)}, {v(T+4)}")
for r in range(4):
    e(f"v_mul_f32 {v(ACC+r)}, {v(ACC+r)}, {v(T)}")
for r in range(4):
    e(f"v_fmac_f32 {v(ACC+r)}, {v(ACC+4+r)}, {v(T+2)}")
for r in range(4):
    e(f"v_add_f32_dpp {v(ACC+r)}, {v(ACC+r)}, {v(ACC+r)} quad_perm:[1,0,3,2] row_mask:0xf bank_mask:0xf")
for r in range(4):
    e(f"v_add_f32_dpp {v(ACC+r)}, {v(ACC+r)}, {v(ACC+r)} quad_perm:[2,3,0,1] row_mask:0xf bank_mask:0xf")
pack_msg(ACC)
set_exec(0x1111, 0x1111)
e(f"buffer_store_dwordx4 {v(T+8,4)}, {v(aP3S)}, {s(sWS,4)}, {s(sLB)} offen sc1")
e("s_mov_b64 exec, -1")
stamp(7)
e(f"s_cmp_lg_u32 {s(sW)}, 3")
e("s_cbranch_scc1 L_G5")
c("---------------- P4 (wave 3): x1 slice = x + sum over 32 heads")
e(f"s_cmp_lg_u32 {s(sLAYER)}, 0")
e("s_cbranch_scc1 L_P4_L1")
e(f"v_and_b32 {v(T+4)}, 7, {v(vL)}")
e(f"v_lshlrev_b32 {v(T+4)}, 2, {v(T+4)}")
e(f"s_mov_b32 {s(sCNT)}, 0")
lab("L_GFLAG")
e(f"buffer_load_dword {v(T+5)}, {v(T+4)}, {s(sDBG,4)}, 0 offen offset:128 sc1")
e("s_waitcnt vmcnt(0)")
e(f"v_cmp_eq_u32 vcc, 0, {v(T+5)}")
e("s_cbranch_vccz L_P4_GO")
e(f"s_add_u32 {s(sCNT)}, {s(sCNT)}, 1")
e(f"s_cmp_lt_u32 {s(sCNT)}, {SPIN_MAX}")
e("s_cbranch_scc1 L_GFLAG")
e("s_branch L_P4_GO")
lab("L_P4_L1")
e(f"ds_read_b128 {v(RES,4)}, {v(aL16)} offset:{L_RES}")
if OPT["d4"]:
    e(f"s_sleep {OPT['d4']}")
lab("L_P4_GO")
reduce_slice(4, X1P_OFF, 2*GSZ, False)
set_exec(0x00ff00ff, 0)
store_intra("buffer_store_dwordx2", v(T,2), aXS, sLB, X1_OFF)
e("s_mov_b64 exec, -1")
unpack4(RES, T, T+1)
e(f"ds_write_b128 {v(aL16)}, {v(RES,4)} offset:{L_RES}")
stamp(8)
lab("L_G5")
if OPT["xb"]: e("s_barrier")
e(f"s_cmp_lg_u32 {s(sLAYER)}, 0")
e("s_cbranch_scc1 L_G5b")
c("first layer only: waves 0-3 publish the column sums of their wq tile and fetch those of w1")
e(f"v_and_b32 {v(T+5)}, 3, {v(vL)}")
e(f"v_lshlrev_b32 {v(T+5)}, 3, {v(T+5)}")
e(f"s_lshl_b32 {s(sT3)}, {s(sW)}, 5")
e(f"v_add_u32 {v(T+5)}, {s(sT3)}, {v(T+5)}")
e(f"v_lshl_add_u32 {v(T+4)}, {v(TRR)}, 7, {v(T+5)}")
for ks in range(4):
    e(f"ds_read_b64_tr_b16 {v(WA+4*ks,2)}, {v(T+4)} offset:{L_WQ + 4096*ks}")
    e(f"ds_read_b64_tr_b16 {v(WA+4*ks+2,2)}, {v(T+4)} offset:{L_WQ + 4096*ks + 512}")
e(f"s_add_u32 {s(sT0)}, {s(sGB)}, {QP_OFF}")
colsum_store(sT0)
e(f"s_add_u32 {s(sT0)}, {s(sLB)}, {HP_OFF}")
e(f"s_lshl_b32 {s(sT3)}, {s(sW)}, 10")
e(f"s_sub_u32 {s(sT3)}, 4096, {s(sT3)}")
e(f"v_add_u32 {v(T+3)}, {s(sT3)}, {v(aSG)}")
if not OPT["late"]:
    colsum_fetch(sT0, 5120, T+3)
lab("L_G5b")
e("s_waitcnt lgkmcnt(0)")
e("s_branch L_BAR5")
lab("L_P5")
if OPT["late"]:
    exec('e(f"s_cmp_lg_u32 {s(sLAYER)}, 0")\ne("s_cbranch_scc1 L_P5b")\nc("first layer only: w1 tile (waves 4,5) / w2 tile (waves 6,7) -> LDS while the cross-group hand-off is under way")\nunpack4(BIA, BIA, BIA+1)\ne(f"v_lshrrev_b32 {v(T+11)}, 2, {v(vL)}")\ne(f"v_and_b32 {v(T+12)}, 3, {v(vL)}")\ne(f"v_lshlrev_b32 {v(T+12)}, 4, {v(T+12)}")\ne(f"s_and_b32 {s(sT2)}, {s(sW)}, 1")\ne(f"s_cmp_ge_u32 {s(sW)}, 6")\ne("s_cbranch_scc1 L_W2L")\ne(f"v_mul_u32_u24 {v(T+13)}, 3584, {v(T+11)}")\ne(f"v_add_u32 {v(T+13)}, {v(T+13)}, {v(T+12)}")\ne(f"s_lshl_b32 {s(sT3)}, {s(sKQ)}, 1")\ne(f"s_add_u32 {s(sT3)}, {s(sT3)}, {s(sT2)}")\ne(f"s_mul_i32 {s(sT3)}, {s(sT3)}, {64*3584}")\ne(f"s_mul_i32 {s(sT1)}, {s(sG)}, 448")\ne(f"s_add_u32 {s(sT3)}, {s(sT3)}, {s(sT1)}")\ne(f"s_lshr_b32 {s(sT0)}, {s(sI)}, 2")\ne(f"s_min_u32 {s(sT0)}, {s(sT0)}, 6")\ne(f"s_lshl_b32 {s(sT0)}, {s(sT0)}, 6")\ne(f"s_add_u32 {s(sT3)}, {s(sT3)}, {s(sT0)}")\ne(f"s_lshl_b32 {s(sT0)}, {s(sT2)}, 12")\ne(f"s_add_u32 {s(sT0)}, {s(sT0)}, {L_W1}")\nfor n in range(4):\n    e(f"s_mov_b32 m0, {s(sT0)}")\n    e(f"s_add_u32 {s(sT0)}, {s(sT0)}, 1024")\n    e(f"buffer_load_dwordx4 {v(T+13)}, {s(sW1,4)}, {s(sT3)} offen{W12} lds")\n    e(f"s_add_u32 {s(sT3)}, {s(sT3)}, {16*3584}")\ne("s_branch L_P5b")\nlab("L_W2L")\ne(f"v_lshl_add_u32 {v(T+13)}, {v(T+11)}, 10, {v(T+12)}")\ne(f"s_mul_i32 {s(sT3)}, {s(sG)}, {224*1024}")\ne(f"s_mul_i32 {s(sT1)}, {s(sKH)}, {96*1024}")\ne(f"s_add_u32 {s(sT3)}, {s(sT3)}, {s(sT1)}")\ne(f"s_lshl_b32 {s(sT1)}, {s(sT2)}, 16")\ne(f"s_add_u32 {s(sT3)}, {s(sT3)}, {s(sT1)}")\ne(f"s_lshr_b32 {s(sT1)}, {s(sI)}, 1")\ne(f"s_lshl_b32 {s(sT1)}, {s(sT1)}, 6")\ne(f"s_add_u32 {s(sT3)}, {s(sT3)}, {s(sT1)}")\ne(f"s_lshl_b32 {s(sT0)}, {s(sT2)}, 12")\ne(f"s_add_u32 {s(sT0)}, {s(sT0)}, {L_W2}")\nfor n in range(4):\n    e(f"s_mov_b32 m0, {s(sT0)}")\n    e(f"s_add_u32 {s(sT0)}, {s(sT0)}, 1024")\n    e(f"buffer_load_dwordx4 {v(T+13)}, {s(sW2,4)}, {s(sT3)} offen{W12} lds")\n    e(f"s_add_u32 {s(sT3)}, {s(sT3)}, {16*1024}")\n')
else:
    exec('e(f"s_cmp_lg_u32 {s(sLAYER)}, 0")\ne("s_cbranch_scc1 L_P5b")\nc("first layer only: w1 (waves 4,5) / w2 (waves 6,7) fragments: rows of 64 B, ct = w&1")\ne(f"v_and_b32 {v(T+5)}, 3, {v(vL)}")\ne(f"v_lshlrev_b32 {v(T+5)}, 3, {v(T+5)}")\ne(f"v_lshl_add_u32 {v(T+4)}, {v(TRR)}, 6, {v(T+5)}")\ne(f"s_and_b32 {s(sT3)}, {s(sW)}, 1")\ne(f"s_lshl_b32 {s(sT3)}, {s(sT3)}, 5")\ne(f"s_and_b32 {s(sT0)}, {s(sW)}, 2")\ne(f"s_lshl_b32 {s(sT0)}, {s(sT0)}, 12")                     # waves 6,7: + 8192 (L_W2 - L_W1)\ne(f"s_add_u32 {s(sT3)}, {s(sT3)}, {s(sT0)}")\ne(f"v_add_u32 {v(T+4)}, {s(sT3)}, {v(T+4)}")\nfor ks in range(4):\n    e(f"ds_read_b64_tr_b16 {v(WA+4*ks,2)}, {v(T+4)} offset:{L_W1 + 2048*ks}")\n    e(f"ds_read_b64_tr_b16 {v(WA+4*ks+2,2)}, {v(T+4)} offset:{L_W1 + 2048*ks + 256}")\nunpack4(BIA, BIA, BIA+1)\ne(f"s_cmp_ge_u32 {s(sW)}, 6")\ne("s_cbranch_scc1 L_P5b")\ne(f"s_cmp_ge_u32 {s(sI)}, 28")\ne("s_cbranch_scc1 L_P5b")\ncolsum_store(sLB)\n\n')
lab("L_P5b")
if OPT["xb"]: e("s_barrier")
c("---------------- waves 4-7: x1 image -> LDS")
e(f"s_lshl_b32 {s(sT0)}, {s(sWV)}, 10")
e(f"s_add_u32 {s(sT0)}, {s(sT0)}, {s(sLB)}")
poll_x(sT0)
stamp(27)
lab("L_BAR5")
e("s_barrier")
stamp(9)
dpoint(6)
e(f"s_cmp_lt_u32 {s(sW)}, 4")
e("s_cbranch_scc1 L_HSUM")
if OPT["late"]:
    exec('e(f"s_cmp_lg_u32 {s(sLAYER)}, 0")\ne("s_cbranch_scc1 L_FR_D")\ne(f"v_and_b32 {v(T+5)}, 3, {v(vL)}")\ne(f"v_lshlrev_b32 {v(T+5)}, 3, {v(T+5)}")\ne(f"v_lshl_add_u32 {v(T+4)}, {v(TRR)}, 6, {v(T+5)}")\ne(f"s_and_b32 {s(sT3)}, {s(sW)}, 1")\ne(f"s_lshl_b32 {s(sT3)}, {s(sT3)}, 5")\ne(f"s_and_b32 {s(sT0)}, {s(sW)}, 2")\ne(f"s_lshl_b32 {s(sT0)}, {s(sT0)}, 12")\ne(f"s_add_u32 {s(sT3)}, {s(sT3)}, {s(sT0)}")\ne(f"v_add_u32 {v(T+4)}, {s(sT3)}, {v(T+4)}")\nfor ks in range(4):\n    e(f"ds_read_b64_tr_b16 {v(WA+4*ks,2)}, {v(T+4)} offset:{L_W1 + 2048*ks}")\n    e(f"ds_read_b64_tr_b16 {v(WA+4*ks+2,2)}, {v(T+4)} offset:{L_W1 + 2048*ks + 256}")\nlab("L_FR_D")\n')
e(f"s_cmp_ge_u32 {s(sW)}, 6")
e("s_cbranch_scc1 L_CSQ")
e(f"s_cmp_ge_u32 {s(sI)}, 28")
e("s_cbranch_scc1 L_CSQ")
c("---------------- P5 (waves 4,5): raw x1 @ w1 partial of this tile")
gemv_mma_store(sLB, drain=False, with_cs=bool(OPT["late"]))
stamp(10)
lab("L_CSQ")
e(f"s_cmp_lg_u32 {s(sLAYER)}, 0")
e("s_cbranch_scc1 L_BARH")
c("first layer only: waves 4-7 fetch the column sums of wq")
e(f"s_add_u32 {s(sT0)}, {s(sGB)}, {QP_OFF}")
e(f"s_lshl_b32 {s(sT3)}, {s(sB)}, 11")
e(f"s_sub_u32 {s(sT3)}, 8192, {s(sT3)}")
e(f"v_add_u32 {v(T+3)}, {s(sT3)}, {v(aSG)}")
colsum_fetch(sT0, 10240, T+3)
e("s_branch L_BARH")
lab("L_HSUM")
c("---------------- waves 0-3: h = gelu(LN(LN(x1)) @ w1 + b1) for 128 units x batch w")
e(f"s_add_u32 {s(sT0)}, {s(sLB)}, {HP_OFF}")
sum_partials(sT0, 5120, True, cs_first=bool(OPT["late"]))
stamp(28)
K0 = -2.0 * math.log2(math.e) * math.sqrt(2.0 / math.pi)
for r in range(2):
    e(f"v_add_f32 {v(T+r)}, {v(T+r)}, {v(BIA+r)}")
for r in range(2):
    e(f"v_mul_f32 {v(T+2+r)}, {v(T+r)}, {v(T+r)}")
for r in range(2):
    e(f"v_mov_b32 {v(T+4+r)}, {f32(K0)}")
    e(f"v_fmac_f32 {v(T+4+r)}, {f32(K0*0.044715)}, {v(T+2+r)}")
for r in range(2):
    e(f"v_mul_f32 {v(T+4+r)}, {v(T+4+r)}, {v(T+r)}")
for r in range(2):
    e(f"v_exp_f32 {v(T+4+r)}, {v(T+4+r)}")
nop(1)
for r in range(2):
    e(f"v_add_f32 {v(T+4+r)}, 1.0, {v(T+4+r)}")
for r in range(2):
    e(f"v_rcp_f32 {v(T+4+r)}, {v(T+4+r)}")
nop(1)
for r in range(2):
    e(f"v_mul_f32 {v(T+r)}, {v(T+r)}, {v(T+4+r)}")
e(f"v_cvt_pk_bf16_f32 {v(T)}, {v(T)}, {v(T+1)}")
e(f"ds_write_b32 {v(aSW)}, {v(T)}")
e("s_waitcnt lgkmcnt(0)")
lab("L_BARH")
e("s_barrier")
stamp(20)
dpoint(7)
e(f"s_cmp_lt_u32 {s(sW)}, 6")
e("s_cbranch_scc1 L_NEXT")
c("---------------- P6 (waves 6,7): h[128 units] @ w2 tile -> partial x2")
for ks in range(4):
    e(f"ds_read_b128 {v(VR+4*ks,4)}, {v(aHR)} offset:{64*ks}")
e("s_waitcnt lgkmcnt(2)")
mfma(ACC, WA+4, VR+4, None)
e("s_waitcnt lgkmcnt(1)")
mfma(ACC, WA+8, VR+8, ACC)
e("s_waitcnt lgkmcnt(0)")
mfma(ACC, WA+12, VR+12, ACC)
e(f"s_cmp_lg_u32 {s(sKH)}, 0")
e("s_cbranch_scc1 L_P6_S")
mfma(ACC, WA, VR, ACC)
lab("L_P6_S")
nop(8)
pack_msg(ACC)
set_exec(0xf, 0xf)
e(f"buffer_store_dwordx4 {v(T+8,4)}, {v(aPS)}, {s(sWS,4)}, {s(sLB)} offen sc1")
e("s_mov_b64 exec, -1")
stamp(11)
dpoint(8)
e(f"s_cmp_lg_u32 {s(sW)}, 6")
e("s_cbranch_scc1 L_NEXT")
c("---------------- P7 (wave 6): x2 slice = x1 + b2 + sum over 16 partials")
e(f"ds_read_b128 {v(RES,4)}, {v(aL16)} offset:{L_RES}")
e(f"s_cmp_eq_u32 {s(sLAYER)}, 0")
e("s_cbranch_scc1 L_P7_GO")
e(f"s_cmp_lg_u32 {s(sS)}, {s(sG)}")
e("s_cbranch_scc1 L_END")
lab("L_P7_GO")
if OPT["d7"]:
    e(f"s_sleep {OPT['d7']}")
reduce_slice(2, X2P_OFF, 4*GSZ, True)
set_exec(0x00ff00ff, 0)
e(f"s_cmp_eq_u32 {s(sLAYER)}, 0")
e("s_cbranch_scc1 L_P7_MID")
if OPT["diag"] == 1:
    e(f"s_cmp_lg_u32 {s(sFAST)}, 0")
    e("s_cbranch_scc1 L_DIAG")
    for _ in range(16): e("s_sleep 127")
    lab("L_DIAG")
if OPT["diag"] in (5, 6, 7, 8):
    dpoint(9)
    e(f"s_memrealtime {s(sTM,2)}")
    e("s_waitcnt lgkmcnt(0)")
    if OPT["diag"] == 5: e(f"s_sub_u32 {s(sD3)}, {s(sD1)}, {s(sD0)}")
    if OPT["diag"] in (6, 8): e(f"s_sub_u32 {s(sD3)}, {s(sD2)}, {s(sD1)}")
    if OPT["diag"] == 7: e(f"s_sub_u32 {s(sD3)}, {s(sTM)}, {s(sD2)}")
    e(f"s_min_u32 {s(sD3)}, {s(sD3)}, 10000")
    e(f"s_mov_b32 {s(sD0)}, {s(sTM)}")
    lab("L_DG")
    e(f"s_memrealtime {s(sTM,2)}")
    e("s_waitcnt lgkmcnt(0)")
    e(f"s_sub_u32 {s(sD1)}, {s(sTM)}, {s(sD0)}")
    e(f"s_cmp_lt_u32 {s(sD1)}, {s(sD3)}")
    e("s_cbranch_scc1 L_DG")
if OPT["diag"] == 2:
    for _ in range(4): e("s_sleep 127")
e(f"buffer_store_dwordx2 {v(T,2)}, {v(aXN)}, {s(sOUT,4)}, 0 offen")
e("s_cmp_lg_u32 s2, 0")
e("s_cbranch_scc1 L_NOCLEAN")
c("WG 0: every workgroup is past the nonce / flag words by now; leave d_debug zero again")
e("s_mov_b64 exec, -1")
e(f"v_mov_b32 {v(T+2)}, 0")
if OPT["diag"] == 4:
    e(f"s_memrealtime {s(sTM,2)}")
    e("s_waitcnt lgkmcnt(0)")
    e(f"s_sub_u32 {s(sD3)}, {s(sTM)}, {s(sD0)}")
    e(f"s_sub_u32 {s(sD1)}, {s(sD1)}, {s(sD0)}")
    e(f"s_sub_u32 {s(sD2)}, {s(sD2)}, {s(sD0)}")
    e(f"v_writelane_b32 {v(T+1)}, {s(sD1)}, 2")
    e(f"v_writelane_b32 {v(T+1)}, {s(sD2)}, 3")
    e(f"v_writelane_b32 {v(T+1)}, {s(sD3)}, 4")
e(f"buffer_store_dword {v(T+2)}, {v(aL4)}, {s(sDBG,4)}, 0 offen sc1")
lab("L_NOCLEAN")
stamp(12)
e("s_branch L_END")
lab("L_P7_MID")
dpoint(1)
if 4 <= OPT["diag"] <= 7:
    e(f"s_memrealtime {s(sTM,2)}")
    e("s_waitcnt lgkmcnt(0)")
    e(f"s_mov_b32 {s(sD2)}, {s(sTM)}")
e(f"s_add_u32 {s(sT0)}, {s(sLB)}, {X2_OFF}")
store_intra("buffer_store_dwordx2", v(T,2), aXS, sT0, 0)
e("s_mov_b64 exec, -1")
unpack4(RES, T, T+1)
e(f"ds_write_b128 {v(aL16)}, {v(RES,4)} offset:{L_RES}")
stamp(12)
lab("L_NEXT")
e(f"s_cmp_lg_u32 {s(sLAYER)}, 0")
e("s_cbranch_scc1 L_END")
if OPT["xb"]: e("s_barrier")
e(f"s_cmp_ge_u32 {s(sW)}, 4")
e("s_cbranch_scc1 L_BAR1")
c("---------------- waves 0-3: x2 image -> LDS")
e(f"s_lshl_b32 {s(sT0)}, {s(sWV)}, 10")
e(f"s_add_u32 {s(sT0)}, {s(sT0)}, {s(sLB)}")
e(f"s_add_u32 {s(sT0)}, {s(sT0)}, {X2_OFF}")
poll_x(sT0)
stamp(29)
lab("L_BAR1")
e(f"s_mov_b32 {s(sLAYER)}, 1")
e(f"s_add_u32 {s(sLB)}, {s(sLB)}, {LSZ}")
e(f"s_mov_b32 {s(sLO)}, {LSZ}")
if OPT["stamps"]:
    e(f"v_mov_b32 {v(vSTAMP0)}, {v(vSTAMP)}")
    e(f"v_mov_b32 {v(vSTAMP)}, 0")
e("s_waitcnt lgkmcnt(0)")
e("s_barrier")
stamp(1)
dpoint(2)
e(f"s_add_u32 {s(sT0)}, {s(sGB)}, {QP_OFF}")
e(f"s_cmp_ge_u32 {s(sW)}, 4")
e("s_cbranch_scc1 L_QSUM")
c("---------------- P1 (waves 0-3): raw x2 @ wq partial of this tile")
gemv_mma_store(sT0)
stamp(3)
e("s_branch L_QBAR")
lab("L_QSUM")
c("---------------- waves 4-7: q = LN(x2) @ wq for head w-4 of this batch")
sum_partials(sT0, 10240, False)
stamp(4)
e(f"v_cvt_pk_bf16_f32 {v(T)}, {v(T)}, {v(T+1)}")
e(f"ds_write_b32 {v(aSW)}, {v(T)}")
e("s_waitcnt lgkmcnt(0)")
lab("L_QBAR")
e("s_barrier")
stamp(2)
e("s_branch L_LOOP")
lab("L_END")
if OPT["stamps"]:
    e("s_mov_b64 exec, -1")
    e("s_cmp_ge_u32 s2, 256")
    e("s_cbranch_scc1 L_END2")
    stamp(13)
    set_exec(0xffffffff, 0)
    e(f"buffer_store_dword {v(vSTAMP0)}, {v(aL4)}, {s(sWS,4)}, {s(sSTB)} offen")
    e(f"buffer_store_dword {v(vSTAMP)}, {v(aL4)}, {s(sWS,4)}, {s(sSTB)} offen offset:128")
    lab("L_END2")
e("s_endpgm")
out.append(f".fill (16384 - (. - {KNAME})) / 4, 4, 0xbf800000")

nv = (NVGPR + 7) // 8 * 8
out.append('.section .rodata,"a"')
out.append(".p2align 6")
out.append(f".amdhsa_kernel {KNAME}")
out.append(f"  .amdhsa_next_free_vgpr {nv}")
out.append(f"  .amdhsa_next_free_sgpr 102")
out.append(f"  .amdhsa_accum_offset {nv}")
out.append("  .amdhsa_group_segment_fixed_size 0")
out.append("  .amdhsa_kernarg_size 104")
out.append("  .amdhsa_user_sgpr_count 2")
out.append("  .amdhsa_user_sgpr_kernarg_segment_ptr 1")
out.append("  .amdhsa_system_sgpr_workgroup_id_x 1")
out.append(".end_amdhsa_kernel")
open(sys.argv[1], "w").write("\n".join(out) + "\n")
print("vgprs", NVGPR, "sgprs", S.n, "lds", LDS_BYTES, "lines", len(out))
```
